```python
import torch

def _softmax(x, axis=-1):
    return torch.softmax(x, dim=axis)
def _gelu(x):
    return torch.nn.functional.gelu(x, approximate="tanh")
def _silu(x):
    return torch.nn.functional.silu(x)
def _sigmoid(x):
    return torch.sigmoid(x)
def _layernorm(x, axis=-1, eps=1e-5):
    m = x.mean(dim=axis, keepdim=True)
    v = x.var(dim=axis, keepdim=True, unbiased=False)
    return (x - m) / torch.sqrt(v + eps)
def _scatter_add(tgt, idx, src, axis=0):
    return tgt.clone().index_add_(axis, idx, src)
def _segment_sum(src, seg, n):
    out = torch.zeros((n,) + src.shape[1:], dtype=src.dtype)
    return out.index_add_(0, seg, src)
def _pad(x, pw):
    flat = tuple(v for pair in reversed(pw) for v in pair)
    return torch.nn.functional.pad(x, flat)

kernel_name = 'parallel_sum__ssm_conv_s4d__glu_gated_swiglu__prompt'

def setup_inputs():

    _w = (lambda a: (lambda t: t.to(torch.bfloat16) if t.is_floating_point() else t)(torch.as_tensor(a)))
    def _A_setup():
        Bsz, L, D, N = 1, 2048, 512, 128
        return {
            "u": _w((lambda *s: torch.randn(*s, dtype=torch.bfloat16) * 0.05)(Bsz, L, D)),
            "log_A_real": _w((lambda *s: torch.randn(*s, dtype=torch.bfloat16) * 3.2)(D, N) * 0.5),
            "A_imag": _w((lambda *s: torch.randn(*s, dtype=torch.bfloat16) * 0.05)(D, N) * 3.14),
            "C_real": _w((lambda *s: torch.randn(*s, dtype=torch.bfloat16) * 0.1)(D, N) / N ** 0.5),
            "C_imag": _w((lambda *s: torch.randn(*s, dtype=torch.bfloat16) * 0.2)(D, N) / N ** 0.5),
            "log_dt": _w((lambda *s: torch.randn(*s, dtype=torch.bfloat16) * 0.05)(D) * 0.5 - 4.0),
            "D_skip": _w((lambda *s: torch.randn(*s, dtype=torch.bfloat16) * 0.05)(D)),
        }
    _A_in = _A_setup()

    def _B_setup():
        B, S, D, F = 1, 2048, 512, 1792
        return {
            "x": _w((lambda *s: torch.randn(*s, dtype=torch.bfloat16) * 0.05)(B, S, D)),
            "w1": _w((lambda *s: torch.randn(*s, dtype=torch.bfloat16) * 0.4)(D, F) * (2.0 / D) ** 0.5),
            "w3": _w((lambda *s: torch.randn(*s, dtype=torch.bfloat16) * 0.4)(D, F) * (2.0 / D) ** 0.5),
            "w2": _w((lambda *s: torch.randn(*s, dtype=torch.bfloat16) * 0.4)(F, D) * (2.0 / F) ** 0.5),
        }
    _B_in = _B_setup()

    return {
        "A_u": _A_in["u"],
        "A_log_A_real": _A_in["log_A_real"],
        "A_A_imag": _A_in["A_imag"],
        "A_C_real": _A_in["C_real"],
        "A_C_imag": _A_in["C_imag"],
        "A_log_dt": _A_in["log_dt"],
        "A_D_skip": _A_in["D_skip"],
        "B_x": _B_in["x"],
        "B_w1": _B_in["w1"],
        "B_w3": _B_in["w3"],
        "B_w2": _B_in["w2"],
    }

def reference(A_u, A_log_A_real, A_A_imag, A_C_real, A_C_imag, A_log_dt, A_D_skip, B_x, B_w1, B_w3, B_w2):
    def _A_ref(u, log_A_real, A_imag, C_real, C_imag, log_dt, D_skip):
        L = u.shape[1]
        dt = torch.exp(log_dt)
        A = -torch.exp(log_A_real) + 1j * A_imag
        C = (C_real + 1j * C_imag) * dt[:, None]
        pos = (lambda x, dt: x.to(dt))(torch.arange(L), log_dt.dtype)
        P = torch.exp((A * dt[:, None])[:, :, None] * pos[None, None, :])
        K = 2.0 * torch.einsum("dn,dnl->dl", C, P).real
        L2 = 2 * L
        u_t = (lambda x, *d: x.permute(*d))(u, 0, 2, 1)
        Kf = (lambda x, *a, **k: torch.fft.rfft(x.float(), *a, **k))(K, L2)
        Uf = (lambda x, *a, **k: torch.fft.rfft(x.float(), *a, **k))(u_t, L2)
        y = (lambda x, *a, **k: torch.fft.irfft(x, *a, **k).to(torch.bfloat16))(Uf * Kf[None, :, :], L2)[:, :, :L]
        y = (lambda x, *d: x.permute(*d))(y, 0, 2, 1)
        return y + u * D_skip[None, None, :]

    def _B_ref(x, w1, w3, w2):
        gate = torch.einsum("bsd,df->bsf", x, w1)
        up = torch.einsum("bsd,df->bsf", x, w3)
        h = _silu(gate) * up
        out = torch.einsum("bsf,fd->bsd", h, w2)
        return out

    x = A_u
    xn = _layernorm(x, axis=-1)
    return x + _A_ref(xn, A_log_A_real, A_A_imag, A_C_real, A_C_imag, A_log_dt, A_D_skip) + _B_ref(xn, B_w1, B_w3, B_w2)
```

```python
import sys

KNAME = "parallel_sum__ssm_conv_s4d__glu_gated_swiglu__prompt_kernel"

WS_XNT = 0
WS_STATS = 2 << 20
WS_CS = WS_STATS + 32768
WS_KV = WS_STATS + 65536
WS_H = 4 << 20
WS_AO = 12 << 20
WS_TS = 14 << 20
WS_SIZE = 16 << 20

KV_PITCH = 3072
KV_BIAS = 0x3F7F
KV_ZERO = 0x4500 - KV_BIAS + 1
KV_DUMP = KV_ZERO + 1

LOG2E = 0x3FB8AA3B
NLOG2E = 0xBFB8AA3B
INV2PI = 0x3E22F983


class Gen:
    def __init__(self, ts=False):
        self.L = []
        self.vm = []
        self.ts = ts
        self.nts = 0
        self.lbl = 0

    def __call__(self, s):
        self.L.append("    " + s)

    def label(self, l):
        self.L.append(l + ":")

    def newlabel(self, p="L"):
        self.lbl += 1
        return "%s_%d" % (p, self.lbl)

    def comment(self, s):
        self.L.append("    ; " + s)

    def vmem(self, s, tag):
        self(s)
        self.vm.append(tag)

    def wait_vm(self, tags, extra=""):
        if isinstance(tags, str):
            tags = [tags]
        last = -1
        for i, t in enumerate(self.vm):
            if t in tags:
                last = i
        if last < 0:
            if extra:
                self("s_waitcnt " + extra)
            return
        n = len(self.vm) - 1 - last
        assert n <= 63, n
        self("s_waitcnt vmcnt(%d) %s" % (n, extra))
        self.vm = self.vm[last + 1:]

    def wait_vm_all(self, extra=""):
        self("s_waitcnt vmcnt(0) %s" % extra)
        self.vm = []

    def stamp(self, idx):
        if not self.ts:
            return
        self("s_memtime s[98:99]")
        self("s_waitcnt lgkmcnt(0)")
        self("v_writelane_b32 v%d, s98, %d" % (self.VTS, idx))


def vr(a, n=1):
    return "v%d" % a if n == 1 else "v[%d:%d]" % (a, a + n - 1)


def sr(a, n=1):
    return "s%d" % a if n == 1 else "s[%d:%d]" % (a, a + n - 1)


S_X, S_W1, S_W3, S_W2, S_OUT, S_DBG, S_WS = 4, 8, 12, 16, 20, 24, 28
S_WAVE, S_MT, S_FT, S_ROT = 32, 33, 34, 35
S_WOFF = 36
S_XOFF = 44
S_WK = 52
S_T0, S_T1, S_T2, S_T3 = 53, 54, 55, 56
S_RT, S_NT = 57, 58
S_EX = 60
S_CNT = 62
S_PTR = 64
P_LAR, P_AIM, P_CR, P_CI, P_LDT, P_DSK = 66, 68, 70, 72, 74, 76
S_M = 92


def srd(g, d, p, nbytes):
    g("s_mov_b32 s%d, s%d" % (d, p))
    g("s_mov_b32 s%d, s%d" % (d + 1, p + 1))
    g("s_mov_b32 s%d, 0x%x" % (d + 2, nbytes))
    g("s_mov_b32 s%d, 0x00020000" % (d + 3))


def poll(g, vneed, vtmp, vaddr):
    lp = g.newlabel("POLL")
    done = g.newlabel("POLLD")
    g("s_mov_b32 s%d, 0" % S_CNT)
    g.label(lp)
    g("buffer_load_dword %s, %s, s[%d:%d], 0 offen sc1" % (vr(vtmp), vr(vaddr), S_DBG, S_DBG + 3))
    g("s_waitcnt vmcnt(0)")
    g("v_and_b32 %s, %s, %s" % (vr(vtmp), vr(vtmp), vr(vneed)))
    g("v_cmp_ne_u32 vcc, %s, %s" % (vr(vtmp), vr(vneed)))
    g("s_add_u32 s%d, s%d, 1" % (S_CNT, S_CNT))
    g("s_cbranch_vccz %s" % done)
    g("s_sleep 2")
    g("s_cmp_lt_u32 s%d, 0x8000" % S_CNT)
    g("s_cbranch_scc1 %s" % lp)
    g.label(done)
    g.vm = []


def publish(g, val, vtmp, vtmp2):
    sk = g.newlabel("PUB")
    g("s_cmp_lg_u32 s%d, 0" % S_WAVE)
    g("s_cbranch_scc1 %s" % sk)
    g("v_mov_b32 %s, %d" % (vr(vtmp), val))
    g("v_mov_b32 %s, s2" % vr(vtmp2))
    g("s_mov_b64 s[%d:%d], exec" % (S_EX, S_EX + 1))
    g("s_mov_b64 exec, 1")
    g("buffer_store_byte %s, %s, s[%d:%d], 0 offen sc1" % (vr(vtmp), vr(vtmp2), S_DBG, S_DBG + 3))
    g("s_mov_b64 exec, s[%d:%d]" % (S_EX, S_EX + 1))
    g.label(sk)


def rnd_bf16(g, d, s):
    g("v_cvt_pk_bf16_f32 %s, %s, %s" % (vr(d), vr(s), vr(s)))
    g("v_lshlrev_b32 %s, 16, %s" % (vr(d), vr(d)))


def cmul(g, d, a, b):
    g("v_pk_mul_f32 %s, %s, %s op_sel:[0,0] op_sel_hi:[0,1]" % (vr(d, 2), vr(a, 2), vr(b, 2)))
    g("v_pk_fma_f32 %s, %s, %s, %s op_sel:[1,1,0] op_sel_hi:[1,0,1] neg_lo:[0,1,0]" % (vr(d, 2), vr(a, 2), vr(b, 2), vr(d, 2)))


def gen(ts=False, code_kb=32):
    g = Gen(ts)
    g.VTS = 15
    V_TID, V_LANE, V_L4 = 0, 1, 2
    g("s_cmp_ge_u32 s2, 256")
    g("s_cbranch_scc1 L_END")
    g("s_load_dwordx16 s[64:79], s[0:1], 0")
    g("s_load_dwordx8 s[80:87], s[0:1], 64")
    g("s_load_dwordx4 s[88:91], s[0:1], 96")
    npieces = (code_kb + 7) // 8
    g("s_getpc_b64 s[%d:%d]" % (S_M, S_M + 1))
    g("s_lshr_b32 s%d, s2, 3" % S_T0)
    assert npieces == 4
    g("s_and_b32 s%d, s%d, 3" % (S_T0, S_T0))
    g("s_lshl_b32 s%d, s%d, 13" % (S_T0, S_T0))
    g("v_lshlrev_b32 v3, 4, v0")
    g("v_add_u32 v3, s%d, v3" % S_T0)
    g.vmem("global_load_dwordx4 v[252:255], v3, s[%d:%d]" % (S_M, S_M + 1), "code")
    g("v_and_b32 v1, 63, v0")
    g("v_lshrrev_b32 v3, 6, v0")
    g("v_lshlrev_b32 v2, 2, v1")
    g("v_readfirstlane_b32 s%d, v3" % S_WAVE)
    if ts:
        g("v_mov_b32 v%d, 0" % g.VTS)
    g("s_nop 3")
    g("s_lshl_b32 s%d, s%d, 10" % (S_WK, S_WAVE))
    g("s_and_b32 s%d, s2, 7" % S_T0)
    g("s_lshl_b32 s%d, s%d, 2" % (S_RT, S_T0))
    g("s_lshr_b32 s%d, s2, 3" % S_T1)
    g("s_and_b32 s%d, s%d, 3" % (S_T2, S_T1))
    g("s_add_u32 s%d, s%d, s%d" % (S_RT, S_RT, S_T2))
    g("s_lshr_b32 s%d, s2, 5" % S_NT)
    g("s_waitcnt lgkmcnt(0)")
    srd(g, S_X, 64, 2097152)
    srd(g, S_W1, 80, 1835008)
    srd(g, S_W3, 82, 1835008)
    srd(g, S_W2, 84, 1835008)
    srd(g, S_OUT, 86, 2097152)
    srd(g, S_DBG, 88, 256)
    srd(g, S_WS, 90, WS_SIZE)
    g.stamp(0)
    g("s_cmp_lt_u32 s2, 32")
    g("s_cbranch_scc1 L_AUX")
    vm_entry = list(g.vm)

    g("s_sub_u32 s%d, s%d, 4" % (S_T1, S_T1))
    g("s_and_b32 s%d, s%d, 3" % (S_T2, S_T1))
    g("s_lshr_b32 s%d, s%d, 2" % (S_T3, S_T1))
    g("s_and_b32 s%d, s%d, 3" % (S_MT, S_T0))
    g("s_lshl_b32 s%d, s%d, 2" % (S_MT, S_MT))
    g("s_add_u32 s%d, s%d, s%d" % (S_MT, S_MT, S_T2))
    g("s_lshr_b32 s%d, s%d, 2" % (S_FT, S_T0))
    g("s_mul_i32 s%d, s%d, 7" % (S_FT, S_FT))
    g("s_add_u32 s%d, s%d, s%d" % (S_FT, S_FT, S_T3))
    g("s_lshl_b32 s%d, s%d, 1" % (S_ROT, S_T2))
    g("s_add_u32 s%d, s%d, s%d" % (S_ROT, S_ROT, S_T3))
    g("s_lshl_b32 s%d, s%d, 8" % (S_T0, S_FT))
    g("s_lshl_b32 s%d, s%d, 17" % (S_T1, S_MT))
    for i in range(8):
        g("s_add_u32 s%d, s%d, %d" % (S_T2, S_ROT, i))
        g("s_and_b32 s%d, s%d, 7" % (S_T2, S_T2))
        g("s_mul_i32 s%d, s%d, %d" % (S_WOFF + i, S_T2, 64 * 3584))
        g("s_add_u32 s%d, s%d, s%d" % (S_WOFF + i, S_WOFF + i, S_T0))
        g("s_lshl_b32 s%d, s%d, 7" % (S_XOFF + i, S_T2))
        g("s_add_u32 s%d, s%d, s%d" % (S_XOFF + i, S_XOFF + i, S_T1))
    V_WD0, V_WD1, V_XD0, V_XD1 = 3, 4, 5, 6
    V_XA0, V_XA1, V_WA0, V_WA1, V_WA0H, V_WA1H = 7, 8, 9, 10, 11, 12
    VT, VT2 = 13, 14
    SETS = [16, 48]
    ACC = 80
    W2F = 144
    g("v_lshrrev_b32 v%d, 4, v1" % VT)
    g("s_lshr_b32 s%d, s%d, 1" % (S_T2, S_WAVE))
    g("s_and_b32 s%d, s%d, 1" % (S_T2, S_T2))
    g("s_lshl_b32 s%d, s%d, 2" % (S_T2, S_T2))
    g("v_or_b32 v%d, s%d, v%d" % (VT2, S_T2, VT))
    g("v_lshlrev_b32 v%d, 1, v%d" % (VT2, VT2))
    g("v_and_b32 v%d, 15, v1" % V_WD0)
    g("v_xor_b32 v%d, v%d, v%d" % (V_WD0, V_WD0, VT2))
    g("v_lshlrev_b32 v%d, 4, v%d" % (V_WD0, V_WD0))
    g("s_lshl_b32 s%d, s%d, 2" % (S_T2, S_WAVE))
    g("v_add_u32 v%d, s%d, v%d" % (VT, S_T2, VT))
    g("v_mul_u32_u24 v%d, 3584, v%d" % (VT, VT))
    g("v_add_u32 v%d, v%d, v%d" % (V_WD0, V_WD0, VT))
    g("v_add_u32 v%d, %d, v%d" % (V_WD1, 32 * 3584, V_WD0))
    g("v_lshrrev_b32 v%d, 4, v1" % VT)
    g("v_add_u32 v%d, s%d, v%d" % (VT, S_T2, VT))
    g("v_xor_b32 v%d, v%d, v1" % (VT, VT))
    g("v_and_b32 v%d, 7, v%d" % (VT, VT))
    g("v_lshrrev_b32 v%d, 3, v1" % VT2)
    g("s_lshl_b32 s%d, s%d, 3" % (S_T2, S_WAVE))
    g("v_add_u32 v%d, s%d, v%d" % (VT2, S_T2, VT2))
    g("v_lshlrev_b32 v%d, 10, v%d" % (VT2, VT2))
    g("v_lshl_add_u32 v%d, v%d, 4, v%d" % (V_XD0, VT, VT2))
    g("v_add_u32 v%d, 0x10000, v%d" % (V_XD1, V_XD0))

    XBASE, WBASE = 0, 49152

    def dma_w(it):
        slot = it % 6
        st, h = it >> 1, it & 1
        vd = V_WD1 if h else V_WD0
        g("s_add_u32 m0, s%d, %d" % (S_WK, WBASE + slot * 16384))
        g("s_nop 0")
        g.vmem("buffer_load_dwordx4 v%d, s[%d:%d], s%d offen lds" % (vd, S_W1, S_W1 + 3, S_WOFF + st), "W%d" % it)
        g("s_add_u32 m0, s%d, %d" % (S_WK, WBASE + slot * 16384 + 8192))
        g("s_nop 0")
        g.vmem("buffer_load_dwordx4 v%d, s[%d:%d], s%d offen lds" % (vd, S_W3, S_W3 + 3, S_WOFF + st), "W%d" % it)

    def dma_x(st, b):
        slot = st % 3
        g("s_add_u32 m0, s%d, %d" % (S_WK, XBASE + slot * 16384 + b * 8192))
        g("s_nop 0")
        g.vmem("buffer_load_dwordx4 v%d, s[%d:%d], s%d offen lds" % (V_XD1 if b else V_XD0, S_X, S_X + 3, S_XOFF + st), "X%d" % st)

    dma_x(0, 0); dma_x(0, 1); dma_w(0)
    dma_w(1); dma_x(1, 0)
    dma_x(1, 1); dma_w(2)
    dma_w(3); dma_x(2, 0)
    dma_x(2, 1); dma_w(4)
    dma_w(5)
    g("v_and_b32 v%d, 15, v1" % VT)
    g("v_lshrrev_b32 v%d, 4, v1" % VT2)
    g("v_lshrrev_b32 v%d, 1, v%d" % (V_XA0, VT))
    g("v_xor_b32 v%d, v%d, v%d" % (V_XA0, V_XA0, VT2))
    g("v_lshlrev_b32 v%d, 4, v%d" % (V_XA0, V_XA0))
    g("v_lshl_add_u32 v%d, v%d, 7, v%d" % (V_XA0, VT, V_XA0))
    g("s_lshr_b32 s%d, s%d, 2" % (S_T2, S_WAVE))
    g("s_lshl_b32 s%d, s%d, 13" % (S_T2, S_T2))
    g("v_add_u32 v%d, s%d, v%d" % (V_XA0, S_T2, V_XA0))
    g("v_xor_b32 v%d, 64, v%d" % (V_XA1, V_XA0))
    g("v_lshrrev_b32 v%d, 2, v%d" % (VT, VT))
    g("v_and_b32 v%d, 1, v%d" % (V_WA0, VT2))
    g("v_lshl_or_b32 v%d, v%d, 2, v%d" % (V_WA0, V_WA0, VT))
    g("s_and_b32 s%d, s%d, 3" % (S_T2, S_WAVE))
    g("s_lshl_b32 s%d, s%d, 1" % (S_T2, S_T2))
    g("v_xor_b32 v%d, s%d, v%d" % (V_WA0, S_T2, V_WA0))
    g("v_lshlrev_b32 v%d, 5, v%d" % (V_WA0, V_WA0))
    g("v_lshl_add_u32 v%d, v%d, 3, v%d" % (VT, VT2, VT))
    g("v_lshl_add_u32 v%d, v%d, 8, v%d" % (V_WA0, VT, V_WA0))
    g("v_and_b32 v%d, 3, v1" % VT)
    g("v_lshl_add_u32 v%d, v%d, 3, v%d" % (V_WA0, VT, V_WA0))
    g("v_add_u32 v%d, %d, v%d" % (V_WA0, WBASE, V_WA0))
    g("v_xor_b32 v%d, 32, v%d" % (V_WA1, V_WA0))
    g("v_add_u32 v%d, 0x10000, v%d" % (V_WA0H, V_WA0))
    g("v_add_u32 v%d, 0x10000, v%d" % (V_WA1H, V_WA1))

    def frag_reads(it):
        S = SETS[it & 1]
        r = []
        xs = (it >> 1) % 3
        va = V_XA1 if (it & 1) else V_XA0
        slot = it % 6
        hi = slot >= 4
        so = (slot - 4 if hi else slot) * 16384
        xr = ["ds_read_b128 %s, v%d offset:%d" % (vr(S + 4 * mi, 4), va, XBASE + xs * 16384 + mi * 2048) for mi in range(4)]
        wr = []
        for mat in range(2):
            for tt in range(2):
                a = [[V_WA0, V_WA1], [V_WA0H, V_WA1H]][hi][tt]
                d = S + 16 + 4 * (2 * mat + tt)
                wr.append("ds_read_b64_tr_b16 %s, v%d offset:%d" % (vr(d, 2), a, so + mat * 8192))
                wr.append("ds_read_b64_tr_b16 %s, v%d offset:%d" % (vr(d + 2, 2), a, so + mat * 8192 + 1024))
        return xr + wr

    def mfmas(it):
        S = SETS[it & 1]
        r = []
        for mi in range(4):
            for c in range(4):
                a = ACC + 16 * mi + 4 * c
                src = "0" if it == 0 else vr(a, 4)
                r.append("v_mfma_f32_16x16x32_bf16 %s, %s, %s, %s" % (vr(a, 4), vr(S + 16 + 4 * c, 4), vr(S + 4 * mi, 4), src))
        return r

    V_W2D = V_WD0
    g.wait_vm(["W0", "X0"])
    g("s_barrier")
    g.stamp(1)
    for r in frag_reads(0):
        g(r)
    for it in range(16):
        if it < 15:
            g.wait_vm(["W%d" % (it + 1), "X%d" % ((it + 1) >> 1)], "lgkmcnt(0)")
        else:
            g("s_waitcnt lgkmcnt(0)")
        g("s_barrier")
        if it + 6 < 16:
            dma_w(it + 6)
        if it % 2 == 1 and (it - 1) // 2 + 3 < 8:
            dma_x((it - 1) // 2 + 3, 0)
        if it % 2 == 0 and it >= 2 and (it - 2) // 2 + 3 < 8:
            dma_x((it - 2) // 2 + 3, 1)
        rd = frag_reads(it + 1) if it < 15 else []
        mf = mfmas(it)
        if it == 15:
            w2_addr(g, V_W2D, VT, VT2)
            w2_dma(g, V_W2D, 0, 4, 16384)
        for i, m in enumerate(mf):
            g(m)
            if i < len(rd):
                g(rd[i])
    g.stamp(2)
    VN = 16
    g("v_mov_b32 v%d, 0x01010101" % VN)
    g("v_cmp_gt_u32 vcc, 8, v1")
    g("s_nop 1")
    g("v_cndmask_b32 v%d, 0, v%d, vcc" % (VN, VN))
    poll(g, VN, VN + 1, V_L4)
    g.stamp(3)
    ST = 20
    CSR = 36
    g("v_and_b32 v%d, 15, v1" % VT)
    g("v_lshlrev_b32 v%d, 4, v%d" % (VT, VT))
    g("s_lshr_b32 s%d, s%d, 2" % (S_T2, S_WAVE))
    g("s_lshl_b32 s%d, s%d, 10" % (S_T2, S_T2))
    g("s_lshl_b32 s%d, s%d, 11" % (S_T3, S_MT))
    g("s_add_u32 s%d, s%d, s%d" % (S_T2, S_T2, S_T3))
    g("s_add_u32 s%d, s%d, %d" % (S_T2, S_T2, WS_STATS))
    for mi in range(4):
        g.vmem("buffer_load_dwordx4 %s, v%d, s[%d:%d], s%d offen offset:%d sc1" % (vr(ST + 4 * mi, 4), VT, S_WS, S_WS + 3, S_T2, mi * 256), "st")
    g("v_lshrrev_b32 v%d, 4, v1" % VT2)
    g("v_lshlrev_b32 v%d, 4, v%d" % (VT2, VT2))
    g("s_and_b32 s%d, s%d, 3" % (S_T2, S_WAVE))
    g("s_lshl_b32 s%d, s%d, 7" % (S_T2, S_T2))
    g("s_lshl_b32 s%d, s%d, 9" % (S_T3, S_FT))
    g("s_add_u32 s%d, s%d, s%d" % (S_T2, S_T2, S_T3))
    g("s_add_u32 s%d, s%d, %d" % (S_T2, S_T2, WS_CS))
    g("s_add_u32 s%d, s%d, %d" % (S_T3, S_T2, 7168))
    for mat in range(2):
        for tt in range(2):
            g.vmem("buffer_load_dwordx4 %s, v%d, s[%d:%d], s%d offen offset:%d sc1" % (vr(CSR + 4 * (2 * mat + tt), 4), VT2, S_WS, S_WS + 3, S_T3 if mat else S_T2, tt * 64), "st")
    g("s_lshr_b32 s%d, s%d, 2" % (S_T2, S_WAVE))
    g("s_lshl_b32 s%d, s%d, 2" % (S_T2, S_T2))
    g("s_lshl_b32 s%d, s%d, 3" % (S_T3, S_MT))
    g("s_add_u32 s%d, s%d, s%d" % (S_T2, S_T2, S_T3))
    g("s_mul_i32 s%d, s%d, 56" % (S_T2, S_T2))
    g("s_lshl_b32 s%d, s%d, 2" % (S_T3, S_FT))
    g("s_add_u32 s%d, s%d, s%d" % (S_T2, S_T2, S_T3))
    g("s_and_b32 s%d, s%d, 3" % (S_T3, S_WAVE))
    g("s_add_u32 s%d, s%d, s%d" % (S_T2, S_T2, S_T3))
    g("s_lshl_b32 s%d, s%d, 10" % (S_T2, S_T2))
    g("s_add_u32 s%d, s%d, %d" % (S_T2, S_T2, WS_H))
    g("v_lshlrev_b32 v%d, 4, v1" % VT)
    g.wait_vm("st")
    E = 52
    for mi in range(4):
        st = ST + 4 * mi
        HO = E + 16 + 4 * (mi & 1)
        for tt in range(2):
            ag = ACC + 16 * mi + 4 * tt
            au = ACC + 16 * mi + 4 * (2 + tt)
            c1 = CSR + 4 * tt
            c3 = CSR + 4 * (2 + tt)
            for r in range(4):
                g("v_fma_f32 v%d, -v%d, v%d, v%d" % (ag + r, st, c1 + r, ag + r))
            for r in range(4):
                g("v_mul_f32 v%d, v%d, v%d" % (E + r, st + 1, ag + r))
            for r in range(4):
                g("v_exp_f32 v%d, v%d" % (E + r, E + r))
            for r in range(4):
                g("v_fma_f32 v%d, -v%d, v%d, v%d" % (au + r, st, c3 + r, au + r))
            for r in range(4):
                g("v_fma_f32 v%d, v%d, v%d, v%d" % (E + r, E + r, st + 2, st + 2))
            for r in range(4):
                g("v_rcp_f32 v%d, v%d" % (E + r, E + r))
            for r in range(4):
                g("v_mul_f32 v%d, v%d, v%d" % (ag + r, ag + r, au + r))
            for r in range(4):
                g("v_mul_f32 v%d, v%d, v%d" % (ag + r, ag + r, E + r))
            g("v_cvt_pk_bf16_f32 v%d, v%d, v%d" % (HO + 2 * tt, ag, ag + 1))
            g("v_cvt_pk_bf16_f32 v%d, v%d, v%d" % (HO + 2 * tt + 1, ag + 2, ag + 3))
        g.vmem("buffer_store_dwordx4 %s, v%d, s[%d:%d], s%d offen sc1" % (vr(HO, 4), VT, S_WS, S_WS + 3, S_T2), "hst")
        if mi < 3:
            g("s_add_u32 s%d, s%d, %d" % (S_T2, S_T2, 56 * 1024))
    g.stamp(4)
    g("s_branch L_COMMON")
    vm_gemm_exit = list(g.vm)

    g.label("L_AUX")
    g.vm = list(vm_entry)
    aux(g)
    w2_addr(g, 3, 13, 14)
    w2_dma(g, 3, 0, 4, 16384)
    g.stamp(4)

    g.label("L_COMMON")
    common(g, W2F)
    g.label("L_END")
    g("s_endpgm")
    return g


def w2_addr(g, vd, vt, vt2):
    g("v_lshrrev_b32 v%d, 4, v1" % vt)
    g("v_lshlrev_b32 v%d, 1, v%d" % (vt, vt))
    g("v_xor_b32 v%d, v%d, v1" % (vt, vt))
    g("v_and_b32 v%d, 7, v%d" % (vt, vt))
    g("v_lshrrev_b32 v%d, 3, v1" % vt2)
    g("v_lshlrev_b32 v%d, 10, v%d" % (vt2, vt2))
    g("v_lshl_add_u32 v%d, v%d, 4, v%d" % (vd, vt, vt2))
    g("s_mul_i32 s%d, s%d, %d" % (S_M, S_WAVE, 224 * 1024))
    g("s_lshl_b32 s%d, s%d, 7" % (S_M + 1, S_NT))
    g("s_add_u32 s%d, s%d, s%d" % (S_M, S_M, S_M + 1))


def w2_dma(g, vd, k0, nk, wave_pitch):
    g("s_mul_i32 s%d, s%d, %d" % (S_M + 1, S_WAVE, wave_pitch))
    for j in range(nk):
        for q in range(4):
            g("s_add_u32 m0, s%d, %d" % (S_M + 1, j * 4096 + q * 1024))
            g("s_add_u32 s%d, s%d, %d" % (S_M + 2, S_M, ((k0 + j) * 32 + 8 * q) * 1024))
            g.vmem("buffer_load_dwordx4 v%d, s[%d:%d], s%d offen lds" % (vd, S_W2, S_W2 + 3, S_M + 2), "w2")


def w2_read(g, W2F, va, vt, vt2, k0, nk, wave_pitch):
    g("v_lshrrev_b32 v%d, 2, v1" % vt)
    g("v_lshrrev_b32 v%d, 3, v1" % vt2)
    g("v_and_b32 v%d, 3, v%d" % (vt2, vt2))
    g("v_lshlrev_b32 v%d, 5, v%d" % (vt2, vt2))
    g("v_lshl_add_u32 v%d, v%d, 7, v%d" % (vt2, vt, vt2))
    g("v_and_b32 v%d, 3, v1" % vt)
    g("v_lshl_add_u32 v%d, v%d, 3, v%d" % (vt2, vt, vt2))
    g("s_mul_i32 s%d, s%d, %d" % (S_M + 1, S_WAVE, wave_pitch))
    g("v_add_u32 v%d, s%d, v%d" % (va, S_M + 1, vt2))
    for c in range(1, 4):
        g("v_xor_b32 v%d, %d, v%d" % (va + c, 32 * c, va))
    for j in range(nk):
        for c in range(4):
            d = W2F + 16 * (k0 + j) + 4 * c
            g("ds_read_b64_tr_b16 %s, v%d offset:%d" % (vr(d, 2), va + c, j * 4096))
            g("ds_read_b64_tr_b16 %s, v%d offset:%d" % (vr(d + 2, 2), va + c, j * 4096 + 2048))


def reduce8(g, p, tmp):
    g("s_nop 1")
    for i in range(4):
        g("v_permlane32_swap_b32 v%d, v%d" % (p + i, p + i + 4))
    g("s_nop 1")
    for i in range(4):
        g("v_add_f32 v%d, v%d, v%d" % (p + i, p + i, p + i + 4))
    g("s_nop 1")
    for i in range(2):
        g("v_permlane16_swap_b32 v%d, v%d" % (p + i, p + i + 2))
    g("s_nop 1")
    for i in range(2):
        g("v_add_f32 v%d, v%d, v%d" % (p + i, p + i, p + i + 2))
    for rot in (8, 4, 2, 1):
        g("s_nop 1")
        for i in range(2):
            g("v_add_f32_dpp v%d, v%d, v%d row_ror:%d row_mask:0xf bank_mask:0xf" % (p + i, p + i, p + i, rot))


def aux(g):
    VT, VT2 = 13, 14
    XR = 16
    CW = 48
    PR = 112
    XF = 120
    RED = 184
    ONES = 192
    g("v_lshlrev_b32 v%d, 4, v1" % VT)
    g("s_lshl_b32 s%d, s2, 16" % S_T0)
    g("s_lshl_b32 s%d, s%d, 13" % (S_T1, S_WAVE))
    g("s_add_u32 s%d, s%d, s%d" % (S_T0, S_T0, S_T1))
    g("s_add_u32 s%d, s%d, 4096" % (S_T1, S_T0))
    for i in range(8):
        g.vmem("buffer_load_dwordx4 %s, v%d, s[%d:%d], s%d offen offset:%d" % (vr(XR + 4 * i, 4), VT, S_X, S_X + 3, S_T1 if i >= 4 else S_T0, (i & 3) * 1024), "x")
    g("s_lshl_b32 s%d, s2, 4" % S_T2)
    g("s_lshl_b32 s%d, s%d, 1" % (S_T3, S_WAVE))
    g("s_add_u32 s%d, s%d, s%d" % (S_T2, S_T2, S_T3))
    g("s_lshl_b32 s%d, s%d, 8" % (S_T3, S_T2))
    g("v_add_u32 v%d, s%d, v2" % (VT2, S_T3))
    for ch in range(2):
        for k, p in enumerate((P_LAR, P_AIM, P_CR, P_CI)):
            g.vmem("global_load_dword v%d, v%d, s[%d:%d] offset:%d" % (PR + 4 * ch + k, VT2, p, p + 1, ch * 256), "prm")
    g("s_lshl_b32 s%d, s%d, 1" % (S_T3, S_T2))
    g("s_load_dword s%d, s[%d:%d], s%d" % (S_M + 4, P_LDT, P_LDT + 1, S_T3))
    g("s_mov_b32 s%d, s%d" % (S_M + 5, S_T2))
    g("s_min_u32 s%d, s2, 27" % S_T2)
    g("s_lshl_b32 s%d, s%d, 7" % (S_T2, S_T2))
    g("s_mul_i32 s%d, s%d, %d" % (S_T3, S_WAVE, 64 * 3584))
    g("s_add_u32 s%d, s%d, s%d" % (S_T2, S_T2, S_T3))
    g("v_lshrrev_b32 v%d, 3, v1" % VT2)
    g("v_mul_u32_u24 v%d, 3584, v%d" % (VT2, VT2))
    g("v_and_b32 v%d, 7, v1" % VT)
    g("v_lshl_add_u32 v%d, v%d, 4, v%d" % (VT2, VT, VT2))
    for k in range(8):
        for mat in range(2):
            g.vmem("buffer_load_dwordx4 %s, v%d, s[%d:%d], s%d offen" % (vr(CW + 32 * mat + 4 * k, 4), VT2, (S_W1, S_W3)[mat], (S_W1, S_W3)[mat] + 3, S_T2), "cw")
        if k < 7:
            g("s_add_u32 s%d, s%d, %d" % (S_T2, S_T2, 8 * 3584))
    g("v_mov_b32 v%d, 0x3f803f80" % ONES)
    g.wait_vm("x")
    g.stamp(1)
    for i in range(8):
        g("v_dot2_f32_bf16 v%d, v%d, v%d, 0" % (RED + i, XR + 4 * i, ONES))
    for k in range(1, 4):
        for i in range(8):
            g("v_dot2_f32_bf16 v%d, v%d, v%d, v%d" % (RED + i, XR + 4 * i + k, ONES, RED + i))
    for i in range(8):
        for k in range(4):
            g("v_lshlrev_b32 v%d, 16, v%d" % (XF + 8 * i + 2 * k, XR + 4 * i + k))
            g("v_and_b32 v%d, 0xffff0000, v%d" % (XF + 8 * i + 2 * k + 1, XR + 4 * i + k))
    reduce8(g, RED, VT)
    MEAN = 194
    for i in range(2):
        g("v_mul_f32 v%d, 0x3b000000, v%d" % (MEAN + i, RED + i))
    g("s_nop 0")
    SM = 36
    for row in range(8):
        g("v_readlane_b32 s%d, v%d, %d" % (SM + row, MEAN + (row & 1), 16 * (row >> 1)))
    g("s_nop 1")
    for i in range(8):
        g("v_subrev_f32 v%d, s%d, v%d" % (XR + 0, SM + i, XF + 8 * i))
        g("v_mul_f32 v%d, v%d, v%d" % (RED + i, XR + 0, XR + 0))
        for k in range(1, 8):
            g("v_subrev_f32 v%d, s%d, v%d" % (XR + k, SM + i, XF + 8 * i + k))
            g("v_fmac_f32 v%d, v%d, v%d" % (RED + i, XR + k, XR + k))
    reduce8(g, RED, VT)
    SO = 196
    RI = 204
    for i in range(2):
        o = SO + 4 * i
        g("v_mul_f32 v%d, 0x3b000000, v%d" % (RED + i, RED + i))
        rnd_bf16(g, RED + i, RED + i)
        g("v_add_f32 v%d, 0x3727c5ac, v%d" % (RED + i, RED + i))
        rnd_bf16(g, RED + i, RED + i)
        g("v_sqrt_f32 v%d, v%d" % (RED + i, RED + i))
        g("s_nop 0")
        rnd_bf16(g, RED + i, RED + i)
        g("v_rcp_f32 v%d, v%d" % (RI + i, RED + i))
        rnd_bf16(g, o, MEAN + i)
        g("v_mul_f32 v%d, 0x%x, v%d" % (o + 1, NLOG2E, RI + i))
        g("v_mul_f32 v%d, v%d, v%d" % (o + 2, RED + i, RED + i))
        g("v_mov_b32 v%d, v%d" % (o + 3, RED + i))
    SR = 44
    g("s_nop 0")
    for row in range(8):
        g("v_readlane_b32 s%d, v%d, %d" % (SM + row, SO + 4 * (row & 1), 16 * (row >> 1)))
        g("v_readlane_b32 s%d, v%d, %d" % (SR + row, RI + (row & 1), 16 * (row >> 1)))
    g("v_lshrrev_b32 v%d, 4, v1" % VT)
    g("v_lshlrev_b32 v%d, 5, v%d" % (VT, VT))
    g("s_lshr_b32 s%d, s%d, 6" % (S_T0, S_T0))
    g("s_add_u32 s%d, s%d, %d" % (S_T0, S_T0, WS_STATS))
    g("s_mov_b32 s%d, 0x00010001" % S_EX)
    g("s_mov_b32 s%d, 0x00010001" % (S_EX + 1))
    g("s_mov_b64 exec, s[%d:%d]" % (S_EX, S_EX + 1))
    for i in range(2):
        g.vmem("buffer_store_dwordx4 %s, v%d, s[%d:%d], s%d offen offset:%d sc1" % (vr(SO + 4 * i, 4), VT, S_WS, S_WS + 3, S_T0, 16 * i), "s1")
    g("s_mov_b64 exec, -1")
    for i in range(8):
        for k in range(8):
            g("v_subrev_f32 v%d, s%d, v%d" % (XF + 8 * i + k, SM + i, XF + 8 * i + k))
        for k in range(4):
            g("v_cvt_pk_bf16_f32 v%d, v%d, v%d" % (XR + k, XF + 8 * i + 2 * k, XF + 8 * i + 2 * k + 1))
        for k in range(4):
            g("v_lshlrev_b32 v%d, 16, v%d" % (XF + 8 * i + 2 * k, XR + k))
            g("v_and_b32 v%d, 0xffff0000, v%d" % (XF + 8 * i + 2 * k + 1, XR + k))
        for k in range(8):
            g("v_mul_f32 v%d, s%d, v%d" % (XF + 8 * i + k, SR + i, XF + 8 * i + k))
    for c in range(8):
        for ip in range(4):
            g("v_cvt_pk_bf16_f32 v%d, v%d, v%d" % (XR + 4 * c + ip, XF + 16 * ip + c, XF + 16 * ip + 8 + c))
    g("v_and_b32 v%d, 7, v1" % VT)
    g("v_xor_b32 v%d, s%d, v%d" % (VT, S_WAVE, VT))
    g("v_lshlrev_b32 v%d, 4, v%d" % (VT, VT))
    g("v_lshl_add_u32 v%d, v1, 10, v%d" % (VT, VT))
    for c in range(8):
        g("ds_write_b128 v%d, %s offset:%d" % (VT, vr(XR + 4 * c, 4), c * 128))
    CA = XF
    SELL, SELH = 192, 193
    g("v_mov_b32 v%d, 0x00003f80" % SELL)
    g("v_mov_b32 v%d, 0x3f800000" % SELH)
    g.wait_vm("cw")
    for k in range(8):
        for mat in range(2):
            for d in range(4):
                s = CW + 32 * mat + 4 * k + d
                a = CA + 8 * mat + 2 * d
                g("v_dot2_f32_bf16 v%d, v%d, v%d, %s" % (a, s, SELL, "0" if k == 0 else vr(a)))
                g("v_dot2_f32_bf16 v%d, v%d, v%d, %s" % (a + 1, s, SELH, "0" if k == 0 else vr(a + 1)))
    g("s_nop 3")
    for u in range(8):
        g("v_permlane32_swap_b32 v%d, v%d" % (CA + u, CA + u + 8))
    g("s_nop 1")
    for u in range(8):
        g("v_add_f32 v%d, v%d, v%d" % (CA + u, CA + u, CA + u + 8))
    g("s_nop 1")
    for u in range(4):
        g("v_permlane16_swap_b32 v%d, v%d" % (CA + u, CA + u + 4))
    g("s_nop 1")
    for u in range(4):
        g("v_add_f32 v%d, v%d, v%d" % (CA + u, CA + u, CA + u + 4))
    g("s_nop 1")
    for u in range(4):
        g("v_add_f32_dpp v%d, v%d, v%d row_ror:8 row_mask:0xf bank_mask:0xf" % (CA + u, CA + u, CA + u))
    CSL = 65536
    g("v_lshrrev_b32 v%d, 5, v1" % VT)
    g("v_lshlrev_b32 v%d, 8, v%d" % (VT, VT))
    g("v_and_b32 v%d, 7, v1" % VT2)
    g("v_lshl_add_u32 v%d, v%d, 5, v%d" % (VT, VT2, VT))
    g("v_and_b32 v%d, 16, v1" % VT2)
    g("v_add_u32 v%d, v%d, v%d" % (VT, VT, VT2))
    g("s_lshl_b32 s%d, s%d, 9" % (S_T1, S_WAVE))
    g("s_add_u32 s%d, s%d, %d" % (S_T1, S_T1, CSL))
    g("v_add_u32 v%d, s%d, v%d" % (VT, S_T1, VT))
    g("ds_write_b128 v%d, %s" % (VT, vr(CA, 4)))
    g("s_waitcnt lgkmcnt(0)")
    g("s_barrier")
    g("v_lshlrev_b32 v%d, 4, v1" % VT)
    g("s_lshl_b32 s%d, s%d, 13" % (S_T1, S_WAVE))
    g("v_add_u32 v%d, s%d, v%d" % (VT, S_T1, VT))
    for k in range(8):
        g("ds_read_b128 %s, v%d offset:%d" % (vr(XR + 4 * k, 4), VT, k * 1024))
    g("v_lshrrev_b32 v%d, 3, v1" % VT2)
    g("v_lshlrev_b32 v%d, 12, v%d" % (VT2, VT2))
    g("v_and_b32 v%d, 7, v1" % VT)
    g("v_lshl_add_u32 v%d, v%d, 4, v%d" % (VT2, VT, VT2))
    g("s_lshl_b32 s%d, s%d, 18" % (S_T1, S_WAVE))
    g("s_lshl_b32 s%d, s2, 7" % S_T2)
    g("s_add_u32 s%d, s%d, s%d" % (S_T1, S_T1, S_T2))
    for k in range(8):
        g("v_xor_b32 v%d, %d, v%d" % (RED + k, 16 * k, VT2))
    for k in range(8):
        g("s_waitcnt lgkmcnt(%d)" % (7 - k))
        g.vmem("buffer_store_dwordx4 %s, v%d, s[%d:%d], s%d offen sc1" % (vr(XR + 4 * k, 4), RED + k, S_WS, S_WS + 3, S_T1), "s1")
        if k < 7:
            g("s_add_u32 s%d, s%d, %d" % (S_T1, S_T1, 8 * 4096))
    sk = g.newlabel("CSF")
    g("s_cmp_lg_u32 s%d, 7" % S_WAVE)
    g("s_cbranch_scc1 %s" % sk)
    g("s_cmp_ge_u32 s2, 28")
    g("s_cbranch_scc1 %s" % sk)
    g("v_lshlrev_b32 v%d, 4, v1" % VT)
    g("v_and_b32 v%d, 0x1ff, v%d" % (VT, VT))
    g("v_add_u32 v%d, %d, v%d" % (VT, CSL, VT))
    for w in range(8):
        g("ds_read_b128 %s, v%d offset:%d" % (vr(CW + 4 * w, 4), VT, w * 512))
    g("s_waitcnt lgkmcnt(0)")
    for w in range(1, 8):
        for r in range(4):
            g("v_add_f32 v%d, v%d, v%d" % (CW + r, CW + r, CW + 4 * w + r))
    g("v_lshrrev_b32 v%d, 4, v1" % VT2)
    g("v_mul_u32_u24 v%d, 7168, v%d" % (VT2, VT2))
    g("v_and_b32 v%d, 15, v1" % VT)
    g("v_lshl_add_u32 v%d, v%d, 4, v%d" % (VT2, VT, VT2))
    g("s_lshl_b32 s%d, s2, 8" % S_T1)
    g("s_add_u32 s%d, s%d, %d" % (S_T1, S_T1, WS_CS))
    g("s_mov_b32 s%d, -1" % S_EX)
    g("s_mov_b32 s%d, 0" % (S_EX + 1))
    g("s_mov_b64 exec, s[%d:%d]" % (S_EX, S_EX + 1))
    g("buffer_store_dwordx4 %s, v%d, s[%d:%d], s%d offen sc1" % (vr(CW, 4), VT2, S_WS, S_WS + 3, S_T1))
    g("s_mov_b64 exec, -1")
    g.label(sk)
    g.wait_vm_all("lgkmcnt(0)")
    g("s_barrier")
    publish(g, 1, VT, VT2)
    g.stamp(2)

    TP = 272
    TSZ = 64 * TP
    KVL = 8 * TSZ
    VW, VRD = 3, 4
    OA = 120
    g("s_mul_i32 s%d, s%d, %d" % (S_T0, S_WAVE, TSZ))
    g("v_add_u32 v%d, s%d, v2" % (VW, S_T0))
    g("v_and_b32 v%d, 15, v1" % VT)
    g("v_mul_u32_u24 v%d, %d, v%d" % (VRD, TP, VT))
    g("v_lshrrev_b32 v%d, 4, v1" % VT2)
    g("v_lshl_add_u32 v%d, v%d, 4, v%d" % (VRD, VT2, VRD))
    g("v_add_u32 v%d, s%d, v%d" % (VRD, S_T0, VRD))
    B0, ST_ = 132, 133
    g("v_lshlrev_b32 v%d, 3, v%d" % (VT, VT))
    g("s_mul_i32 s%d, s%d, %d" % (S_T1, S_WAVE, KV_PITCH))
    g("s_add_u32 s%d, s%d, %d" % (S_T1, S_T1, KVL - 2 * KV_BIAS))
    g("s_mov_b32 s%d, %d" % (S_T2, KV_BIAS))
    g("s_mov_b32 s%d, %d" % (S_T3, KV_BIAS + KV_DUMP))
    g("v_mov_b32 v%d, s%d" % (136, S_T3))
    for tile in range(3):
        G1, G2 = 134, 135
        g("v_and_b32 v%d, 1, v%d" % (G1, VT2))
        g("v_lshrrev_b32 v%d, 1, v%d" % (G2, VT2))
        if tile == 0:
            g("v_lshlrev_b32 v%d, 2, v%d" % (B0, G1))
            g("v_lshl_add_u32 v%d, v%d, 7, v%d" % (B0, G2, B0))
            g("v_mov_b32 v%d, 1" % ST_)
        elif tile == 1:
            g("v_lshlrev_b32 v%d, 7, v%d" % (B0, G1))
            g("v_add_u32 v%d, 256, v%d" % (B0, B0))
            g("v_lshlrev_b32 v%d, 2, v%d" % (G1, G1))
            g("v_add_u32 v%d, 512, v%d" % (G1, G1))
            g("v_cmp_eq_u32 vcc, 1, v%d" % G2)
            g("v_mov_b32 v%d, 2" % ST_)
            g("v_mov_b32 v%d, 128" % G2)
            g("v_cndmask_b32 v%d, v%d, v%d, vcc" % (B0, B0, G1))
            g("v_cndmask_b32 v%d, v%d, v%d, vcc" % (ST_, ST_, G2))
        else:
            g("v_lshlrev_b32 v%d, 9, v%d" % (B0, VT2))
            g("v_add_u32 v%d, 1024, v%d" % (B0, B0))
            g("v_mov_b32 v%d, 128" % ST_)
        g("v_add_u32 v%d, v%d, v%d" % (B0, B0, VT))
        for r in range(4):
            o = OA + 4 * tile + r
            g("v_cvt_f32_u32 v%d, v%d" % (o, B0))
            g("v_lshrrev_b32 v%d, 16, v%d" % (o, o))
            g("v_max_u32 v%d, s%d, v%d" % (o, S_T2, o))
            if tile == 2:
                g("v_cmp_lt_u32 vcc, 2048, v%d" % B0)
                g("s_nop 1")
                g("v_cndmask_b32 v%d, v%d, v%d, vcc" % (o, o, 136))
            g("v_lshl_add_u32 v%d, v%d, 1, s%d" % (o, o, S_T1))
            if r < 3:
                g("v_add_u32 v%d, v%d, v%d" % (B0, B0, ST_))
    rows = {}
    for gg in range(4):
        for r in range(4):
            rows[(0, 4 * gg + r)] = 4 * (gg & 1) + 128 * (gg >> 1) + r
            rows[(1, 4 * gg + r)] = (256 + 128 * (gg & 1) + 2 * r) if gg < 2 else (512 + 4 * (gg & 1) + 128 * r)
            rows[(2, 4 * gg + r)] = 1024 + 512 * gg + 128 * r
    pos2row = {p: 16 * t + m for (t, m), p in rows.items() if p <= 2048}
    assert len(pos2row) == 41
    g("s_waitcnt lgkmcnt(0)")
    DACC = 140
    g("s_mov_b32 s%d, 0" % S_CNT)
    g.label("L_KTASK")
    Q = 16
    LAR, AIM, CR, CI = Q, Q + 1, Q + 2, Q + 3
    g("s_cmp_ge_u32 s%d, 2" % S_CNT)
    g("s_cselect_b64 vcc, -1, 0")
    for k in range(4):
        g("v_cndmask_b32 v%d, v%d, v%d, vcc" % (Q + k, PR + k, PR + 4 + k))
    g("s_and_b32 s%d, s%d, 1" % (S_T0, S_CNT))
    g("s_lshl_b32 s%d, s%d, 4" % (S_T0, S_T0))
    g("s_sub_u32 s%d, 16, s%d" % (S_T0, S_T0))
    for k in range(4):
        g("v_lshlrev_b32 v%d, s%d, v%d" % (Q + k, S_T0, Q + k))
        g("v_and_b32 v%d, 0xffff0000, v%d" % (Q + k, Q + k))
    g("s_lshr_b32 s%d, s%d, 1" % (S_T0, S_CNT))
    g("s_lshl_b32 s%d, s%d, 4" % (S_T0, S_T0))
    g("s_sub_u32 s%d, 16, s%d" % (S_T0, S_T0))
    g("s_lshl_b32 s%d, s%d, s%d" % (S_T0, S_M + 4, S_T0))
    g("s_and_b32 s%d, s%d, 0xffff0000" % (S_T0, S_T0))
    DT, ER, TU = Q + 4, Q + 5, Q + 6
    g("v_mov_b32 v%d, 0x%x" % (DT, LOG2E))
    g("v_mul_f32 v%d, s%d, v%d" % (DT, S_T0, DT))
    g("v_exp_f32 v%d, v%d" % (DT, DT))
    g("v_mul_f32 v%d, 0x%x, v%d" % (ER, LOG2E, LAR))
    g("v_exp_f32 v%d, v%d" % (ER, ER))
    rnd_bf16(g, DT, DT)
    rnd_bf16(g, ER, ER)
    g("v_mul_f32 v%d, v%d, v%d" % (ER, ER, DT))
    g("v_mul_f32 v%d, 0x%x, v%d" % (ER, NLOG2E, ER))
    g("v_mul_f32 v%d, v%d, v%d" % (TU, AIM, DT))
    g("v_mul_f32 v%d, 0x%x, v%d" % (TU, INV2PI, TU))
    E = {}
    base = Q + 8
    def alloc(name):
        nonlocal base
        E[name] = base
        base += 2
        return E[name]
    TA, TB = Q + 0, Q + 1
    for p in (1, 8, 128):
        d = alloc(p)
        fp = {1: "1.0", 8: "0x41000000", 128: "0x43000000"}[p]
        g("v_mul_f32 v%d, %s, v%d" % (TA, fp, ER))
        g("v_mul_f32 v%d, %s, v%d" % (TB, fp, TU))
        g("v_exp_f32 v%d, v%d" % (TA, TA))
        g("v_fract_f32 v%d, v%d" % (TB, TB))
        g("v_cos_f32 v%d, v%d" % (d, TB))
        g("v_sin_f32 v%d, v%d" % (d + 1, TB))
        g("s_nop 0")
        g("v_mul_f32 v%d, v%d, v%d" % (d, d, TA))
        if p == 8:
            g("v_mul_f32 v%d, -v%d, v%d" % (d + 1, d + 1, TA))
        else:
            g("v_mul_f32 v%d, v%d, v%d" % (d + 1, d + 1, TA))
    PK = Q + 7
    PK2 = Q + 4
    def put(row, src, tmp):
        g("v_cvt_pk_bf16_f32 v%d, v%d, v%d" % (tmp, src, src + 1))
        g("ds_write_b32 v%d, v%d offset:%d" % (VW, tmp, row * TP))
    GA, GB = alloc("ga"), alloc("gb")
    g("v_add_f32 v%d, v%d, v%d" % (DT, DT, DT))
    g("v_mul_f32 v%d, v%d, v%d" % (GA, CR, DT))
    g("v_mul_f32 v%d, -v%d, v%d" % (GA + 1, CI, DT))
    for p in range(2, 8):
        alloc(p)
    for h in range(2, 17):
        alloc(128 * h)
    tmps = [base, base + 1, base + 2, base + 3]
    PA, PB = base + 4, base + 6
    assert PB + 2 <= 112, PB
    ops = []
    chainG = []
    cur, nxt = GA, GB
    for b in range(16):
        chainG.append(("put", 48 + b, cur))
        if b < 15:
            chainG.append(("mul", nxt, cur, E[8]))
            cur, nxt = nxt, cur
    chainL = []
    chainL.append(("put", pos2row[1], E[1]))
    for p in range(2, 8):
        chainL.append(("mul", E[p], E[p - 1], E[1]))
        chainL.append(("put", pos2row[p], E[p]))
    chainH = [("put", pos2row[128], E[128])]
    for h in range(2, 17):
        chainH.append(("mul", E[128 * h], E[128 * (h - 1)], E[128]))
        chainH.append(("put", pos2row[128 * h], E[128 * h]))
    prods = []
    k = 0
    for p in sorted(pos2row):
        lo, hi = p & 127, p & ~127
        if lo and hi:
            d = (PA, PB)[k & 1]
            k += 1
            prods.append(("mul", d, E[lo], E[hi]))
            prods.append(("put", pos2row[p], d))
    chains = [chainG, chainH, chainL]
    seq = []
    while any(chains):
        for c in chains:
            if c:
                seq.append(c.pop(0))
    seq += prods
    g("v_mov_b32 v%d, 0x00003f80" % tmps[0])
    g("ds_write_b32 v%d, v%d offset:%d" % (VW, tmps[0], pos2row[0] * TP))
    ti = 1
    for op in seq:
        if op[0] == "mul":
            cmul(g, op[1], op[2], op[3])
        else:
            put(op[1], op[2], tmps[ti % 4])
            ti += 1
    FB, FA = 16, 32
    g("s_waitcnt lgkmcnt(0)")
    for ks in range(4):
        g("ds_read_b128 %s, v%d offset:%d" % (vr(FB + 4 * ks, 4), VRD, 48 * TP + 64 * ks))
    for t in range(3):
        for ks in range(4):
            g("ds_read_b128 %s, v%d offset:%d" % (vr(FA + 16 * t + 4 * ks, 4), VRD, 16 * t * TP + 64 * ks))
    sk = g.newlabel("KZ")
    g("s_bitcmp1_b32 s%d, 0" % S_CNT)
    g("s_cbranch_scc1 %s" % sk)
    for r in range(12):
        g("v_mov_b32 v%d, 0" % (DACC + r))
    g.label(sk)
    g("s_waitcnt lgkmcnt(0)")
    for ks in range(4):
        for t in range(3):
            g("v_mfma_f32_16x16x32_bf16 %s, %s, %s, %s" % (vr(DACC + 4 * t, 4), vr(FA + 16 * t + 4 * ks, 4), vr(FB + 4 * ks, 4), vr(DACC + 4 * t, 4)))
    sk = g.newlabel("KO")
    g("s_bitcmp1_b32 s%d, 0" % S_CNT)
    g("s_cbranch_scc0 %s" % sk)
    g("s_nop 7")
    g("s_nop 1")
    for r in range(12):
        g("v_cvt_pk_bf16_f32 v%d, v%d, v%d" % (FB + r, DACC + r, DACC + r))
        g("ds_write_b16 v%d, v%d" % (OA + r, FB + r))
    g("v_lshlrev_b32 v%d, 4, v1" % VT)
    g("s_mul_i32 s%d, s%d, %d" % (S_T0, S_WAVE, KV_PITCH))
    g("s_add_u32 s%d, s%d, %d" % (S_T0, S_T0, KVL))
    g("v_add_u32 v%d, s%d, v%d" % (VT2, S_T0, VT))
    g("s_waitcnt lgkmcnt(0)")
    for k in range(3):
        g("ds_read_b128 %s, v%d offset:%d" % (vr(FA + 4 * k, 4), VT2, 1024 * k))
    g("s_lshr_b32 s%d, s%d, 1" % (S_T0, S_CNT))
    g("s_add_u32 s%d, s%d, s%d" % (S_T0, S_T0, S_M + 5))
    g("s_mul_i32 s%d, s%d, %d" % (S_T0, S_T0, KV_PITCH))
    g("s_add_u32 s%d, s%d, %d" % (S_T0, S_T0, WS_KV))
    g("s_waitcnt lgkmcnt(0)")
    for k in range(3):
        g("buffer_store_dwordx4 %s, v%d, s[%d:%d], s%d offen offset:%d sc1" % (vr(FA + 4 * k, 4), VT, S_WS, S_WS + 3, S_T0, 1024 * k))
    g("s_nop 1")
    g.label(sk)
    g("s_add_u32 s%d, s%d, 1" % (S_CNT, S_CNT))
    g("s_cmp_lt_u32 s%d, 4" % S_CNT)
    g("s_cbranch_scc1 L_KTASK")
    g.stamp(3)
    g("s_waitcnt lgkmcnt(0)")
    g("s_barrier")
    g.vm = ["kv"]


def common(g, W2F):
    VT, VT2 = 13, 14
    VA = 4
    V_W2D = 3
    g.wait_vm_all()
    w2_read(g, W2F, VA, VT, VT2, 0, 4, 16384)
    g("s_waitcnt lgkmcnt(0)")
    g("s_barrier")
    publish(g, 3, VT, VT2)
    g.stamp(5)
    w2_dma(g, V_W2D, 4, 3, 12288)
    VN = 16
    g("v_mov_b32 v%d, 0x03030303" % VN)
    g("v_cmp_gt_u32 vcc, 8, v1")
    g("s_nop 1")
    g("v_cndmask_b32 v%d, 0, v%d, vcc" % (VN, VN))
    poll(g, VN, VN + 1, 2)
    g.stamp(6)
    CB = 98304
    KVT = CB
    UB = CB + 6144
    KC = UB + 9216
    assert KC % 256 == 0
    LD = 20
    g("v_lshlrev_b32 v%d, 4, v0" % VT)
    g("s_mul_i32 s%d, s2, %d" % (S_T0, 2 * KV_PITCH))
    g("s_add_u32 s%d, s%d, %d" % (S_T0, S_T0, WS_KV))
    g("s_lshl_b32 s%d, s2, 13" % S_T1)
    g.vmem("buffer_load_dwordx4 %s, v%d, s[%d:%d], s%d offen sc1" % (vr(LD, 4), VT, S_WS, S_WS + 3, S_T0), "kv")
    g.vmem("buffer_load_dwordx4 %s, v%d, s[%d:%d], s%d offen sc1" % (vr(LD + 4, 4), VT, S_WS, S_WS + 3, S_T1), "u")
    g("s_lshl_b32 s%d, s2, 2" % S_T2)
    g("s_load_dword s%d, s[%d:%d], s%d" % (S_M + 4, P_DSK, P_DSK + 1, S_T2))
    IX = 32
    g("v_and_b32 v%d, 255, v0" % VT2)
    g("v_lshlrev_b32 v%d, 3, v%d" % (VT2, VT2))
    g("v_sub_u32 v%d, 2047, v%d" % (VT2, VT2))
    g("v_cvt_f32_i32 v%d, v%d" % (VT2, VT2))
    g("s_lshr_b32 s%d, s%d, 2" % (S_T2, S_WAVE))
    g("s_mul_i32 s%d, s%d, %d" % (S_T3, S_T2, KV_PITCH))
    g("s_add_u32 s%d, s%d, %d" % (S_T3, S_T3, KVT - 2 * KV_BIAS))
    g("v_mov_b32 v%d, %d" % (44, KV_BIAS))
    g("v_mov_b32 v%d, %d" % (45, KV_BIAS + KV_ZERO))
    for k in range(0, 12, 2):
        g("v_subrev_f32 v%d, %s, v%d" % (46, fimm(k), VT2))
        g("v_subrev_f32 v%d, %s, v%d" % (47, fimm(k + 1), VT2))
        g("v_cvt_pk_bf16_f32 v%d, v46, v47" % 46)
        g("v_and_b32 v%d, 0xffff, v46" % (IX + k))
        g("v_lshrrev_b32 v%d, 16, v46" % (IX + k + 1))
    for k in range(12):
        g("v_med3_u32 v%d, v%d, v44, v45" % (IX + k, IX + k))
        g("v_lshl_add_u32 v%d, v%d, 1, s%d" % (IX + k, IX + k, S_T3))
    g("v_add_u32 v%d, %d, v%d" % (46, KVT, VT))
    g("s_lshl_b32 s%d, s%d, 9" % (S_T3, S_T2))
    g("s_add_u32 s%d, s%d, %d" % (S_T3, S_T3, UB + 512))
    g("v_add_u32 v%d, s%d, v%d" % (47, S_T3, VT))
    for r in range(4):
        g("v_mov_b32 v%d, 0" % (48 + r))
    g.wait_vm(["kv", "u"])
    g("ds_write_b128 v47, %s" % vr(LD + 4, 4))
    sk = g.newlabel("KVW")
    g("s_cmp_ge_u32 s%d, 6" % S_WAVE)
    g("s_cbranch_scc1 %s" % sk)
    g("ds_write_b128 v46, %s" % vr(LD, 4))
    g.label(sk)
    sk7 = g.newlabel("ZP")
    g("s_cmp_lg_u32 s%d, 6" % S_WAVE)
    g("s_cbranch_scc1 %s" % sk7)
    g("v_lshrrev_b32 v46, 5, v1")
    g("v_mul_u32_u24 v46, 4096, v46")
    g("v_lshl_add_u32 v46, v1, 4, v46")
    g("ds_write_b128 v46, v[48:51] offset:0" if False else "v_add_u32 v46, %d, v46" % UB)
    g("ds_write_b128 v46, v[48:51]")
    g.label(sk7)
    sk8 = g.newlabel("ZP")
    g("s_cmp_lg_u32 s%d, 7" % S_WAVE)
    g("s_cbranch_scc1 %s" % sk8)
    g("v_lshrrev_b32 v46, 1, v1")
    g("v_and_b32 v46, 7, v46")
    g("v_mul_u32_u24 v46, 4160, v46")
    g("v_and_b32 v47, 1, v1")
    g("v_lshl_add_u32 v46, v47, 4, v46")
    g("v_add_u32 v46, %d, v46" % (KC + 4096))
    g("ds_write_b128 v46, v[48:51]")
    g.label(sk8)
    g("s_waitcnt lgkmcnt(0)")
    g("s_barrier")
    g("s_mul_i32 s%d, s%d, %d" % (S_T3, S_T2, KV_PITCH))
    g("s_add_u32 s%d, s%d, %d" % (S_T3, S_T3, KVT + 2 * KV_ZERO))
    g("v_mov_b32 v46, s%d" % S_T3)
    g("ds_write_b16 v46, v48")
    g("s_waitcnt lgkmcnt(0)")
    D = 52
    for k in range(11):
        g("ds_read_u16 v%d, v%d" % (D + k, IX + k))
    g("v_and_b32 v46, 255, v0")
    g("v_lshlrev_b32 v46, 4, v46")
    g("s_mul_i32 s%d, s%d, 16640" % (S_T3, S_T2))
    g("s_add_u32 s%d, s%d, %d" % (S_T3, S_T3, KC))
    g("v_add_u32 v46, s%d, v46" % S_T3)
    g("s_waitcnt lgkmcnt(0)")
    O = 64
    for sft in range(4):
        for k in range(4):
            g("v_lshl_or_b32 v%d, v%d, 16, v%d" % (O + 4 * sft + k, D + sft + 2 * k + 1, D + sft + 2 * k))
        g("ds_write_b128 v46, %s offset:%d" % (vr(O + 4 * sft, 4), 4160 * sft))
    VAA, VBB = 8, 9
    g("v_and_b32 v%d, 15, v1" % VT)
    g("v_lshrrev_b32 v%d, 4, v1" % VT2)
    g("v_lshl_add_u32 v46, v%d, 3, v%d" % (VT2, VT))
    g("s_and_b32 s%d, s%d, 3" % (S_T0, S_WAVE))
    g("s_lshl_b32 s%d, s%d, 5" % (S_T1, S_T0))
    g("s_sub_u32 s%d, %d, s%d" % (S_T1, 2047 + 8 - 32 * 60, S_T1))
    g("v_sub_u32 v46, s%d, v46" % S_T1)
    g("v_and_b32 v47, 3, v46")
    g("v_sub_u32 v46, v46, v47")
    g("v_lshlrev_b32 v46, 1, v46")
    g("v_mul_u32_u24 v47, 4160, v47")
    g("v_add3_u32 v%d, v46, v47, s%d" % (VAA, S_T3))
    g("v_lshlrev_b32 v46, 5, v%d" % VT)
    g("v_lshlrev_b32 v47, 4, v%d" % VT2)
    g("v_sub_u32 v46, v46, v47")
    g("s_mul_i32 s%d, s%d, 4608" % (S_T1, S_T2))
    g("s_lshl_b32 s%d, s%d, 6" % (S_T0, S_T0))
    g("s_sub_u32 s%d, s%d, s%d" % (S_T1, S_T1, S_T0))
    g("s_add_u32 s%d, s%d, %d" % (S_T1, S_T1, UB + 512 - 256 + 16))
    g("v_add_u32 v%d, s%d, v46" % (VBB, S_T1))
    g("s_waitcnt lgkmcnt(0)")
    g("s_barrier")
    g.stamp(7)
    BF, CACC, AF = 16, 80, 112
    NA = 4
    def rdA(ip):
        d = AF + 4 * (ip % NA)
        return ["ds_read_b64 %s, v%d offset:%d" % (vr(d, 2), VAA, 256 * (15 - ip)),
                "ds_read_b64 %s, v%d offset:%d" % (vr(d + 2, 2), VAA, 256 * (15 - ip) + 8)]
    lq = []
    def lds(s, tag):
        g(s); lq.append(tag)
    def lwait(tags):
        last = max([i for i, t in enumerate(lq) if t in tags], default=-1)
        if last < 0:
            return
        n = len(lq) - 1 - last
        g("s_waitcnt lgkmcnt(%d)" % min(n, 15))
        del lq[:last + 1]
        if n > 15:
            del lq[:len(lq) - 15]
    for s in rdA(0): lds(s, "A0")
    for tau in (0, 2, 4, 6, 8, 10, 12, 14):
        lds("ds_read_b128 %s, v%d offset:%d" % (vr(BF + 4 * (tau + 1), 4), VBB, 256 * (tau + 1)), "B%d" % tau)
    for s in rdA(1): lds(s, "A1")
    for tau in (-1, 1, 3, 5, 7, 9, 11, 13):
        lds("ds_read_b128 %s, v%d offset:%d" % (vr(BF + 4 * (tau + 1), 4), VBB, 256 * (tau + 1)), "B%d" % tau)
    for s in rdA(2): lds(s, "A2")
    for ip in range(16):
        first = True
        for j in range(ip >> 1, 8):
            tau = 2 * j - ip
            lwait(["A%d" % ip, "B%d" % tau])
            a = CACC + 4 * j
            g("v_mfma_f32_16x16x32_bf16 %s, %s, %s, %s" % (vr(a, 4), vr(AF + 4 * (ip % NA), 4), vr(BF + 4 * (tau + 1), 4), "0" if ip == 0 else vr(a, 4)))
            if first and ip + 3 < 16:
                for s in rdA(ip + 3): lds(s, "A%d" % (ip + 3))
            first = False
    g.stamp(8)
    g.wait_vm_all()
    w2_read(g, W2F, VA, VT, VT2, 4, 3, 12288)
    g("v_and_b32 v%d, 15, v1" % VT)
    g("v_lshrrev_b32 v%d, 4, v1" % VT2)
    g("v_lshl_add_u32 v%d, v%d, 2, v%d" % (VT, VT2, VT))
    g("v_and_b32 v%d, 15, v%d" % (VT, VT))
    g("v_lshl_add_u32 v%d, v%d, 4, v%d" % (VT, VT2, VT))
    g("v_lshlrev_b32 v%d, 4, v%d" % (VT, VT))
    g("s_mul_i32 s%d, s%d, 12288" % (S_T0, S_WAVE))
    g("v_add_u32 v%d, s%d, v%d" % (VT, S_T0, VT))
    g("s_waitcnt lgkmcnt(0)")
    for j in range(8):
        g("ds_write_b128 v%d, %s offset:%d" % (VT, vr(CACC + 4 * j, 4), j * 1024))
    g("v_lshrrev_b32 v%d, 2, v1" % VT)
    g("v_and_b32 v%d, 3, v1" % VT2)
    g("v_lshl_add_u32 v%d, v%d, 2, v%d" % (VT, VT2, VT))
    g("v_and_b32 v%d, 15, v%d" % (VT, VT))
    g("v_lshl_add_u32 v%d, v%d, 4, v%d" % (VT, VT2, VT))
    g("v_lshlrev_b32 v%d, 4, v%d" % (VT, VT))
    g("v_add_u32 v%d, s%d, v%d" % (VT, S_WK, VT))
    g("v_add_u32 v%d, %d, v%d" % (VT2, 4 * 12288, VT))
    g("v_lshlrev_b32 v10, 3, v0")
    g("v_add_u32 v10, %d, v10" % (UB + 512))
    g("s_waitcnt lgkmcnt(0)")
    g("s_barrier")
    P = 16
    for ch in range(2):
        for q in range(4):
            g("ds_read_b128 %s, v%d offset:%d" % (vr(P + 16 * ch + 4 * q, 4), (VT, VT2)[ch], q * 12288))
    U = 48
    g("ds_read_b64 %s, v10" % vr(U, 2))
    g("ds_read_b64 %s, v10 offset:4608" % vr(U + 2, 2))
    g("s_lshl_b32 s%d, s%d, 16" % (S_T0, S_M + 4))
    g("s_and_b32 s%d, s%d, 0xffff0000" % (S_T1, S_M + 4))
    g("s_waitcnt lgkmcnt(0)")
    UF = 52
    for ch in range(2):
        b = P + 16 * ch
        for r in range(4):
            g("v_add_f32 v%d, v%d, v%d" % (b + r, b + r, b + 4 + r))
            g("v_add_f32 v%d, v%d, v%d" % (b + 8 + r, b + 8 + r, b + 12 + r))
        for r in range(4):
            g("v_add_f32 v%d, v%d, v%d" % (b + r, b + r, b + 8 + r))
        for k in range(2):
            g("v_lshlrev_b32 v%d, 16, v%d" % (UF + 2 * k, U + 2 * ch + k))
            g("v_and_b32 v%d, 0xffff0000, v%d" % (UF + 2 * k + 1, U + 2 * ch + k))
        for r in range(4):
            g("v_mul_f32 v%d, s%d, v%d" % (UF + r, (S_T0, S_T1)[ch], UF + r))
        for r in range(4):
            g("v_cvt_pk_bf16_f32 v%d, v%d, v%d" % (b + 4 + r, b + r, UF + r))
        for r in range(4):
            g("v_lshlrev_b32 v%d, 16, v%d" % (b + r, b + 4 + r))
            g("v_and_b32 v%d, 0xffff0000, v%d" % (b + 4 + r, b + 4 + r))
        for r in range(4):
            g("v_add_f32 v%d, v%d, v%d" % (b + r, b + r, b + 4 + r))
    AOR = 56
    for r in range(4):
        g("v_cvt_pk_bf16_f32 v%d, v%d, v%d" % (AOR + r, P + r, P + 16 + r))
    g("v_lshlrev_b32 v%d, 4, v0" % VT)
    g("s_lshl_b32 s%d, s2, 13" % S_T0)
    g("s_add_u32 s%d, s%d, %d" % (S_T0, S_T0, WS_AO))
    g.vmem("buffer_store_dwordx4 %s, v%d, s[%d:%d], s%d offen sc1" % (vr(AOR, 4), VT, S_WS, S_WS + 3, S_T0), "ao")
    g.stamp(9)
    VN = 60
    g("s_lshr_b32 s%d, s%d, 1" % (S_T0, S_RT))
    g("s_lshr_b32 s%d, s%d, 2" % (S_T1, S_T0))
    g("s_lshl_b32 s%d, s%d, 3" % (S_T1, S_T1))
    g("s_lshl_b32 s%d, 2, s%d" % (S_T1, S_T1))
    g("s_and_b32 s%d, s%d, 3" % (S_T0, S_T0))
    g("v_lshrrev_b32 v%d, 1, v1" % VT2)
    g("v_and_b32 v%d, 3, v%d" % (VT2, VT2))
    g("v_cmp_eq_u32 vcc, s%d, v%d" % (S_T0, VT2))
    g("v_cmp_le_u32 s[%d:%d], 8, v1" % (S_EX, S_EX + 1))
    g("s_and_b64 vcc, vcc, s[%d:%d]" % (S_EX, S_EX + 1))
    g("v_mov_b32 v%d, s%d" % (VN, S_T1))
    g("v_cndmask_b32 v%d, 0, v%d, vcc" % (VN, VN))
    poll(g, VN, VN + 1, 2)
    g("s_barrier")
    publish(g, 7, VT2, VN)
    g.stamp(10)
    HF = 16
    g("v_lshlrev_b32 v%d, 4, v1" % VT)
    g("s_mul_i32 s%d, s%d, %d" % (S_T0, S_RT, 4 * 56))
    g("s_mul_i32 s%d, s%d, 7" % (S_T1, S_WAVE))
    g("s_add_u32 s%d, s%d, s%d" % (S_T0, S_T0, S_T1))
    g("s_lshl_b32 s%d, s%d, 10" % (S_T0, S_T0))
    g("s_add_u32 s%d, s%d, %d" % (S_T0, S_T0, WS_H))
    for mi in range(4):
        for j in range(7):
            if j == 0:
                g("s_add_u32 s%d, s%d, %d" % (S_T1, S_T0, mi * 56 * 1024))
            if j == 4:
                g("s_add_u32 s%d, s%d, %d" % (S_T1, S_T0, mi * 56 * 1024 + 4096))
            g.vmem("buffer_load_dwordx4 %s, v%d, s[%d:%d], s%d offen offset:%d sc1" % (vr(HF + 28 * mi + 4 * j, 4), VT, S_WS, S_WS + 3, S_T1, (j & 3) * 1024), "h%d_%d" % (mi, j))
    XT = 8
    g("v_lshrrev_b32 v%d, 3, v1" % VT2)
    g("v_lshlrev_b32 v%d, 10, v%d" % (VT2, VT2))
    g("v_and_b32 v12, 7, v1")
    g("v_lshl_add_u32 v12, v12, 4, v%d" % VT2)
    g("s_lshl_b32 s%d, s%d, 16" % (S_M + 3, S_RT))
    g("s_lshl_b32 s%d, s%d, 13" % (S_T1, S_WAVE))
    g("s_add_u32 s%d, s%d, s%d" % (S_M + 3, S_M + 3, S_T1))
    g("s_lshl_b32 s%d, s%d, 7" % (S_T1, S_NT))
    g("s_add_u32 s%d, s%d, s%d" % (S_M + 3, S_M + 3, S_T1))
    g.vmem("buffer_load_dwordx4 %s, v12, s[%d:%d], s%d offen" % (vr(XT, 4), S_X, S_X + 3, S_M + 3), "xt")
    RA0, RA1 = 4, 5
    g("v_and_b32 v%d, 15, v1" % VT)
    g("v_lshrrev_b32 v%d, 4, v1" % VT2)
    g("v_lshrrev_b32 v6, 5, v1")
    g("v_lshl_add_u32 v6, v6, 2, v%d" % VT)
    g("v_add_u32 v7, 8, v6")
    g("v_and_b32 v6, 15, v6")
    g("v_and_b32 v7, 15, v7")
    g("v_lshl_add_u32 v6, v%d, 4, v6" % VT2)
    g("v_lshl_add_u32 v7, v%d, 4, v7" % VT2)
    g("s_lshl_b32 s%d, s%d, 14" % (S_T1, S_WAVE))
    g("v_lshl_add_u32 v%d, v6, 4, s%d" % (RA0, S_T1))
    g("v_lshl_add_u32 v%d, v7, 4, s%d" % (RA1, S_T1))
    accs = [128, 16, 44, 72]
    for mi in range(4):
        a0 = accs[mi]
        for j in range(7):
            g.wait_vm("h%d_%d" % (mi, j))
            for c in range(4):
                a = a0 + 4 * c
                g("v_mfma_f32_16x16x32_bf16 %s, %s, %s, %s" % (vr(a, 4), vr(W2F + 16 * j + 4 * c, 4), vr(HF + 28 * mi + 4 * j, 4), "0" if j == 0 else vr(a, 4)))
            if j == 2 and mi > 0:
                pa = accs[mi - 1]
                for c in range(4):
                    g("ds_write_b128 v%d, %s offset:%d" % ((RA0, RA1)[c & 1], vr(pa + 4 * c, 4), ((mi - 1) * 4 + c) * 1024))
    g.stamp(11)
    VN = 100
    g("v_lshrrev_b32 v%d, 3, v1" % VT2)
    g("v_cmp_eq_u32 vcc, s%d, v%d" % (S_NT, VT2))
    g("v_mov_b32 v%d, 0x04040404" % VN)
    g("s_nop 0")
    g("v_cndmask_b32 v%d, 0, v%d, vcc" % (VN, VN))
    g("s_nop 3")
    for c in range(4):
        g("ds_write_b128 v%d, %s offset:%d" % ((RA0, RA1)[c & 1], vr(accs[3] + 4 * c, 4), (3 * 4 + c) * 1024))
    poll(g, VN, VN + 1, 2)
    g("v_lshrrev_b32 v%d, 4, v0" % VT)
    g("v_and_b32 v%d, 15, v0" % VT2)
    g("v_lshlrev_b32 v102, 13, v%d" % VT)
    g("v_lshl_add_u32 v102, v%d, 4, v102" % VT2)
    g("s_lshl_b32 s%d, s%d, 18" % (S_T0, S_NT))
    g("s_lshl_b32 s%d, s%d, 8" % (S_T1, S_RT))
    g("s_add_u32 s%d, s%d, s%d" % (S_T0, S_T0, S_T1))
    g("s_add_u32 s%d, s%d, %d" % (S_T0, S_T0, WS_AO))
    g.vmem("buffer_load_dwordx4 v[104:107], v102, s[%d:%d], s%d offen sc1" % (S_WS, S_WS + 3, S_T0), "aot")
    AOL = 131072
    g("v_mul_u32_u24 v102, 272, v%d" % VT)
    g("v_lshl_add_u32 v102, v%d, 4, v102" % VT2)
    g("v_add_u32 v102, %d, v102" % AOL)
    g("v_lshrrev_b32 v%d, 3, v1" % VT)
    g("s_and_b32 s%d, s%d, 1" % (S_T0, S_WAVE))
    g("s_lshl_b32 s%d, s%d, 3" % (S_T0, S_T0))
    g("v_add_u32 v%d, s%d, v%d" % (VT, S_T0, VT))
    g("v_and_b32 v%d, 3, v1" % VT2)
    g("v_lshl_add_u32 v6, v%d, 2, v%d" % (VT2, VT))
    g("v_and_b32 v6, 15, v6")
    g("v_and_b32 v%d, 1, v1" % VT2)
    g("v_lshl_add_u32 v6, v%d, 5, v6" % VT2)
    g("v_lshlrev_b32 v6, 4, v6")
    g("v_bfe_u32 v%d, v1, 1, 2" % VT2)
    g("v_lshl_add_u32 v6, v%d, 10, v6" % VT2)
    g("s_lshr_b32 s%d, s%d, 1" % (S_T0, S_WAVE))
    g("s_lshl_b32 s%d, s%d, 12" % (S_T0, S_T0))
    g("v_add_u32 v6, s%d, v6" % S_T0)
    g("v_add_u32 v7, 0x10000, v6")
    g("v_and_b32 v%d, 7, v1" % VT2)
    g("v_mul_u32_u24 v103, 1088, v%d" % VT2)
    g("v_lshrrev_b32 v%d, 3, v1" % VT2)
    g("v_lshl_add_u32 v103, v%d, 2, v103" % VT2)
    g("s_lshl_b32 s%d, s%d, 5" % (S_T0, S_WAVE))
    g("s_add_u32 s%d, s%d, %d" % (S_T0, S_T0, AOL))
    g("v_add_u32 v103, s%d, v103" % S_T0)
    g.wait_vm("aot")
    g("ds_write_b128 v102, v[104:107]")
    g("s_waitcnt lgkmcnt(0)")
    g("s_barrier")
    g.stamp(12)
    R = 16
    for w in range(8):
        for hh in range(2):
            g("ds_read_b128 %s, v%d offset:%d" % (vr(R + 8 * w + 4 * hh, 4), 7 if w >= 4 else 6, (w & 3) * 16384 + hh * 256))
    for j in range(4):
        g("ds_read_b32 v%d, v103 offset:%d" % (104 + j, 272 * j))
    g("s_waitcnt lgkmcnt(0)")
    for step in (32, 16, 8):
        for b in range(0, step, 8):
            for r in range(8):
                g("v_add_f32 v%d, v%d, v%d" % (R + b + r, R + b + r, R + b + step + r))
    T = 32
    for k in range(4):
        g("v_lshlrev_b32 v%d, 16, v%d" % (T + 2 * k, XT + k))
        g("v_and_b32 v%d, 0xffff0000, v%d" % (T + 2 * k + 1, XT + k))
        g("v_lshlrev_b32 v%d, 16, v%d" % (T + 8 + 2 * k, 104 + k))
        g("v_and_b32 v%d, 0xffff0000, v%d" % (T + 8 + 2 * k + 1, 104 + k))
    for r in range(8):
        g("v_add_f32 v%d, v%d, v%d" % (T + r, T + r, T + 8 + r))
    for r in range(8):
        g("v_cvt_pk_bf16_f32 v%d, v%d, v%d" % (T + 8 + r, T + r, R + r))
    for r in range(8):
        g("v_lshlrev_b32 v%d, 16, v%d" % (T + r, T + 8 + r))
        g("v_and_b32 v%d, 0xffff0000, v%d" % (T + 8 + r, T + 8 + r))
    for r in range(8):
        g("v_add_f32 v%d, v%d, v%d" % (T + r, T + r, T + 8 + r))
    for k in range(4):
        g("v_cvt_pk_bf16_f32 v%d, v%d, v%d" % (R + k, T + 2 * k, T + 2 * k + 1))
    g("buffer_store_dwordx4 %s, v12, s[%d:%d], s%d offen" % (vr(R, 4), S_OUT, S_OUT + 3, S_M + 3))
    if g.ts:
        g.stamp(13)
        g("s_memrealtime s[98:99]")
        g("s_waitcnt lgkmcnt(0)")
        g("v_writelane_b32 v%d, s98, 14" % g.VTS)
        g("s_lshl_b32 s%d, s2, 11" % S_T0)
        g("s_lshl_b32 s%d, s%d, 8" % (S_T1, S_WAVE))
        g("s_add_u32 s%d, s%d, s%d" % (S_T0, S_T0, S_T1))
        g("s_add_u32 s%d, s%d, %d" % (S_T0, S_T0, WS_TS))
        g("buffer_store_dword v%d, v2, s[%d:%d], s%d offen" % (g.VTS, S_WS, S_WS + 3, S_T0))


def fimm(k):
    import struct
    if k == 0:
        return "0"
    if k in (1, 2, 4):
        return "%d.0" % k
    return "0x%08x" % struct.unpack("<I", struct.pack("<f", float(k)))[0]


HEADER = open("parallel_sum__ssm_conv_s4d__glu_gated_swiglu__prompt.s.ref").read().split("; Override launch")[0]


def emit(ts=False):
    g = gen(ts)
    body = "\n".join(g.L)
    return HEADER + """; @launch grid=(256,1,1) block=(512,1,1) lds=163840
.amdgcn_target "amdgcn-amd-amdhsa--gfx950"
.text
.globl %s
.p2align 8
.type %s,@function
%s:
%s
.fill 3072, 4, 0xBF800000
.section .rodata,"a"
.p2align 6
.amdhsa_kernel %s
  .amdhsa_next_free_vgpr 256
  .amdhsa_next_free_sgpr 102
  .amdhsa_accum_offset 256
  .amdhsa_group_segment_fixed_size 0
  .amdhsa_kernarg_size 112
  .amdhsa_user_sgpr_count 2
  .amdhsa_user_sgpr_kernarg_segment_ptr 1
  .amdhsa_system_sgpr_workgroup_id_x 1
.end_amdhsa_kernel
""" % (KNAME, KNAME, KNAME, body, KNAME)


if __name__ == "__main__":
    ts = "--ts" in sys.argv
    out = [a for a in sys.argv[1:] if not a.startswith("--")]
    path = out[0] if out else "k.s"
    open(path, "w").write(emit(ts))
    print("wrote", path)
```

```python
import sys, struct

KNAME = "parallel_sum__ssm_conv_s4d__glu_gated_swiglu__prompt_kernel"

WS_XNT = 0
XP = 16384 + 128
WS_STATS = 3 << 20
WS_CS = WS_STATS + 32768
WS_FLG = WS_STATS + 65536
FP = 384
WS_H = 4 << 20
WS_AO = 12 << 20
AOP = 8192 + 128
WS_TS = 15 << 20
WS_SIZE = 16 << 20

KV_PITCH = 3072
KV_BIAS = 0x3F7F
KV_ZERO = 0x4500 - KV_BIAS + 1
KV_DUMP = KV_ZERO + 1

LOG2E = 0x3FB8AA3B
NLOG2E = 0xBFB8AA3B
INV2PI = 0x3E22F983

XBASE, WBASE = 0, 49152
KC = 114688
UB = KC + 33280
KVT = 32768
TP = 272
TUNIT = 57 * TP
W2P = 14336
AOL = 131072

OPT = dict(auxpf=32)


class Gen:
    def __init__(self, ts=False):
        self.L = []
        self.vm = []
        self.ts = ts
        self.lbl = 0

    def __call__(self, s):
        self.L.append("    " + s)

    def label(self, l):
        self.L.append(l + ":")

    def newlabel(self, p="L"):
        self.lbl += 1
        return "%s_%d" % (p, self.lbl)

    def vmem(self, s, tag):
        self(s)
        self.vm.append(tag)

    def wait_vm(self, tags, extra=""):
        if isinstance(tags, str):
            tags = [tags]
        last = -1
        for i, t in enumerate(self.vm):
            if t in tags:
                last = i
        if last < 0:
            if extra:
                self("s_waitcnt " + extra)
            return
        w0 = any(t.startswith("0:") for t in tags)
        n = len([t for t in self.vm[last + 1:] if w0 or not t.startswith("0:")])
        assert n <= 63, n
        self("s_waitcnt vmcnt(%d) %s" % (n, extra))
        if w0:
            self.vm = [t for i, t in enumerate(self.vm) if i > last or not t.startswith("0:")]
        else:
            self.vm = self.vm[last + 1:]

    def wait_vm_all(self, extra=""):
        self("s_waitcnt vmcnt(0) %s" % extra)
        self.vm = []

    def stamp(self, idx):
        if not self.ts:
            return
        self("s_memtime s[98:99]")
        self("s_waitcnt lgkmcnt(0)")
        self("v_writelane_b32 v%d, s98, %d" % (self.VTS, idx))


def vr(a, n=1):
    return "v%d" % a if n == 1 else "v[%d:%d]" % (a, a + n - 1)


def fimm(k):
    if k == 0:
        return "0"
    if k in (1, 2, 4):
        return "%d.0" % k
    return "0x%08x" % struct.unpack("<I", struct.pack("<f", float(k)))[0]


S_X, S_W1, S_W3, S_W2, S_OUT, S_DBG, S_WS = 4, 8, 12, 16, 20, 24, 28
S_WAVE, S_MT, S_FT, S_ROT = 32, 33, 34, 35
S_WOFF = 36
S_XOFF = 44
S_J = 44
S_WK = 52
S_T0, S_T1, S_T2, S_T3 = 53, 54, 55, 56
S_RT, S_NT = 57, 58
S_LDT = 59
S_EX = 60
S_CNT = 62
S_DSK = 63
P_LAR, P_AIM, P_CR, P_CI, P_LDT, P_DSK = 66, 68, 70, 72, 74, 76
S_M = 92
VT, VT2 = 13, 14
W2F = 144
SRDW = lambda s: "s[%d:%d]" % (s, s + 3)


def srd(g, d, p, nbytes):
    g("s_mov_b32 s%d, s%d" % (d, p))
    g("s_mov_b32 s%d, s%d" % (d + 1, p + 1))
    g("s_mov_b32 s%d, 0x%x" % (d + 2, nbytes))
    g("s_mov_b32 s%d, 0x00020000" % (d + 3))


S_NONCE = 90
S_FA = 91


def w0(g):
    sk = g.newlabel("W0")
    g("s_cmp_lg_u32 s%d, 0" % S_WAVE)
    g("s_cbranch_scc1 %s" % sk)
    return sk


def nonce_write(g):
    sk = g.newlabel("NW")
    g("s_or_b32 s%d, s2, s%d" % (S_CNT, S_WAVE))
    g("s_cmp_lg_u32 s%d, 0" % S_CNT)
    g("s_cbranch_scc1 %s" % sk)
    g("s_memrealtime s[96:97]")
    g("s_waitcnt lgkmcnt(0)")
    g("s_or_b32 s%d, s96, 1" % S_CNT)
    g("v_mov_b32 v%d, s%d" % (VT2, S_CNT))
    g("s_mov_b64 exec, 1")
    g("buffer_store_dword v%d, v2, %s, 0 offen sc1" % (VT2, SRDW(S_DBG)))
    g("s_mov_b64 exec, -1")
    g.label(sk)


def nonce_issue(g, vf):
    sk = w0(g)
    g.vmem("buffer_load_dword v%d, off, %s, 0 sc1" % (vf, SRDW(S_DBG)), "0:nonce")
    g.label(sk)


def nonce_check(g, vf):
    sk = w0(g)
    lp = g.newlabel("NP")
    g.wait_vm("0:nonce")
    g("s_mov_b32 s%d, 0" % S_CNT)
    g.label(lp)
    g("v_readfirstlane_b32 s%d, v%d" % (S_NONCE, vf))
    g("s_add_u32 s%d, s%d, 1" % (S_CNT, S_CNT))
    g("s_nop 2")
    g("s_cmp_lg_u32 s%d, 0" % S_NONCE)
    g("s_cbranch_scc1 %s" % sk)
    g("s_cmp_ge_u32 s%d, 0x4000" % S_CNT)
    g("s_cbranch_scc1 %s" % sk)
    g("s_sleep 8")
    g("buffer_load_dword v%d, off, %s, 0 sc1" % (vf, SRDW(S_DBG)))
    g("s_waitcnt vmcnt(0)")
    g("s_branch %s" % lp)
    g.label(sk)


def flag_issue(g, vf, line, tag="0:flag"):
    sk = w0(g)
    sg, c = line
    if sg is None:
        g("s_mov_b32 s%d, %d" % (S_FA, WS_FLG + c * FP))
    else:
        g("s_mul_i32 s%d, s%d, %d" % (S_FA, sg, FP))
        g("s_add_u32 s%d, s%d, %d" % (S_FA, S_FA, WS_FLG + c * FP))
    g.vmem("buffer_load_dword v%d, v2, %s, s%d offen sc1" % (vf, SRDW(S_WS), S_FA), tag)
    g.label(sk)


def flag_check(g, vf, count, tag="0:flag", body=None):
    lp = g.newlabel("POLL")
    ok = g.newlabel("POLLK")
    done = w0(g)
    g.wait_vm(tag)
    g("s_mov_b32 s%d, 0" % S_CNT)
    g.label(lp)
    g("v_cmp_ne_u32 vcc, s%d, v%d" % (S_NONCE, vf))
    g("s_add_u32 s%d, s%d, 1" % (S_CNT, S_CNT))
    g("s_and_b32 s%d, vcc_lo, 0x%x" % (S_EX, (1 << count) - 1))
    g("s_cbranch_scc0 %s" % ok)
    g("s_cmp_ge_u32 s%d, 0x4000" % S_CNT)
    g("s_cbranch_scc1 %s" % ok)
    g("s_sleep 4")
    g("buffer_load_dword v%d, v2, %s, s%d offen sc1" % (vf, SRDW(S_WS), S_FA))
    g("s_waitcnt vmcnt(0)")
    g("s_branch %s" % lp)
    g.label(ok)
    if body:
        body()
    g.label(done)


def publish(g, addr_code, vtmp):
    sk = w0(g)
    addr_code(g)
    g("v_mov_b32 v%d, s%d" % (vtmp, S_NONCE))
    g("s_mov_b64 exec, 1")
    g("buffer_store_dword v%d, off, %s, s%d sc1" % (vtmp, SRDW(S_WS), S_CNT))
    g("s_mov_b64 exec, -1")
    g.label(sk)


def pub_aux(g):
    g("s_lshl_b32 s%d, s2, 2" % S_CNT)
    g("s_add_u32 s%d, s%d, %d" % (S_CNT, S_CNT, WS_FLG))


def pub_h(g):
    g("s_mul_i32 s%d, s%d, %d" % (S_CNT, S_MT, FP))
    g("s_lshl_b32 s%d, s%d, 2" % (S_EX, S_FT))
    g("s_add_u32 s%d, s%d, s%d" % (S_CNT, S_CNT, S_EX))
    g("s_add_u32 s%d, s%d, %d" % (S_CNT, S_CNT, WS_FLG + FP))


def pub_ao(g):
    g("s_mul_i32 s%d, s%d, %d" % (S_CNT, S_NT, FP))
    g("s_and_b32 s%d, s2, 31" % S_EX)
    g("s_lshl_b32 s%d, s%d, 2" % (S_EX, S_EX))
    g("s_add_u32 s%d, s%d, s%d" % (S_CNT, S_CNT, S_EX))
    g("s_add_u32 s%d, s%d, %d" % (S_CNT, S_CNT, WS_FLG + 17 * FP))


def rnd_bf16(g, d, s):
    g("v_cvt_pk_bf16_f32 v%d, v%d, v%d" % (d, s, s))
    g("v_lshlrev_b32 v%d, 16, v%d" % (d, d))


def cmul1(d, a, b):
    return "v_pk_mul_f32 %s, %s, %s op_sel:[0,0] op_sel_hi:[0,1]" % (vr(d, 2), vr(a, 2), vr(b, 2))


def cmul2(d, a, b):
    return "v_pk_fma_f32 %s, %s, %s, %s op_sel:[1,1,0] op_sel_hi:[1,0,1] neg_lo:[0,1,0]" % (vr(d, 2), vr(a, 2), vr(b, 2), vr(d, 2))


def aux_need(g, vn, bits):
    g("v_mov_b32 v%d, 0x%08x" % (vn, bits * 0x01010101))
    g("v_cmp_gt_u32 vcc, 8, v1")
    g("s_nop 1")
    g("v_cndmask_b32 v%d, 0, v%d, vcc" % (vn, vn))


ROWS = {}
for _g in range(4):
    for _r in range(4):
        ROWS[(0, 4 * _g + _r)] = 4 * (_g & 1) + 128 * (_g >> 1) + _r
        ROWS[(1, 4 * _g + _r)] = (256 + 128 * (_g & 1) + 2 * _r) if _g < 2 else (512 + 4 * (_g & 1) + 128 * _r)
        ROWS[(2, 4 * _g + _r)] = 1024 + 512 * _g + 128 * _r
POS2ROW = {p: 16 + 16 * t + m for (t, m), p in ROWS.items() if p <= 2048}
assert len(POS2ROW) == 41 and max(POS2ROW.values()) == 56

PRM = 240


def kprologue(g, nyounger):
    Q = 16
    LAR, AIM, CR, CI = Q, Q + 1, Q + 2, Q + 3
    DT, ER, TU = Q + 4, Q + 5, Q + 6
    TA, TB = Q, Q + 1
    VW = 3 + 0
    VWR = Q + 7
    g("s_lshr_b32 s%d, s%d, 1" % (S_T0, S_WAVE))
    g("s_mul_i32 s%d, s%d, %d" % (S_T1, S_T0, TUNIT))
    g("s_add_u32 s%d, s%d, %d" % (S_T1, S_T1, KC))
    g("s_cmp_eq_u32 s%d, 3" % S_T0)
    g("s_cselect_b32 s%d, %d, s%d" % (S_T1, WBASE + 3 * 16384, S_T1))
    g("v_add_u32 v%d, s%d, v2" % (VWR, S_T1))
    g("s_and_b32 s%d, s%d, 1" % (S_T0, S_T0))
    g("s_lshl_b32 s%d, s%d, 4" % (S_T0, S_T0))
    g("s_sub_u32 s%d, 16, s%d" % (S_T0, S_T0))
    g("s_lshr_b32 s%d, s%d, 2" % (S_T2, S_WAVE))
    g("s_lshl_b32 s%d, s%d, 4" % (S_T2, S_T2))
    g("s_sub_u32 s%d, 16, s%d" % (S_T2, S_T2))
    g("s_waitcnt vmcnt(%d) lgkmcnt(0)" % nyounger)
    g.stamp(20)
    g("s_lshl_b32 s%d, s%d, s%d" % (S_T2, S_LDT, S_T2))
    g("s_and_b32 s%d, s%d, 0xffff0000" % (S_T2, S_T2))
    for k in range(4):
        g("v_lshlrev_b32 v%d, s%d, v%d" % (Q + k, S_T0, PRM + k))
    for k in range(4):
        g("v_and_b32 v%d, 0xffff0000, v%d" % (Q + k, Q + k))
    g("v_mov_b32 v%d, 0x%x" % (DT, LOG2E))
    g("v_mul_f32 v%d, s%d, v%d" % (DT, S_T2, DT))
    g("v_mul_f32 v%d, 0x%x, v%d" % (ER, LOG2E, LAR))
    g("v_exp_f32 v%d, v%d" % (DT, DT))
    g("v_exp_f32 v%d, v%d" % (ER, ER))
    g("s_nop 0")
    rnd_bf16(g, DT, DT)
    rnd_bf16(g, ER, ER)
    g("v_mul_f32 v%d, v%d, v%d" % (ER, ER, DT))
    g("v_mul_f32 v%d, v%d, v%d" % (TU, AIM, DT))
    g("v_mul_f32 v%d, 0x%x, v%d" % (ER, NLOG2E, ER))
    g("v_mul_f32 v%d, 0x%x, v%d" % (TU, INV2PI, TU))

    def direct(d, p, conj=False, t0=TA, t1=TB):
        g("v_mul_f32 v%d, %s, v%d" % (t0, fimm(p), ER))
        g("v_mul_f32 v%d, %s, v%d" % (t1, fimm(p), TU))
        g("v_exp_f32 v%d, v%d" % (t0, t0))
        g("v_fract_f32 v%d, v%d" % (t1, t1))
        g("v_cos_f32 v%d, v%d" % (d, t1))
        g("v_sin_f32 v%d, v%d" % (d + 1, t1))
        g("s_nop 0")
        g("v_mul_f32 v%d, v%d, v%d" % (d, d, t0))
        g("v_mul_f32 v%d, %sv%d, v%d" % (d + 1, "-" if conj else "", d + 1, t0))

    def run(chains, tmp0):
        streams = []
        ti = [0]
        for ci, c in enumerate(chains):
            s = []
            for op in c:
                if op[0] == "mul":
                    s.append(cmul1(*op[1:]))
                    s.append(cmul2(*op[1:]))
                else:
                    t = tmp0 + 2 * ci + (ti[0] & 1)
                    ti[0] += 1
                    s.append("v_cvt_pk_bf16_f32 v%d, v%d, v%d" % (t, op[2], op[2] + 1))
                    s.append("ds_write_b32 v%d, v%d offset:%d" % (VWR, t, op[1] * TP))
            streams.append(s)
        while any(streams):
            for s in streams:
                if s:
                    g(s.pop(0))

    g("s_bitcmp1_b32 s%d, 0" % S_WAVE)
    g("s_cbranch_scc1 L_KB")
    E = {}
    nxt = [Q + 8]
    def al(n):
        E[n] = nxt[0]; nxt[0] += 2
        return E[n]
    GA, GB = al("ga"), al("gb")
    g("v_add_f32 v%d, v%d, v%d" % (DT, DT, DT))
    g("v_mul_f32 v%d, v%d, v%d" % (GA, CR, DT))
    g("v_mul_f32 v%d, -v%d, v%d" % (GA + 1, CI, DT))
    direct(al(8), 8, True); direct(al(1), 1); direct(al(128), 128)
    direct(al(64), 64, True)
    GC, GD = al("gc"), al("gd")
    for p in range(2, 8):
        al(p)
    PA, PB = al("pa"), al("pb")
    T0 = nxt[0]
    c1, cur, nx = [], GA, GB
    c2 = [("mul", GC, GA, E[64])]
    for b in range(8):
        c1.append(("put", b, cur))
        if b < 7:
            c1.append(("mul", nx, cur, E[8])); cur, nx = nx, cur
    cur, nx = GC, GD
    for b in range(8, 16):
        c2.append(("put", b, cur))
        if b < 15:
            c2.append(("mul", nx, cur, E[8])); cur, nx = nx, cur
    c3 = [("put", POS2ROW[1], E[1]), ("put", POS2ROW[128], E[128])]
    for p in range(2, 8):
        c3.append(("mul", E[p], E[p - 1], E[1]))
        c3.append(("put", POS2ROW[p], E[p]))
    c4 = []
    g("v_mov_b32 v%d, 0x00003f80" % TA)
    g("ds_write_b32 v%d, v%d offset:%d" % (VWR, TA, POS2ROW[0] * TP))
    run([c2, c1, c3], T0)
    ca, cb = [], []
    for p in range(1, 8):
        (ca if p & 1 else cb).extend([("mul", PA if p & 1 else PB, E[p], E[128]), ("put", POS2ROW[128 + p], PA if p & 1 else PB)])
    run([ca, cb], T0)
    g("s_branch L_KJ")
    g.label("L_KB")
    E = {}
    nxt = [Q + 8]
    direct(al(2), 2); direct(al(128), 128); direct(al(1024), 1024)
    al(4); al(6)
    for h in list(range(2, 8)) + list(range(9, 17)):
        al(128 * h)
    PA, PB = al("pa"), al("pb")
    T0 = nxt[0]
    assert T0 + 8 <= 128
    c1 = []
    for h in range(2, 8):
        c1.append(("mul", E[128 * h], E[128 * (h - 1)], E[128])); c1.append(("put", POS2ROW[128 * h], E[128 * h]))
    c2 = [("put", POS2ROW[1024], E[1024])]
    for h in range(9, 17):
        c2.append(("mul", E[128 * h], E[128 * (h - 1)], E[128])); c2.append(("put", POS2ROW[128 * h], E[128 * h]))
    c3 = [("mul", E[4], E[2], E[2]), ("mul", E[6], E[4], E[2])]
    run([c1, c2, c3], T0)
    prods = [p for p in sorted(POS2ROW) if p >= 256 and (p & 127)]
    ca, cb = [], []
    for i, p in enumerate(prods):
        d = (PA, PB)[i & 1]
        (ca, cb)[i & 1].extend([("mul", d, E[p & 127], E[p & ~127]), ("put", POS2ROW[p], d)])
    run([ca, cb], T0)
    g.label("L_KJ")
    g.stamp(21)
    VR0, VR1 = 16, 17
    OA = 18
    g("v_and_b32 v%d, 15, v1" % VT)
    g("v_lshrrev_b32 v%d, 4, v1" % VT2)
    g("v_mul_u32_u24 v%d, %d, v%d" % (VR0, TP, VT))
    g("v_lshl_add_u32 v%d, v%d, 4, v%d" % (VR0, VT2, VR0))
    g("s_lshr_b32 s%d, s%d, 2" % (S_T2, S_WAVE))
    g("s_cmp_eq_u32 s%d, 0" % S_T2)
    g("s_mov_b32 s%d, %d" % (S_T0, KC + 2 * TUNIT))
    g("s_cmov_b32 s%d, %d" % (S_T0, KC))
    g("s_mov_b32 s%d, %d" % (S_T1, WBASE + 3 * 16384))
    g("s_cmov_b32 s%d, %d" % (S_T1, KC + TUNIT))
    g("v_add_u32 v%d, s%d, v%d" % (VR1, S_T1, VR0))
    g("v_add_u32 v%d, s%d, v%d" % (VR0, S_T0, VR0))
    g("s_and_b32 s%d, s%d, 3" % (S_T3, S_WAVE))
    g("s_mul_i32 s%d, s%d, %d" % (S_T0, S_T3, 16 * TP))
    g("v_add_u32 v22, s%d, v%d" % (S_T0, VR0))
    g("v_add_u32 v23, s%d, v%d" % (S_T0, VR1))
    tabs = [(0, 256, 1024), (128, 512, 2048), (4, 128, 512), (4, 4, 512), (1, 2, 128), (1, 128, 128)]
    SB = 84
    for i, (a, b, c) in enumerate(tabs):
        g("s_mov_b32 s%d, %d" % (SB + i, a))
    g("s_cmp_eq_u32 s%d, 1" % S_T3)
    for i, (a, b, c) in enumerate(tabs):
        g("s_cmov_b32 s%d, %d" % (SB + i, b))
    g("s_cmp_eq_u32 s%d, 2" % S_T3)
    for i, (a, b, c) in enumerate(tabs):
        g("s_cmov_b32 s%d, %d" % (SB + i, c))
    g("v_cmp_le_u32 vcc, 32, v1")
    for i in range(3):
        g("v_mov_b32 v%d, s%d" % (24 + i, SB + 2 * i))
        g("v_mov_b32 v%d, s%d" % (27 + i, SB + 2 * i + 1))
    for i in range(3):
        g("v_cndmask_b32 v%d, v%d, v%d, vcc" % (24 + i, 24 + i, 27 + i))
    g("v_and_b32 v27, 1, v%d" % VT2)
    g("v_mad_u32_u24 v24, v27, v25, v24")
    g("v_lshl_add_u32 v24, v%d, 3, v24" % VT)
    g("s_mul_i32 s%d, s%d, %d" % (S_T1, S_T2, KV_PITCH))
    g("s_add_u32 s%d, s%d, %d" % (S_T1, S_T1, KVT - 2 * KV_BIAS))
    g("v_mov_b32 v28, %d" % (KV_BIAS + KV_DUMP))
    for r in range(4):
        o = OA + r
        g("v_cvt_f32_u32 v%d, v24" % o)
        g("v_cmp_lt_u32 vcc, 2048, v24")
        g("v_lshrrev_b32 v%d, 16, v%d" % (o, o))
        g("v_max_u32 v%d, %d, v%d" % (o, KV_BIAS, o))
        g("v_cndmask_b32 v%d, v%d, v28, vcc" % (o, o))
        g("v_lshl_add_u32 v%d, v%d, 1, s%d" % (o, o, S_T1))
        if r < 3:
            g("v_add_u32 v24, v24, v26")
    g("s_waitcnt lgkmcnt(0)")
    g.stamp(22)
    g("s_barrier")
    g.stamp(23)
    sk = g.newlabel("KT3")
    g("s_cmp_eq_u32 s%d, 3" % S_T3)
    g("s_cbranch_scc1 %s" % sk)
    FB, FA, DA = 32, 64, 96
    for hf in range(2):
        for ks in range(4):
            g("ds_read_b128 %s, v%d offset:%d" % (vr(FB + 16 * hf + 4 * ks, 4), (VR0, VR1)[hf], 64 * ks))
            g("ds_read_b128 %s, v%d offset:%d" % (vr(FA + 16 * hf + 4 * ks, 4), (22, 23)[hf], 16 * TP + 64 * ks))
    for i in range(8):
        g("s_waitcnt lgkmcnt(%d)" % (14 - 2 * i))
        g("v_mfma_f32_16x16x32_bf16 %s, %s, %s, %s" % (vr(DA, 4), vr(FA + 4 * i, 4), vr(FB + 4 * i, 4), "0" if i == 0 else vr(DA, 4)))
    g("s_nop 7")
    g("s_nop 1")
    for r in range(4):
        g("v_cvt_pk_bf16_f32 v%d, v%d, v%d" % (DA + 4 + r, DA + r, DA + r))
        g("ds_write_b16 v%d, v%d" % (OA + r, DA + 4 + r))
    sk2 = g.newlabel("KT3E")
    g("s_branch %s" % sk2)
    g.label(sk)
    g("s_mul_i32 s%d, s%d, %d" % (S_T1, S_T2, KV_PITCH))
    g("s_add_u32 s%d, s%d, %d" % (S_T1, S_T1, KVT + 2 * KV_ZERO))
    g("v_mov_b32 v24, s%d" % S_T1)
    g("v_mov_b32 v25, 0")
    g("ds_write_b16 v24, v25")
    g.label(sk2)
    g.stamp(24)
    IX = 32
    g("v_and_b32 v%d, 255, v0" % VT)
    g("v_lshlrev_b32 v%d, 3, v%d" % (VT2, VT))
    g("v_sub_u32 v%d, 2047, v%d" % (VT2, VT2))
    g("v_cvt_f32_i32 v%d, v%d" % (VT2, VT2))
    g("s_mul_i32 s%d, s%d, %d" % (S_T1, S_T2, KV_PITCH))
    g("s_add_u32 s%d, s%d, %d" % (S_T1, S_T1, KVT - 2 * KV_BIAS))
    g("v_mov_b32 v44, %d" % KV_BIAS)
    g("v_mov_b32 v45, %d" % (KV_BIAS + KV_ZERO))
    for k in range(0, 12, 2):
        g("v_subrev_f32 v46, %s, v%d" % (fimm(k), VT2))
        g("v_subrev_f32 v47, %s, v%d" % (fimm(k + 1), VT2))
        g("v_cvt_pk_bf16_f32 v46, v46, v47")
        g("v_and_b32 v%d, 0xffff, v46" % (IX + k))
        g("v_lshrrev_b32 v%d, 16, v46" % (IX + k + 1))
    for k in range(11):
        g("v_med3_u32 v%d, v%d, v44, v45" % (IX + k, IX + k))
        g("v_lshl_add_u32 v%d, v%d, 1, s%d" % (IX + k, IX + k, S_T1))
    g("s_mul_i32 s%d, s%d, 16640" % (S_T1, S_T2))
    g("s_add_u32 s%d, s%d, %d" % (S_T1, S_T1, KC))
    g("v_lshl_add_u32 v46, v%d, 4, s%d" % (VT, S_T1))
    for r in range(4):
        g("v_mov_b32 v%d, 0" % (48 + r))
    g("s_waitcnt lgkmcnt(0)")
    g.stamp(25)
    g("s_barrier")
    g.stamp(26)
    D, O = 52, 64
    for k in range(11):
        g("ds_read_u16 v%d, v%d" % (D + k, IX + k))
    z6, z7 = g.newlabel("Z"), g.newlabel("Z")
    g("s_cmp_lg_u32 s%d, 6" % S_WAVE)
    g("s_cbranch_scc1 %s" % z6)
    g("v_lshrrev_b32 v47, 5, v1")
    g("v_lshlrev_b32 v47, 12, v47")
    g("v_lshl_add_u32 v47, v1, 4, v47")
    g("v_add_u32 v47, %d, v47" % UB)
    g("ds_write_b128 v47, v[48:51]")
    g.label(z6)
    g("s_cmp_lg_u32 s%d, 7" % S_WAVE)
    g("s_cbranch_scc1 %s" % z7)
    g("v_bfe_u32 v47, v1, 1, 3")
    g("v_mul_u32_u24 v47, 4160, v47")
    g("v_and_b32 v44, 1, v1")
    g("v_lshl_add_u32 v47, v44, 4, v47")
    g("v_add_u32 v47, %d, v47" % (KC + 4096))
    g("ds_write_b128 v47, v[48:51]")
    g.label(z7)
    g("s_waitcnt lgkmcnt(0)")
    for sft in range(4):
        for k in range(4):
            g("v_lshl_or_b32 v%d, v%d, 16, v%d" % (O + 4 * sft + k, D + sft + 2 * k + 1, D + sft + 2 * k))
        g("ds_write_b128 v46, %s offset:%d" % (vr(O + 4 * sft, 4), 4160 * sft))


def w2_setup(g, vd, va):
    g("v_lshrrev_b32 v%d, 4, v1" % VT)
    g("v_lshlrev_b32 v%d, 1, v%d" % (VT, VT))
    g("v_xor_b32 v%d, v%d, v1" % (VT, VT))
    g("v_and_b32 v%d, 7, v%d" % (VT, VT))
    g("v_lshrrev_b32 v%d, 3, v1" % VT2)
    g("v_lshlrev_b32 v%d, 10, v%d" % (vd, VT2))
    g("v_lshl_add_u32 v%d, v%d, 4, v%d" % (vd, VT, vd))
    g("s_mul_i32 s%d, s%d, %d" % (S_M, S_WAVE, 224 * 1024))
    g("s_lshl_b32 s%d, s%d, 7" % (S_M + 1, S_NT))
    g("s_add_u32 s%d, s%d, s%d" % (S_M, S_M, S_M + 1))
    g("s_mul_i32 s%d, s%d, %d" % (S_M + 1, S_WAVE, W2P))
    g("s_lshr_b32 s%d, s2, 2" % S_T0)
    g("s_and_b32 s%d, s%d, 6" % (S_T0, S_T0))
    g("s_and_b32 s%d, s2, 7" % S_T1)
    g("s_add_u32 s%d, s%d, s%d" % (S_T0, S_T0, S_T1))
    for j in range(7):
        if j:
            g("s_add_u32 s%d, s%d, 1" % (S_T0, S_T0))
        g("s_sub_u32 s%d, s%d, 7" % (S_T1, S_T0))
        g("s_cmp_ge_u32 s%d, 7" % S_T0)
        g("s_cselect_b32 s%d, s%d, s%d" % (S_T0, S_T1, S_T0))
        g("s_lshl_b32 s%d, s%d, 10" % (S_J + j, S_T0))
    g("v_and_b32 v%d, 3, v%d" % (VT2, VT2))
    g("v_lshlrev_b32 v%d, 5, v%d" % (VT2, VT2))
    g("v_lshrrev_b32 v%d, 2, v1" % VT)
    g("v_lshl_add_u32 v%d, v%d, 7, v%d" % (VT2, VT, VT2))
    g("v_and_b32 v%d, 3, v1" % VT)
    g("v_lshl_add_u32 v%d, v%d, 3, v%d" % (VT2, VT, VT2))
    g("v_add_u32 v%d, s%d, v%d" % (va, S_M + 1, VT2))
    for c in range(1, 4):
        g("v_xor_b32 v%d, %d, v%d" % (va + c, 32 * c, va))


def w2_dma(g, vd, j):
    g("s_lshl_b32 s%d, s%d, 5" % (S_M + 2, S_J + j))
    g("s_add_u32 s%d, s%d, s%d" % (S_M + 2, S_M + 2, S_M))
    for q in range(4):
        g("s_add_u32 m0, s%d, %d" % (S_M + 1, (j % 3) * 4096 + q * 1024))
        g("s_add_u32 s%d, s%d, %d" % (S_M + 2, S_M + 2, 8192 if q else 0))
        g.vmem("buffer_load_dwordx4 v%d, %s, s%d offen lds" % (vd, SRDW(S_W2), S_M + 2), "w2_%d" % j)


def w2_rd(g, va, j):
    g.wait_vm("w2_%d" % j)
    for c in range(4):
        d = W2F + 16 * j + 4 * c
        g("ds_read_b64_tr_b16 %s, v%d offset:%d" % (vr(d, 2), va + c, (j % 3) * 4096))
        g("ds_read_b64_tr_b16 %s, v%d offset:%d" % (vr(d + 2, 2), va + c, (j % 3) * 4096 + 2048))


def reduce8(g, p):
    g("s_nop 1")
    for i in range(4):
        g("v_permlane32_swap_b32 v%d, v%d" % (p + i, p + i + 4))
    g("s_nop 1")
    for i in range(4):
        g("v_add_f32 v%d, v%d, v%d" % (p + i, p + i, p + i + 4))
    g("s_nop 1")
    for i in range(2):
        g("v_permlane16_swap_b32 v%d, v%d" % (p + i, p + i + 2))
    g("s_nop 1")
    for i in range(2):
        g("v_add_f32 v%d, v%d, v%d" % (p + i, p + i, p + i + 2))
    for rot in (8, 4, 2, 1):
        g("s_nop 1")
        for i in range(2):
            g("v_add_f32_dpp v%d, v%d, v%d row_ror:%d row_mask:0xf bank_mask:0xf" % (p + i, p + i, p + i, rot))


V_W2D, V_W2A = 3, 4
UREG = 236
STR, CSR = 204, 220


def u_load(g):
    g("v_lshrrev_b32 v%d, 2, v0" % VT)
    g("v_mul_u32_u24 v%d, %d, v%d" % (VT, XP, VT))
    g("v_and_b32 v%d, 3, v0" % VT2)
    g("v_lshl_add_u32 v%d, v%d, 4, v%d" % (VT, VT2, VT))
    g("s_lshl_b32 s%d, s2, 6" % S_T1)
    g.vmem("buffer_load_dwordx4 %s, v%d, %s, s%d offen sc1" % (vr(UREG, 4), VT, SRDW(S_WS), S_T1), "u")


def u_store(g):
    g("v_lshrrev_b32 v%d, 2, v0" % VT)
    g("v_lshlrev_b32 v%d, 5, v%d" % (VT, VT))
    g("v_and_b32 v%d, 1, v0" % VT2)
    g("v_lshl_add_u32 v%d, v%d, 4, v%d" % (VT, VT2, VT))
    g("v_bfe_u32 v%d, v0, 1, 1" % VT2)
    g("v_mul_u32_u24 v%d, 4608, v%d" % (VT2, VT2))
    g("v_add3_u32 v%d, v%d, v%d, v%d" % (VT, VT, VT2, VT) if False else "v_add_u32 v%d, v%d, v%d" % (VT, VT, VT2))
    g("v_add_u32 v%d, %d, v%d" % (VT, UB + 512, VT))
    g.wait_vm("u")
    g("ds_write_b128 v%d, %s" % (VT, vr(UREG, 4)))


def gen(ts=False):
    g = Gen(ts)
    g.VTS = 15
    g("s_cmp_ge_u32 s2, 256")
    g("s_cbranch_scc1 L_END")
    g("s_load_dwordx16 s[64:79], s[0:1], 0")
    g("s_load_dwordx8 s[80:87], s[0:1], 64")
    g("s_load_dwordx4 s[88:91], s[0:1], 96")
    g("s_getpc_b64 s[%d:%d]" % (S_M, S_M + 1))
    g("s_lshr_b32 s%d, s2, 3" % S_T1)
    g("s_and_b32 s%d, s%d, 3" % (S_T2, S_T1))
    g("s_lshl_b32 s%d, s%d, 13" % (S_T0, S_T2))
    g("v_lshlrev_b32 v3, 4, v0")
    g("v_add_u32 v3, s%d, v3" % S_T0)
    g.vmem("global_load_dwordx4 v[252:255], v3, s[%d:%d]" % (S_M, S_M + 1), "code")
    g("v_and_b32 v1, 63, v0")
    g("v_lshrrev_b32 v3, 6, v0")
    g("v_lshlrev_b32 v2, 2, v1")
    g("v_readfirstlane_b32 s%d, v3" % S_WAVE)
    for r in range(4, 7):
        g("v_mov_b32 v%d, 0" % r)
    if ts:
        g("v_mov_b32 v%d, 0" % g.VTS)
    g("s_and_b32 s%d, s2, 7" % S_T0)
    g("s_and_b32 s%d, s2, 3" % S_RT)
    g("s_lshl_b32 s%d, s%d, 3" % (S_RT, S_RT))
    g("s_and_b32 s%d, s2, 4" % S_T3)
    g("s_add_u32 s%d, s%d, s%d" % (S_RT, S_RT, S_T3))
    g("s_add_u32 s%d, s%d, s%d" % (S_RT, S_RT, S_T2))
    g("s_lshr_b32 s%d, s2, 5" % S_NT)
    g("s_lshl_b32 s%d, s%d, 10" % (S_WK, S_WAVE))
    g("s_lshr_b32 s%d, s%d, 2" % (S_T3, S_WAVE))
    g("s_lshl_b32 s%d, s%d, 8" % (S_T3, S_T3))
    g("s_lshl_b32 s%d, s2, 9" % S_CNT)
    g("s_add_u32 s%d, s%d, s%d" % (S_T3, S_T3, S_CNT))
    g("v_add_u32 v%d, s%d, v2" % (VT, S_T3))
    g("s_lshl_b32 s%d, s2, 2" % S_CNT)
    g("s_waitcnt lgkmcnt(0)")
    for k, p in enumerate((P_LAR, P_AIM, P_CR, P_CI)):
        g.vmem("global_load_dword v%d, v%d, s[%d:%d]" % (PRM + k, VT, p, p + 1), "prm")
    g("s_load_dword s%d, s[%d:%d], s%d" % (S_LDT, P_LDT, P_LDT + 1, S_CNT))
    g("s_load_dword s%d, s[%d:%d], s%d" % (S_DSK, P_DSK, P_DSK + 1, S_CNT))
    srd(g, S_X, 64, 2097152)
    srd(g, S_W1, 80, 1835008)
    srd(g, S_W3, 82, 1835008)
    srd(g, S_W2, 84, 1835008)
    srd(g, S_OUT, 86, 2097152)
    srd(g, S_DBG, 88, 256)
    srd(g, S_WS, 90, WS_SIZE)
    nonce_write(g)
    g.stamp(0)
    g("s_cmp_lt_u32 s2, 32")
    g("s_cbranch_scc1 L_AUX")
    vm_entry = list(g.vm)

    g("s_sub_u32 s%d, s%d, 4" % (S_T1, S_T1))
    g("s_lshr_b32 s%d, s%d, 2" % (S_T3, S_T1))
    g("s_and_b32 s%d, s%d, 3" % (S_MT, S_T0))
    g("s_lshl_b32 s%d, s%d, 1" % (S_ROT, S_MT))
    g("s_lshl_b32 s%d, s%d, 2" % (S_MT, S_MT))
    g("s_add_u32 s%d, s%d, s%d" % (S_MT, S_MT, S_T2))
    g("s_lshr_b32 s%d, s%d, 2" % (S_FT, S_T0))
    g("s_mul_i32 s%d, s%d, 7" % (S_FT, S_FT))
    g("s_add_u32 s%d, s%d, s%d" % (S_FT, S_FT, S_T3))
    g("s_and_b32 s%d, s2, 4" % S_T3)
    g("s_add_u32 s%d, s%d, s%d" % (S_ROT, S_ROT, S_T3))
    g("s_lshl_b32 s%d, s%d, 8" % (S_T0, S_FT))
    g("s_lshl_b32 s%d, s%d, 17" % (S_T1, S_MT))
    V_WD0, V_WD1, V_XD0, V_XD1 = 3, 4, 5, 6
    V_XA0, V_XA1, V_WA0, V_WA1 = 7, 8, 9, 10
    V_FL, V_NEED = 11, 12
    SETS = [16, 48]
    ACC = 80

    def offs(i):
        g("s_add_u32 s%d, s%d, %d" % (S_T2, S_ROT, i))
        g("s_and_b32 s%d, s%d, 7" % (S_T2, S_T2))
        g("s_mul_i32 s%d, s%d, %d" % (S_WOFF + i, S_T2, 64 * 3584))
        g("s_add_u32 s%d, s%d, s%d" % (S_WOFF + i, S_WOFF + i, S_T0))
        g("s_lshl_b32 s%d, s%d, 7" % (S_XOFF + i, S_T2))
        g("s_add_u32 s%d, s%d, s%d" % (S_XOFF + i, S_XOFF + i, S_T1))
    offs(0)
    g("v_lshrrev_b32 v%d, 4, v1" % VT)
    g("s_lshr_b32 s%d, s%d, 1" % (S_T2, S_WAVE))
    g("s_and_b32 s%d, s%d, 1" % (S_T2, S_T2))
    g("s_lshl_b32 s%d, s%d, 2" % (S_T2, S_T2))
    g("v_or_b32 v%d, s%d, v%d" % (VT2, S_T2, VT))
    g("v_lshlrev_b32 v%d, 1, v%d" % (VT2, VT2))
    g("v_and_b32 v%d, 15, v1" % V_WD0)
    g("v_xor_b32 v%d, v%d, v%d" % (V_WD0, V_WD0, VT2))
    g("v_lshlrev_b32 v%d, 4, v%d" % (V_WD0, V_WD0))
    g("v_lshrrev_b32 v%d, 4, v0" % VT)
    g("v_mul_u32_u24 v%d, 3584, v%d" % (VT2, VT))
    g("v_add_u32 v%d, v%d, v%d" % (V_WD0, V_WD0, VT2))
    g("v_add_u32 v%d, %d, v%d" % (V_WD1, 32 * 3584, V_WD0))
    g("v_xor_b32 v%d, v%d, v1" % (VT, VT))
    g("v_and_b32 v%d, 7, v%d" % (VT, VT))
    g("v_lshrrev_b32 v%d, 3, v0" % VT2)
    g("v_lshlrev_b32 v%d, 10, v%d" % (VT2, VT2))
    g("v_lshl_add_u32 v%d, v%d, 4, v%d" % (V_XD0, VT, VT2))
    g("v_add_u32 v%d, 0x10000, v%d" % (V_XD1, V_XD0))

    def unit_ops(k):
        r = []
        st, h = k >> 1, k & 1
        if h == 0:
            for b in range(2):
                r.append(("s_add_u32 m0, s%d, %d" % (S_WK, XBASE + (st % 3) * 16384 + b * 8192),
                          "buffer_load_dwordx4 v%d, %s, s%d offen lds" % (V_XD1 if b else V_XD0, SRDW(S_X), S_XOFF + st), "U%d" % k))
        for mat in range(2):
            r.append(("s_add_u32 m0, s%d, %d" % (S_WK, WBASE + (k % 4) * 16384 + mat * 8192),
                      "buffer_load_dwordx4 v%d, %s, s%d offen lds" % (V_WD1 if h else V_WD0, SRDW((S_W1, S_W3)[mat]), S_WOFF + st), "U%d" % k))
        return r

    def unit(k):
        for a, b, t in unit_ops(k):
            g(a); g("s_nop 0"); g.vmem(b, t)

    unit(0); unit(1)
    for i in range(1, 8):
        offs(i)
    unit(2)
    g("v_and_b32 v%d, 15, v1" % VT)
    g("v_lshrrev_b32 v%d, 4, v1" % VT2)
    g("v_lshrrev_b32 v%d, 1, v%d" % (V_XA0, VT))
    g("v_xor_b32 v%d, v%d, v%d" % (V_XA0, V_XA0, VT2))
    g("v_lshlrev_b32 v%d, 4, v%d" % (V_XA0, V_XA0))
    g("v_lshl_add_u32 v%d, v%d, 7, v%d" % (V_XA0, VT, V_XA0))
    g("s_lshr_b32 s%d, s%d, 2" % (S_T2, S_WAVE))
    g("s_lshl_b32 s%d, s%d, 13" % (S_T2, S_T2))
    g("v_add_u32 v%d, s%d, v%d" % (V_XA0, S_T2, V_XA0))
    g("v_xor_b32 v%d, 64, v%d" % (V_XA1, V_XA0))
    g("v_lshrrev_b32 v%d, 2, v%d" % (VT, VT))
    g("v_and_b32 v%d, 1, v%d" % (V_WA0, VT2))
    g("v_lshl_or_b32 v%d, v%d, 2, v%d" % (V_WA0, V_WA0, VT))
    g("s_and_b32 s%d, s%d, 3" % (S_T2, S_WAVE))
    g("s_lshl_b32 s%d, s%d, 1" % (S_T2, S_T2))
    g("v_xor_b32 v%d, s%d, v%d" % (V_WA0, S_T2, V_WA0))
    g("v_lshlrev_b32 v%d, 5, v%d" % (V_WA0, V_WA0))
    g("v_lshl_add_u32 v%d, v%d, 3, v%d" % (VT, VT2, VT))
    g("v_lshl_add_u32 v%d, v%d, 8, v%d" % (V_WA0, VT, V_WA0))
    g("v_and_b32 v%d, 3, v1" % VT)
    g("v_lshl_add_u32 v%d, v%d, 3, v%d" % (V_WA0, VT, V_WA0))
    g("v_add_u32 v%d, %d, v%d" % (V_WA0, WBASE, V_WA0))
    g("v_xor_b32 v%d, 32, v%d" % (V_WA1, V_WA0))
    nyoung = len(g.vm) - 1 - max(i for i, t in enumerate(g.vm) if t == "prm")
    vm_g = list(g.vm)
    g.label("L_KPRO")
    kprologue(g, nyoung)
    g.stamp(1)
    g("s_cmp_lt_u32 s2, 32")
    g("s_cbranch_scc1 L_AUX2")
    g.vm = [t for t in vm_g if t.startswith("U")]

    def frag_reads(it):
        S = SETS[it & 1]
        xs = (it >> 1) % 3
        va = V_XA1 if (it & 1) else V_XA0
        so = (it % 4) * 16384
        xr = ["ds_read_b128 %s, v%d offset:%d" % (vr(S + 4 * mi, 4), va, XBASE + xs * 16384 + mi * 2048) for mi in range(4)]
        wr = []
        for mat in range(2):
            for tt in range(2):
                a = (V_WA0, V_WA1)[tt]
                d = S + 16 + 4 * (2 * mat + tt)
                wr.append("ds_read_b64_tr_b16 %s, v%d offset:%d" % (vr(d, 2), a, so + mat * 8192))
                wr.append("ds_read_b64_tr_b16 %s, v%d offset:%d" % (vr(d + 2, 2), a, so + mat * 8192 + 1024))
        return xr + wr

    def mfmas(it):
        S = SETS[it & 1]
        r = []
        for mi in range(4):
            for c in range(4):
                a = ACC + 16 * mi + 4 * c
                r.append("v_mfma_f32_16x16x32_bf16 %s, %s, %s, %s" % (vr(a, 4), vr(S + 16 + 4 * c, 4), vr(S + 4 * mi, 4), "0" if it == 0 else vr(a, 4)))
        return r

    def stats_loads():
        g("v_and_b32 v%d, 15, v1" % VT)
        g("v_lshlrev_b32 v%d, 4, v%d" % (VT, VT))
        g("s_lshr_b32 s%d, s%d, 2" % (S_T2, S_WAVE))
        g("s_lshl_b32 s%d, s%d, 10" % (S_T2, S_T2))
        g("s_lshl_b32 s%d, s%d, 11" % (S_T3, S_MT))
        g("s_add_u32 s%d, s%d, s%d" % (S_T2, S_T2, S_T3))
        g("s_add_u32 s%d, s%d, %d" % (S_T2, S_T2, WS_STATS))
        for mi in range(4):
            g.vmem("buffer_load_dwordx4 %s, v%d, %s, s%d offen offset:%d sc1" % (vr(STR + 4 * mi, 4), VT, SRDW(S_WS), S_T2, mi * 256), "st")
        g("v_lshrrev_b32 v%d, 4, v1" % VT2)
        g("v_lshlrev_b32 v%d, 4, v%d" % (VT2, VT2))
        g("s_and_b32 s%d, s%d, 3" % (S_T2, S_WAVE))
        g("s_lshl_b32 s%d, s%d, 7" % (S_T2, S_T2))
        g("s_lshl_b32 s%d, s%d, 9" % (S_T3, S_FT))
        g("s_add_u32 s%d, s%d, s%d" % (S_T2, S_T2, S_T3))
        g("s_add_u32 s%d, s%d, %d" % (S_T2, S_T2, WS_CS))
        g("s_add_u32 s%d, s%d, %d" % (S_T3, S_T2, 7168))
        for mat in range(2):
            for tt in range(2):
                g.vmem("buffer_load_dwordx4 %s, v%d, %s, s%d offen offset:%d sc1" % (vr(CSR + 4 * (2 * mat + tt), 4), VT2, SRDW(S_WS), S_T3 if mat else S_T2, tt * 64), "st")
        u_load(g)

    g.wait_vm("U0", "lgkmcnt(0)")
    g("s_barrier")
    g.stamp(2)
    for r in frag_reads(0):
        g(r)
    unit(3)
    for it in range(16):
        if it == 12:
            flag_check(g, V_FL, 32)
        if it < 15:
            g.wait_vm("U%d" % (it + 1), "lgkmcnt(0)")
        else:
            g("s_waitcnt lgkmcnt(0)")
        g("s_barrier")
        rd = frag_reads(it + 1) if it < 15 else []
        mf = mfmas(it)
        dm = unit_ops(it + 4) if it + 4 < 16 else []
        for i, m in enumerate(mf):
            if i >= 7 and dm and (i - 7) % 2 == 0:
                g(dm[0][0])
            g(m)
            for _ in range(2):
                if rd:
                    g(rd.pop(0))
            if i >= 7 and dm and (i - 7) % 2 == 0:
                a, b, t = dm.pop(0)
                g.vmem(b, t)
            if it == 12 and i == 6:
                stats_loads()
            if it == 15 and i == 1:
                w2_setup(g, V_W2D, V_W2A)
                w2_dma(g, V_W2D, 0)
            if it == 15 and i == 6:
                w2_dma(g, V_W2D, 1)
            if it == 15 and i == 11:
                w2_dma(g, V_W2D, 2)
        assert not dm and not rd
        if it == 2:
            nonce_issue(g, V_NEED)
        if it == 6:
            nonce_check(g, V_NEED)
        if it == 10:
            flag_issue(g, V_FL, (None, 0))
    g.stamp(3)
    u_store(g)
    g("s_lshr_b32 s%d, s%d, 2" % (S_T2, S_WAVE))
    g("s_lshl_b32 s%d, s%d, 2" % (S_T2, S_T2))
    g("s_lshl_b32 s%d, s%d, 3" % (S_T3, S_MT))
    g("s_add_u32 s%d, s%d, s%d" % (S_T2, S_T2, S_T3))
    g("s_mul_i32 s%d, s%d, 56" % (S_T2, S_T2))
    g("s_lshl_b32 s%d, s%d, 2" % (S_T3, S_FT))
    g("s_add_u32 s%d, s%d, s%d" % (S_T2, S_T2, S_T3))
    g("s_and_b32 s%d, s%d, 3" % (S_T3, S_WAVE))
    g("s_add_u32 s%d, s%d, s%d" % (S_T2, S_T2, S_T3))
    g("s_lshl_b32 s%d, s%d, 10" % (S_T2, S_T2))
    g("s_add_u32 s%d, s%d, %d" % (S_T2, S_T2, WS_H))
    g("v_lshlrev_b32 v%d, 4, v1" % VT)
    E = 16
    for mi in range(4):
        st = STR + 4 * mi
        HO = 32 + 4 * (mi & 1)
        for tt in range(2):
            ag = ACC + 16 * mi + 4 * tt
            au = ACC + 16 * mi + 4 * (2 + tt)
            c1 = CSR + 4 * tt
            c3 = CSR + 4 * (2 + tt)
            for r in range(4):
                g("v_fma_f32 v%d, -v%d, v%d, v%d" % (ag + r, st, c1 + r, ag + r))
            for r in range(4):
                g("v_mul_f32 v%d, v%d, v%d" % (E + r, st + 1, ag + r))
            for r in range(4):
                g("v_exp_f32 v%d, v%d" % (E + r, E + r))
            for r in range(4):
                g("v_fma_f32 v%d, -v%d, v%d, v%d" % (au + r, st, c3 + r, au + r))
            for r in range(4):
                g("v_fma_f32 v%d, v%d, v%d, v%d" % (E + r, E + r, st + 2, st + 2))
            for r in range(4):
                g("v_rcp_f32 v%d, v%d" % (E + r, E + r))
            for r in range(4):
                g("v_mul_f32 v%d, v%d, v%d" % (ag + r, ag + r, au + r))
            for r in range(4):
                g("v_mul_f32 v%d, v%d, v%d" % (ag + r, ag + r, E + r))
            g("v_cvt_pk_bf16_f32 v%d, v%d, v%d" % (HO + 2 * tt, ag, ag + 1))
            g("v_cvt_pk_bf16_f32 v%d, v%d, v%d" % (HO + 2 * tt + 1, ag + 2, ag + 3))
        g.vmem("buffer_store_dwordx4 %s, v%d, %s, s%d offen sc1" % (vr(HO, 4), VT, SRDW(S_WS), S_T2), "hst")
        if mi < 3:
            g("s_add_u32 s%d, s%d, %d" % (S_T2, S_T2, 56 * 1024))
    g.stamp(4)
    g("s_branch L_COMMON")
    vm_common = list(g.vm)

    g.label("L_AUX")
    g.vm = list(vm_entry)
    aux1(g)
    g("s_branch L_KPRO")
    g.label("L_AUX2")
    g.vm = []
    aux2(g)
    g.wait_vm_all()

    g.label("L_COMMON")
    g.vm = vm_common
    common(g)
    g.label("L_END")
    g("s_endpgm")
    return g


def aux1(g):
    S_RB, S_CB, S_CV = S_MT, S_FT, S_ROT
    g("s_and_b32 s%d, s2, 3" % S_T3)
    g("s_lshl_b32 s%d, s%d, 3" % (S_RB, S_T3))
    g("s_and_b32 s%d, s2, 4" % S_CB)
    g("s_add_u32 s%d, s%d, s%d" % (S_RB, S_RB, S_CB))
    g("s_add_u32 s%d, s%d, s%d" % (S_RB, S_RB, S_T1))
    g("s_lshl_b32 s%d, s%d, 2" % (S_CV, S_T3))
    g("s_add_u32 s%d, s%d, s%d" % (S_CV, S_CV, S_T1))
    g("s_lshr_b32 s%d, s%d, 2" % (S_CB, S_CB))
    g("s_mul_i32 s%d, s%d, 14" % (S_CB, S_CB))
    g("s_add_u32 s%d, s%d, s%d" % (S_CB, S_CB, S_CV))
    g("s_cmp_ge_u32 s%d, 4" % S_WAVE)
    g("s_cbranch_scc1 L_AUXC")
    vm0 = list(g.vm)
    XR, XF, TT, RED, ONES = 16, 80, 144, 176, 184
    WA = 186
    g("v_lshlrev_b32 v%d, 4, v1" % VT)
    g("s_lshl_b32 s%d, s%d, 16" % (S_T0, S_RB))
    g("s_lshl_b32 s%d, s%d, 14" % (S_T1, S_WAVE))
    g("s_add_u32 s%d, s%d, s%d" % (S_T0, S_T0, S_T1))
    g("s_mov_b32 s%d, s%d" % (S_T2, S_T0))
    for i in range(16):
        if i and i % 4 == 0:
            g("s_add_u32 s%d, s%d, 4096" % (S_T2, S_T2))
        g.vmem("buffer_load_dwordx4 %s, v%d, %s, s%d offen offset:%d" % (vr(XR + 4 * i, 4), VT, SRDW(S_X), S_T2, (i & 3) * 1024), "x%d" % (i >> 3))
    g("v_mov_b32 v%d, 0x3f803f80" % ONES)
    g("v_and_b32 v%d, 7, v1" % VT2)
    g("v_lshlrev_b32 v%d, 4, v%d" % (VT2, VT2))
    g("v_lshl_add_u32 v%d, v1, 8, v%d" % (VT2, VT2))
    g("v_add_u32 v%d, s%d, v%d" % (WA, S_T1, VT2))
    for k in range(1, 8):
        g("v_xor_b32 v%d, %d, v%d" % (WA + k, 16 * k, WA))
    g("s_lshr_b32 s%d, s%d, 6" % (S_T0, S_T0))
    g("s_add_u32 s%d, s%d, %d" % (S_T0, S_T0, WS_STATS))
    g("v_lshrrev_b32 v3, 4, v1")
    g("v_lshlrev_b32 v3, 5, v3")
    g("s_mov_b32 s%d, 0x00010001" % S_EX)
    g("s_mov_b32 s%d, 0x00010001" % (S_EX + 1))
    SM = 36
    MEAN, SO, RI = 194, 196, 204
    for b in range(2):
        X0 = XR + 32 * b
        g.wait_vm("x%d" % b)
        g.stamp(30 + 4 * b)
        for i in range(8):
            g("v_dot2_f32_bf16 v%d, v%d, v%d, 0" % (RED + i, X0 + 4 * i, ONES))
        for k in range(1, 4):
            for i in range(8):
                g("v_dot2_f32_bf16 v%d, v%d, v%d, v%d" % (RED + i, X0 + 4 * i + k, ONES, RED + i))
        for i in range(8):
            for k in range(4):
                g("v_lshlrev_b32 v%d, 16, v%d" % (XF + 8 * i + 2 * k, X0 + 4 * i + k))
                g("v_and_b32 v%d, 0xffff0000, v%d" % (XF + 8 * i + 2 * k + 1, X0 + 4 * i + k))
        reduce8(g, RED)
        for i in range(2):
            g("v_mul_f32 v%d, 0x3b000000, v%d" % (MEAN + i, RED + i))
        g("s_nop 0")
        for row in range(8):
            g("v_readlane_b32 s%d, v%d, %d" % (SM + 2 * row, MEAN + (row & 1), 16 * (row >> 1)))
        g("s_nop 1")
        g.stamp(31 + 4 * b)
        for k in range(4):
            for i in range(8):
                d = TT + 2 * i
                g("v_pk_add_f32 %s, %s, s[%d:%d] op_sel_hi:[1,0] neg_lo:[0,1] neg_hi:[0,1]" % (vr(d, 2), vr(XF + 8 * i + 2 * k, 2), SM + 2 * i, SM + 2 * i + 1))
            for i in range(8):
                d = TT + 2 * i
                a = X0 + 2 * i
                if k == 0:
                    g("v_pk_mul_f32 %s, %s, %s" % (vr(a, 2), vr(d, 2), vr(d, 2)))
                else:
                    g("v_pk_fma_f32 %s, %s, %s, %s" % (vr(a, 2), vr(d, 2), vr(d, 2), vr(a, 2)))
        for i in range(8):
            g("v_add_f32 v%d, v%d, v%d" % (RED + i, X0 + 2 * i, X0 + 2 * i + 1))
        reduce8(g, RED)
        for i in range(2):
            o = SO + 4 * i
            g("v_mul_f32 v%d, 0x3b000000, v%d" % (RED + i, RED + i))
            rnd_bf16(g, RED + i, RED + i)
            g("v_add_f32 v%d, 0x3727c5ac, v%d" % (RED + i, RED + i))
            rnd_bf16(g, RED + i, RED + i)
            g("v_sqrt_f32 v%d, v%d" % (RED + i, RED + i))
            g("s_nop 0")
            rnd_bf16(g, RED + i, RED + i)
            g("v_rcp_f32 v%d, v%d" % (RI + i, RED + i))
            rnd_bf16(g, o, MEAN + i)
            g("v_mul_f32 v%d, 0x%x, v%d" % (o + 1, NLOG2E, RI + i))
            g("v_mul_f32 v%d, v%d, v%d" % (o + 2, RED + i, RED + i))
            g("v_mov_b32 v%d, v%d" % (o + 3, RED + i))
        g("s_nop 0")
        for row in range(8):
            g("v_readlane_b32 s%d, v%d, %d" % (SM + 2 * row, SO + 4 * (row & 1), 16 * (row >> 1)))
            g("v_readlane_b32 s%d, v%d, %d" % (SM + 2 * row + 1, RI + (row & 1), 16 * (row >> 1)))
        g("s_mov_b64 exec, s[%d:%d]" % (S_EX, S_EX + 1))
        for i in range(2):
            g.vmem("buffer_store_dwordx4 %s, v3, %s, s%d offen offset:%d sc1" % (vr(SO + 4 * i, 4), SRDW(S_WS), S_T0, 16 * i + 128 * b), "s1")
        g("s_mov_b64 exec, -1")
        g.stamp(32 + 4 * b)
        for i in range(8):
            for k in range(4):
                d = XF + 8 * i + 2 * k
                g("v_pk_add_f32 %s, %s, s[%d:%d] op_sel_hi:[1,0] neg_lo:[0,1] neg_hi:[0,1]" % (vr(d, 2), vr(d, 2), SM + 2 * i, SM + 2 * i + 1))
            for k in range(4):
                d = XF + 8 * i + 2 * k
                g("v_pk_mul_f32 %s, %s, s[%d:%d] op_sel:[0,1] op_sel_hi:[1,1]" % (vr(d, 2), vr(d, 2), SM + 2 * i, SM + 2 * i + 1))
        for c in range(8):
            for ip in range(4):
                g("v_cvt_pk_bf16_f32 v%d, v%d, v%d" % (TT + 4 * c + ip, XF + 16 * ip + c, XF + 16 * ip + 8 + c))
            pc = 2 * c + b
            g("ds_write_b128 v%d, %s offset:%d" % (WA + (pc & 7), vr(TT + 4 * c, 4), 128 * (pc >> 3)))
        g.stamp(33 + 4 * b)
    g("v_lshlrev_b32 v%d, 4, v1" % VT)
    g("v_add_u32 v%d, s%d, v%d" % (VT2, S_T1, VT))
    g("v_lshrrev_b32 v3, 4, v1")
    g("v_lshlrev_b32 v3, 4, v3")
    g("v_xor_b32 v3, v3, v%d" % VT)
    g("v_xor_b32 v4, 64, v3")
    g("s_lshl_b32 s%d, s%d, 2" % (S_T2, S_RB))
    g("s_add_u32 s%d, s%d, s%d" % (S_T2, S_T2, S_WAVE))
    g("s_mul_i32 s%d, s%d, %d" % (S_T2, S_T2, XP))
    g("s_waitcnt lgkmcnt(0)")
    for k in range(16):
        g("ds_read_b128 %s, v%d offset:%d" % (vr(XR + 4 * k, 4), VT2, k * 1024))
    for k in range(16):
        g("s_waitcnt lgkmcnt(%d)" % (15 - k))
        if k and k % 4 == 0:
            g("s_add_u32 s%d, s%d, 4096" % (S_T2, S_T2))
        g.vmem("buffer_store_dwordx4 %s, v%d, %s, s%d offen offset:%d sc1" % (vr(XR + 4 * k, 4), 4 if k & 1 else 3, SRDW(S_WS), S_T2, (k & 3) * 1024), "s1")
    nonce_issue(g, 12)
    nonce_check(g, 12)
    g.stamp(38)
    g("s_branch L_AUXJ")
    g.label("L_AUXC")
    g.vm = vm0
    g("s_cmp_ge_u32 s%d, 14" % S_CV)
    g("s_cbranch_scc1 L_AUXJ")
    SC = 84
    g("s_bitcmp1_b32 s%d, 1" % S_WAVE)
    g("s_cselect_b32 s%d, s%d, s%d" % (SC, S_W3, S_W1))
    g("s_cselect_b32 s%d, s%d, s%d" % (SC + 1, S_W3 + 1, S_W1 + 1))
    g("s_cselect_b32 s%d, 7168, 0" % S_T3)
    g("s_mov_b32 s%d, 1835008" % (SC + 2))
    g("s_mov_b32 s%d, 0x00020000" % (SC + 3))
    g("s_and_b32 s%d, s%d, 1" % (S_T0, S_WAVE))
    g("s_lshl_b32 s%d, s%d, 1" % (S_T2, S_CB))
    g("s_add_u32 s%d, s%d, s%d" % (S_T0, S_T0, S_T2))
    g("s_lshl_b32 s%d, s%d, 6" % (S_T2, S_T0))
    g("v_lshrrev_b32 v3, 2, v1")
    g("v_mul_u32_u24 v3, 3584, v3")
    g("v_and_b32 v%d, 3, v1" % VT)
    g("v_lshl_add_u32 v3, v%d, 4, v3" % VT)
    CW, CA, SELL, SELH = 16, 144, 152, 153
    g("v_mov_b32 v%d, 0x00003f80" % SELL)
    g("v_mov_b32 v%d, 0x3f800000" % SELH)
    for k in range(32):
        g.vmem("buffer_load_dwordx4 %s, v3, %s, s%d offen" % (vr(CW + 4 * k, 4), SRDW(SC), S_T2), "cw%d" % (k >> 2))
        if k < 31:
            g("s_add_u32 s%d, s%d, %d" % (S_T2, S_T2, 16 * 3584))
    for k in range(32):
        if k % 4 == 0:
            g.wait_vm("cw%d" % (k >> 2))
        for d in range(4):
            sreg = CW + 4 * k + d
            a = CA + 2 * d
            g("v_dot2_f32_bf16 v%d, v%d, v%d, %s" % (a, sreg, SELL, "0" if k == 0 else vr(a)))
            g("v_dot2_f32_bf16 v%d, v%d, v%d, %s" % (a + 1, sreg, SELH, "0" if k == 0 else vr(a + 1)))
    g("s_nop 3")
    for u in range(4):
        g("v_permlane32_swap_b32 v%d, v%d" % (CA + u, CA + u + 4))
    g("s_nop 1")
    for u in range(4):
        g("v_add_f32 v%d, v%d, v%d" % (CA + u, CA + u, CA + u + 4))
    g("s_nop 1")
    for u in range(2):
        g("v_permlane16_swap_b32 v%d, v%d" % (CA + u, CA + u + 2))
    g("s_nop 1")
    for u in range(2):
        g("v_add_f32 v%d, v%d, v%d" % (CA + u, CA + u, CA + u + 2))
    for rot in (8, 4):
        g("s_nop 1")
        for u in range(2):
            g("v_add_f32_dpp v%d, v%d, v%d row_ror:%d row_mask:0xf bank_mask:0xf" % (CA + u, CA + u, CA + u, rot))
    g("v_lshrrev_b32 v3, 4, v1")
    g("v_lshlrev_b32 v3, 3, v3")
    g("v_lshl_add_u32 v3, v%d, 5, v3" % VT)
    g("s_lshl_b32 s%d, s%d, 7" % (S_T0, S_T0))
    g("s_add_u32 s%d, s%d, s%d" % (S_T0, S_T0, S_T3))
    g("s_add_u32 s%d, s%d, %d" % (S_T0, S_T0, WS_CS))
    g("s_mov_b32 s%d, 0x000f000f" % S_EX)
    g("s_mov_b32 s%d, 0x000f000f" % (S_EX + 1))
    g("s_mov_b64 exec, s[%d:%d]" % (S_EX, S_EX + 1))
    g("buffer_store_dwordx2 %s, v3, %s, s%d offen sc1" % (vr(CA, 2), SRDW(S_WS), S_T0))
    g("s_mov_b64 exec, -1")
    g.label("L_AUXJ")
    g.stamp(39)
    g.wait_vm_all("lgkmcnt(0)")
    g.stamp(40)
    g("s_barrier")
    publish(g, pub_aux, VT)
    g.stamp(4)


def aux2(g):
    n = OPT["auxpf"]
    g("s_lshr_b32 s%d, s2, 3" % S_T0)
    g("s_lshl_b32 s%d, s%d, 1" % (S_T0, S_T0))
    g("s_and_b32 s%d, s%d, 1" % (S_T1, S_WAVE))
    g("s_add_u32 s%d, s%d, s%d" % (S_T0, S_T0, S_T1))
    g("s_mul_i32 s%d, s%d, 224" % (S_T0, S_T0))
    g("s_lshr_b32 s%d, s%d, 1" % (S_T1, S_WAVE))
    g("s_add_u32 s%d, s%d, s%d" % (S_T0, S_T0, S_T1))
    g("s_lshl_b32 s%d, s%d, 10" % (S_T0, S_T0))
    g("v_lshlrev_b32 v%d, 4, v1" % VT)
    flag_issue(g, 11, (None, 0))
    for i in range(n):
        g.vmem("buffer_load_dwordx4 %s, v%d, %s, s%d offen" % (vr(80 + 4 * (i % 16), 4), VT, SRDW(S_W2), S_T0), "pf")
        g("s_add_u32 s%d, s%d, 4096" % (S_T0, S_T0))
    flag_check(g, 11, 32)
    g("s_waitcnt lgkmcnt(0)")
    g("s_barrier")
    u_load(g)
    w2_setup(g, V_W2D, V_W2A)
    for j in range(3):
        w2_dma(g, V_W2D, j)
    u_store(g)


def common(g):
    for j in range(3):
        w2_rd(g, V_W2A, j)
    VAA, VBB = 8, 9
    g("v_and_b32 v%d, 15, v1" % VT)
    g("v_lshrrev_b32 v%d, 4, v1" % VT2)
    g("v_lshl_add_u32 v46, v%d, 3, v%d" % (VT2, VT))
    g("s_lshr_b32 s%d, s%d, 2" % (S_T2, S_WAVE))
    g("s_mul_i32 s%d, s%d, 16640" % (S_T3, S_T2))
    g("s_add_u32 s%d, s%d, %d" % (S_T3, S_T3, KC))
    g("s_and_b32 s%d, s%d, 3" % (S_T0, S_WAVE))
    g("s_lshl_b32 s%d, s%d, 5" % (S_T1, S_T0))
    g("s_sub_u32 s%d, %d, s%d" % (S_T1, 2047 + 8 - 32 * 60, S_T1))
    g("v_sub_u32 v46, s%d, v46" % S_T1)
    g("v_and_b32 v47, 3, v46")
    g("v_sub_u32 v46, v46, v47")
    g("v_lshlrev_b32 v46, 1, v46")
    g("v_mul_u32_u24 v47, 4160, v47")
    g("v_add3_u32 v%d, v46, v47, s%d" % (VAA, S_T3))
    g("v_lshlrev_b32 v46, 5, v%d" % VT)
    g("v_lshlrev_b32 v47, 4, v%d" % VT2)
    g("v_sub_u32 v46, v46, v47")
    g("s_mul_i32 s%d, s%d, 4608" % (S_T1, S_T2))
    g("s_lshl_b32 s%d, s%d, 6" % (S_T0, S_T0))
    g("s_sub_u32 s%d, s%d, s%d" % (S_T1, S_T1, S_T0))
    g("s_add_u32 s%d, s%d, %d" % (S_T1, S_T1, UB + 512 - 256 + 16))
    g("v_add_u32 v%d, s%d, v46" % (VBB, S_T1))
    g("s_waitcnt lgkmcnt(0)")
    for j in range(3, 6):
        w2_dma(g, V_W2D, j)
    g.wait_vm("hst")
    g("s_barrier")
    sk = g.newlabel("PH")
    g("s_cmp_lt_u32 s2, 32")
    g("s_cbranch_scc1 %s" % sk)
    publish(g, pub_h, VT)
    g.label(sk)
    g.stamp(5)
    BF, CACC, AF = 16, 80, 112
    NA = 4
    def rdA(ip):
        d = AF + 4 * (ip % NA)
        return ["ds_read_b64 %s, v%d offset:%d" % (vr(d, 2), VAA, 256 * (15 - ip)),
                "ds_read_b64 %s, v%d offset:%d" % (vr(d + 2, 2), VAA, 256 * (15 - ip) + 8)]
    lq = []
    def lds(s, tag):
        g(s); lq.append(tag)
    def lwait(tags):
        last = max([i for i, t in enumerate(lq) if t in tags], default=-1)
        if last < 0:
            return
        n = len(lq) - 1 - last
        g("s_waitcnt lgkmcnt(%d)" % min(n, 15))
        del lq[:last + 1]
        if n > 15:
            del lq[:len(lq) - 15]
    for s in rdA(0): lds(s, "A0")
    for tau in (0, 2, 4, 6, 8, 10, 12, 14):
        lds("ds_read_b128 %s, v%d offset:%d" % (vr(BF + 4 * (tau + 1), 4), VBB, 256 * (tau + 1)), "B%d" % tau)
    for s in rdA(1): lds(s, "A1")
    for tau in (-1, 1, 3, 5, 7, 9, 11, 13):
        lds("ds_read_b128 %s, v%d offset:%d" % (vr(BF + 4 * (tau + 1), 4), VBB, 256 * (tau + 1)), "B%d" % tau)
    for s in rdA(2): lds(s, "A2")
    for ip in range(16):
        first = True
        for j in range(ip >> 1, 8):
            tau = 2 * j - ip
            lwait(["A%d" % ip, "B%d" % tau])
            a = CACC + 4 * j
            g("v_mfma_f32_16x16x32_bf16 %s, %s, %s, %s" % (vr(a, 4), vr(AF + 4 * (ip % NA), 4), vr(BF + 4 * (tau + 1), 4), "0" if ip == 0 else vr(a, 4)))
            if first and ip + 3 < 16:
                for s in rdA(ip + 3): lds(s, "A%d" % (ip + 3))
            first = False
        if ip == 5:
            n0 = len(g.L)
            w2_rd(g, V_W2A, 3)
            lq.extend(["w2r"] * 8)
        if ip == 7:
            lwait(["w2r"])
            w2_dma(g, V_W2D, 6)
    g.stamp(6)
    VFL, VN = 10, 11
    g("s_lshr_b32 s%d, s%d, 1" % (S_T0, S_RT))
    flag_issue(g, VFL, (S_T0, 1))
    for j in (4, 5, 6):
        w2_rd(g, V_W2A, j)
    g("v_and_b32 v%d, 15, v1" % VT)
    g("v_lshrrev_b32 v%d, 4, v1" % VT2)
    g("v_lshl_add_u32 v%d, v%d, 2, v%d" % (VT, VT2, VT))
    g("v_and_b32 v%d, 15, v%d" % (VT, VT))
    g("v_lshl_add_u32 v%d, v%d, 4, v%d" % (VT, VT2, VT))
    g("v_lshl_add_u32 v%d, v%d, 4, s%d" % (VT, VT, S_M + 1))
    g("s_waitcnt lgkmcnt(0)")
    for j in range(8):
        g("ds_write_b128 v%d, %s offset:%d" % (VT, vr(CACC + 4 * j, 4), j * 1024))
    g("v_lshrrev_b32 v%d, 2, v1" % VT)
    g("v_and_b32 v%d, 3, v1" % VT2)
    g("v_lshl_add_u32 v%d, v%d, 2, v%d" % (VT, VT2, VT))
    g("v_and_b32 v%d, 15, v%d" % (VT, VT))
    g("v_lshl_add_u32 v%d, v%d, 4, v%d" % (VT, VT2, VT))
    g("v_lshl_add_u32 v%d, v%d, 4, s%d" % (VT, VT, S_WK))
    g("v_add_u32 v%d, %d, v%d" % (VT2, 4 * W2P, VT))
    g("v_lshlrev_b32 v12, 3, v0")
    g("v_add_u32 v12, %d, v12" % (UB + 512))
    g.stamp(7)
    flag_check(g, VFL, 14)
    g("s_waitcnt lgkmcnt(0)")
    g("s_barrier")
    g.stamp(8)
    P = 80
    for ch in range(2):
        for q in range(4):
            g("ds_read_b128 %s, v%d offset:%d" % (vr(P + 16 * ch + 4 * q, 4), (VT, VT2)[ch], q * W2P))
    U = 112
    g("ds_read_b64 %s, v12" % vr(U, 2))
    g("ds_read_b64 %s, v12 offset:4608" % vr(U + 2, 2))
    HF = 16
    g("v_lshlrev_b32 v3, 4, v1")
    g("s_mul_i32 s%d, s%d, %d" % (S_M + 4, S_RT, 4 * 56))
    g("s_mul_i32 s%d, s%d, 7" % (S_M + 5, S_WAVE))
    g("s_add_u32 s%d, s%d, s%d" % (S_M + 4, S_M + 4, S_M + 5))
    g("s_lshl_b32 s%d, s%d, 10" % (S_M + 4, S_M + 4))
    g("s_add_u32 s%d, s%d, %d" % (S_M + 4, S_M + 4, WS_H))
    SMI = 36
    for mi in range(4):
        g("s_add_u32 s%d, s%d, %d" % (SMI + mi, S_NT, mi))
        g("s_and_b32 s%d, s%d, 3" % (SMI + mi, SMI + mi))
    def hload(mi):
        g("s_mul_i32 s%d, s%d, %d" % (S_M + 5, SMI + mi, 56 * 1024))
        g("s_add_u32 s%d, s%d, s%d" % (S_M + 5, S_M + 5, S_M + 4))
        for j in range(7):
            g("s_add_u32 s%d, s%d, s%d" % (S_M + 2, S_M + 5, S_J + j))
            g.vmem("buffer_load_dwordx4 %s, v3, %s, s%d offen sc1" % (vr(HF + 28 * mi + 4 * j, 4), SRDW(S_WS), S_M + 2), "h%d_%d" % (mi, j))
    g("s_lshl_b32 s%d, s%d, 16" % (S_T0, S_DSK))
    g("s_and_b32 s%d, s%d, 0xffff0000" % (S_T1, S_DSK))
    g("s_waitcnt lgkmcnt(0)")
    UF = 116
    for ch in range(2):
        b = P + 16 * ch
        for r in range(4):
            g("v_add_f32 v%d, v%d, v%d" % (b + r, b + r, b + 4 + r))
            g("v_add_f32 v%d, v%d, v%d" % (b + 8 + r, b + 8 + r, b + 12 + r))
        for r in range(4):
            g("v_add_f32 v%d, v%d, v%d" % (b + r, b + r, b + 8 + r))
        for k in range(2):
            g("v_lshlrev_b32 v%d, 16, v%d" % (UF + 2 * k, U + 2 * ch + k))
            g("v_and_b32 v%d, 0xffff0000, v%d" % (UF + 2 * k + 1, U + 2 * ch + k))
        for r in range(4):
            g("v_mul_f32 v%d, s%d, v%d" % (UF + r, (S_T0, S_T1)[ch], UF + r))
        for r in range(4):
            g("v_cvt_pk_bf16_f32 v%d, v%d, v%d" % (b + 4 + r, b + r, UF + r))
        for r in range(4):
            g("v_lshlrev_b32 v%d, 16, v%d" % (b + r, b + 4 + r))
            g("v_and_b32 v%d, 0xffff0000, v%d" % (b + 4 + r, b + 4 + r))
        for r in range(4):
            g("v_add_f32 v%d, v%d, v%d" % (b + r, b + r, b + 4 + r))
    AOR = 120
    for r in range(4):
        g("v_cvt_pk_bf16_f32 v%d, v%d, v%d" % (AOR + r, P + r, P + 16 + r))
    g("v_lshlrev_b32 v%d, 4, v0" % VT)
    g("s_mul_i32 s%d, s2, %d" % (S_T0, AOP))
    g("s_add_u32 s%d, s%d, %d" % (S_T0, S_T0, WS_AO))
    g.vmem("buffer_store_dwordx4 %s, v%d, %s, s%d offen sc1" % (vr(AOR, 4), VT, SRDW(S_WS), S_T0), "ao")
    g.stamp(9)
    hload(0)
    hload(1)
    XT = 132
    g("v_lshrrev_b32 v%d, 3, v1" % VT2)
    g("v_lshlrev_b32 v%d, 10, v%d" % (VT2, VT2))
    g("v_and_b32 v12, 7, v1")
    g("v_lshl_add_u32 v12, v12, 4, v%d" % VT2)
    g("s_lshl_b32 s%d, s%d, 16" % (S_M + 3, S_RT))
    g("s_lshl_b32 s%d, s%d, 13" % (S_T1, S_WAVE))
    g("s_add_u32 s%d, s%d, s%d" % (S_M + 3, S_M + 3, S_T1))
    g("s_lshl_b32 s%d, s%d, 7" % (S_T1, S_NT))
    g("s_add_u32 s%d, s%d, s%d" % (S_M + 3, S_M + 3, S_T1))
    RA0, RA1 = 4, 5
    g("v_and_b32 v8, 15, v1")
    g("v_lshrrev_b32 v%d, 4, v1" % VT2)
    g("v_lshrrev_b32 v6, 5, v1")
    g("v_lshl_add_u32 v6, v6, 2, v8")
    g("v_add_u32 v7, 8, v6")
    g("v_and_b32 v6, 15, v6")
    g("v_and_b32 v7, 15, v7")
    g("v_lshl_add_u32 v6, v%d, 4, v6" % VT2)
    g("v_lshl_add_u32 v7, v%d, 4, v7" % VT2)
    g("s_lshl_b32 s%d, s%d, 14" % (S_T1, S_WAVE))
    g("v_lshl_add_u32 v%d, v6, 4, s%d" % (RA0, S_T1))
    g("v_lshl_add_u32 v%d, v7, 4, s%d" % (RA1, S_T1))
    accs = [128, 16, 44, 72]
    XT = 8
    def redw(mi):
        g("s_lshl_b32 s%d, s%d, 12" % (S_T1, SMI + mi))
        g("v_add_u32 v6, s%d, v%d" % (S_T1, RA0))
        g("v_add_u32 v7, s%d, v%d" % (S_T1, RA1))
        for c in range(4):
            g("ds_write_b128 v%d, %s offset:%d" % ((6, 7)[c & 1], vr(accs[mi] + 4 * c, 4), c * 1024))
    XT, AOT = 32, 36
    AOG = [128, 132, 136, 140, 16, 20, 24, 28]
    def ao_body():
        g("v_lshrrev_b32 v%d, 4, v1" % VT)
        g("v_and_b32 v%d, 15, v1" % VT2)
        g("v_mul_u32_u24 v8, %d, v%d" % (AOP, VT))
        g("v_lshl_add_u32 v8, v%d, 4, v8" % VT2)
        g("s_mul_i32 s%d, s%d, %d" % (S_T0, S_NT, 32 * AOP))
        g("s_lshl_b32 s%d, s%d, 8" % (S_T1, S_RT))
        g("s_add_u32 s%d, s%d, s%d" % (S_T0, S_T0, S_T1))
        g("s_add_u32 s%d, s%d, %d" % (S_T0, S_T0, WS_AO))
        for k in range(8):
            g.vmem("buffer_load_dwordx4 %s, v8, %s, s%d offen sc1" % (vr(AOG[k], 4), SRDW(S_WS), S_T0), "0:aot")
            if k < 7:
                g("s_add_u32 s%d, s%d, %d" % (S_T0, S_T0, 4 * AOP))
        g("v_mul_u32_u24 v8, 272, v%d" % VT)
        g("v_lshl_add_u32 v8, v%d, 4, v8" % VT2)
        g("v_add_u32 v8, %d, v8" % AOL)
    g.wait_vm("ao")
    g("s_barrier")
    publish(g, pub_ao, VT2)
    hload(2)
    for mi in range(4):
        a0 = accs[mi]
        for j in range(7):
            g.wait_vm("h%d_%d" % (mi, j))
            for c in range(4):
                a = a0 + 4 * c
                g("v_mfma_f32_16x16x32_bf16 %s, %s, %s, %s" % (vr(a, 4), vr(W2F + 16 * j + 4 * c, 4), vr(HF + 28 * mi + 4 * j, 4), "0" if j == 0 else vr(a, 4)))
            if mi == 1 and j == 1:
                flag_issue(g, VFL, (S_NT, 17))
                hload(3)
                g.vmem("buffer_load_dwordx4 %s, v12, %s, s%d offen" % (vr(XT, 4), SRDW(S_X), S_M + 3), "xt")
            if j == 2 and mi > 0:
                redw(mi - 1)
        if mi == 2:
            g("s_waitcnt lgkmcnt(0)")
            flag_check(g, VFL, 32, body=ao_body)
    g.stamp(10)
    g("v_lshrrev_b32 v%d, 3, v1" % VT)
    g("s_and_b32 s%d, s%d, 1" % (S_T0, S_WAVE))
    g("s_lshl_b32 s%d, s%d, 3" % (S_T0, S_T0))
    g("v_add_u32 v%d, s%d, v%d" % (VT, S_T0, VT))
    g("v_and_b32 v%d, 3, v1" % VT2)
    g("v_lshl_add_u32 v9, v%d, 2, v%d" % (VT2, VT))
    g("v_and_b32 v9, 15, v9")
    g("v_and_b32 v%d, 1, v1" % VT2)
    g("v_lshl_add_u32 v9, v%d, 5, v9" % VT2)
    g("v_lshlrev_b32 v9, 4, v9")
    g("v_bfe_u32 v%d, v1, 1, 2" % VT2)
    g("v_lshl_add_u32 v9, v%d, 10, v9" % VT2)
    g("s_lshr_b32 s%d, s%d, 1" % (S_T0, S_WAVE))
    g("s_lshl_b32 s%d, s%d, 12" % (S_T0, S_T0))
    g("v_add_u32 v9, s%d, v9" % S_T0)
    g("v_add_u32 v10, 0x10000, v9")
    redw(3)
    g("v_and_b32 v%d, 7, v1" % VT2)
    g("v_mul_u32_u24 v11, 1088, v%d" % VT2)
    g("v_lshrrev_b32 v%d, 3, v1" % VT2)
    g("v_lshl_add_u32 v11, v%d, 2, v11" % VT2)
    g("s_lshl_b32 s%d, s%d, 5" % (S_T0, S_WAVE))
    g("s_add_u32 s%d, s%d, %d" % (S_T0, S_T0, AOL))
    g("v_add_u32 v11, s%d, v11" % S_T0)
    g.wait_vm("xt")
    sk = g.newlabel("AOW")
    g("s_cmp_lg_u32 s%d, 0" % S_WAVE)
    g("s_cbranch_scc1 %s" % sk)
    g("s_waitcnt vmcnt(0)")
    for k in range(8):
        g("ds_write_b128 v8, %s offset:%d" % (vr(AOG[k], 4), 4 * 272 * k))
    g.label(sk)
    g("s_waitcnt lgkmcnt(0)")
    g("s_barrier")
    g.stamp(11)
    R = 144
    for w in range(8):
        for hh in range(2):
            g("ds_read_b128 %s, v%d offset:%d" % (vr(R + 8 * w + 4 * hh, 4), 10 if w >= 4 else 9, (w & 3) * 16384 + hh * 256))
    for j in range(4):
        g("ds_read_b32 v%d, v11 offset:%d" % (AOT + j, 272 * j))
    T = 48
    for k in range(4):
        g("v_lshlrev_b32 v%d, 16, v%d" % (T + 2 * k, XT + k))
        g("v_and_b32 v%d, 0xffff0000, v%d" % (T + 2 * k + 1, XT + k))
    g("s_waitcnt lgkmcnt(0)")
    for step in (32, 16, 8):
        for b in range(0, step, 8):
            for r in range(8):
                g("v_add_f32 v%d, v%d, v%d" % (R + b + r, R + b + r, R + b + step + r))
    for k in range(4):
        g("v_lshlrev_b32 v%d, 16, v%d" % (T + 8 + 2 * k, AOT + k))
        g("v_and_b32 v%d, 0xffff0000, v%d" % (T + 8 + 2 * k + 1, AOT + k))
    for r in range(8):
        g("v_add_f32 v%d, v%d, v%d" % (T + r, T + r, T + 8 + r))
    for r in range(8):
        g("v_cvt_pk_bf16_f32 v%d, v%d, v%d" % (T + 8 + r, T + r, R + r))
    for r in range(8):
        g("v_lshlrev_b32 v%d, 16, v%d" % (T + r, T + 8 + r))
        g("v_and_b32 v%d, 0xffff0000, v%d" % (T + 8 + r, T + 8 + r))
    for r in range(8):
        g("v_add_f32 v%d, v%d, v%d" % (T + r, T + r, T + 8 + r))
    for k in range(4):
        g("v_cvt_pk_bf16_f32 v%d, v%d, v%d" % (R + k, T + 2 * k, T + 2 * k + 1))
    g("buffer_store_dwordx4 %s, v12, %s, s%d offen" % (vr(R, 4), SRDW(S_OUT), S_M + 3))
    if g.ts:
        g.stamp(12)
        g.stamp(13)
        g("s_memrealtime s[98:99]")
        g("s_waitcnt lgkmcnt(0)")
        g("v_writelane_b32 v%d, s98, 14" % g.VTS)
        g("s_lshl_b32 s%d, s2, 11" % S_T0)
        g("s_lshl_b32 s%d, s%d, 8" % (S_T1, S_WAVE))
        g("s_add_u32 s%d, s%d, s%d" % (S_T0, S_T0, S_T1))
        g("s_add_u32 s%d, s%d, %d" % (S_T0, S_T0, WS_TS))
        g("buffer_store_dword v%d, v2, %s, s%d offen" % (g.VTS, SRDW(S_WS), S_T0))


HEADER = open("parallel_sum__ssm_conv_s4d__glu_gated_swiglu__prompt.s.ref").read().split("; Override launch")[0]


def emit(ts=False):
    g = gen(ts)
    body = "\n".join(g.L)
    return HEADER + """; @launch grid=(256,1,1) block=(512,1,1) lds=163840
.amdgcn_target "amdgcn-amd-amdhsa--gfx950"
.text
.globl %s
.p2align 8
.type %s,@function
%s:
%s
.fill 3072, 4, 0xBF800000
.section .rodata,"a"
.p2align 6
.amdhsa_kernel %s
  .amdhsa_next_free_vgpr 256
  .amdhsa_next_free_sgpr 102
  .amdhsa_accum_offset 256
  .amdhsa_group_segment_fixed_size 0
  .amdhsa_kernarg_size 112
  .amdhsa_user_sgpr_count 2
  .amdhsa_user_sgpr_kernarg_segment_ptr 1
  .amdhsa_system_sgpr_workgroup_id_x 1
.end_amdhsa_kernel
""" % (KNAME, KNAME, KNAME, body, KNAME)


if __name__ == "__main__":
    ts = "--ts" in sys.argv
    for a in sys.argv[1:]:
        if a.startswith("--") and "=" in a:
            k, v = a[2:].split("=")
            OPT[k] = int(v)
    out = [a for a in sys.argv[1:] if not a.startswith("--")]
    path = out[0] if out else "k.s"
    open(path, "w").write(emit(ts))
    print("wrote", path)
```

```python
import sys, struct

KNAME = "parallel_sum__ssm_conv_s4d__glu_gated_swiglu__prompt_kernel"

WS_XNT = 0
XP = 16384 + 128
WS_STATS = 3 << 20
WS_CS = WS_STATS + 32768
WS_FLG = WS_STATS + 65536
FP = 384
WS_H = 4 << 20
WS_AO = 12 << 20
AOP = 8192 + 128
WS_TS = 15 << 20
WS_SIZE = 16 << 20

KV_PITCH = 3072
KV_BIAS = 0x3F7F
KV_ZERO = 0x4500 - KV_BIAS + 1
KV_DUMP = KV_ZERO + 1

LOG2E = 0x3FB8AA3B
NLOG2E = 0xBFB8AA3B
INV2PI = 0x3E22F983

XBASE, WBASE = 0, 49152
KC = 114688
UB = KC + 33280
KVT = 32768
TP = 272
TUNIT = 57 * TP
W2P = 14336
AOL = 131072

OPT = dict(auxpf=0, dbgtime=0)


class Gen:
    def __init__(self, ts=False):
        self.L = []
        self.vm = []
        self.ts = ts
        self.lbl = 0

    def __call__(self, s):
        self.L.append("    " + s)

    def label(self, l):
        self.L.append(l + ":")

    def newlabel(self, p="L"):
        self.lbl += 1
        return "%s_%d" % (p, self.lbl)

    def vmem(self, s, tag):
        self(s)
        self.vm.append(tag)

    def wait_vm(self, tags, extra=""):
        if isinstance(tags, str):
            tags = [tags]
        last = -1
        for i, t in enumerate(self.vm):
            if t in tags:
                last = i
        if last < 0:
            if extra:
                self("s_waitcnt " + extra)
            return
        w0 = any(t.startswith("0:") for t in tags)
        n = len([t for t in self.vm[last + 1:] if w0 or not t.startswith("0:")])
        assert n <= 63, n
        self("s_waitcnt vmcnt(%d) %s" % (n, extra))
        if w0:
            self.vm = [t for i, t in enumerate(self.vm) if i > last or not t.startswith("0:")]
        else:
            self.vm = self.vm[last + 1:]

    def wait_vm_all(self, extra=""):
        self("s_waitcnt vmcnt(0) %s" % extra)
        self.vm = []

    def stamp(self, idx):
        if not self.ts:
            return
        self("s_memtime s[98:99]")
        self("s_waitcnt lgkmcnt(0)")
        self("v_writelane_b32 v%d, s98, %d" % (self.VTS, idx))


def vr(a, n=1):
    return "v%d" % a if n == 1 else "v[%d:%d]" % (a, a + n - 1)


def fimm(k):
    if k == 0:
        return "0"
    if k in (1, 2, 4):
        return "%d.0" % k
    return "0x%08x" % struct.unpack("<I", struct.pack("<f", float(k)))[0]


S_X, S_W1, S_W3, S_W2, S_OUT, S_DBG, S_WS = 4, 8, 12, 16, 20, 24, 28
S_WAVE, S_MT, S_FT, S_ROT = 32, 33, 34, 35
S_WOFF = 36
S_XOFF = 44
S_J = 44
S_WK = 52
S_T0, S_T1, S_T2, S_T3 = 53, 54, 55, 56
S_RT, S_NT = 57, 58
S_LDT = 59
S_EX = 60
S_CNT = 62
S_DSK = 63
P_LAR, P_AIM, P_CR, P_CI, P_LDT, P_DSK = 66, 68, 70, 72, 74, 76
S_M = 92
VT, VT2 = 13, 14
W2F = 144
SRDW = lambda s: "s[%d:%d]" % (s, s + 3)


def srd(g, d, p, nbytes):
    g("s_mov_b32 s%d, s%d" % (d, p))
    g("s_mov_b32 s%d, s%d" % (d + 1, p + 1))
    g("s_mov_b32 s%d, 0x%x" % (d + 2, nbytes))
    g("s_mov_b32 s%d, 0x00020000" % (d + 3))


S_NONCE = 90
S_FA = 91


def w0(g):
    sk = g.newlabel("W0")
    g("s_cmp_lg_u32 s%d, 0" % S_WAVE)
    g("s_cbranch_scc1 %s" % sk)
    return sk


def nonce_write(g):
    sk = g.newlabel("NW")
    g("s_or_b32 s%d, s2, s%d" % (S_CNT, S_WAVE))
    g("s_cmp_lg_u32 s%d, 0" % S_CNT)
    g("s_cbranch_scc1 %s" % sk)
    g("s_memrealtime s[96:97]")
    g("s_waitcnt lgkmcnt(0)")
    g("s_or_b32 s%d, s96, 1" % S_CNT)
    g("v_mov_b32 v%d, s%d" % (VT2, S_CNT))
    g("s_mov_b64 exec, 1")
    g("buffer_store_dword v%d, v2, %s, 0 offen sc1" % (VT2, SRDW(S_DBG)))
    g("s_mov_b64 exec, -1")
    g.label(sk)


def nonce_issue(g, vf):
    sk = w0(g)
    g.vmem("buffer_load_dword v%d, off, %s, 0 sc1" % (vf, SRDW(S_DBG)), "0:nonce")
    g.label(sk)


def nonce_check(g, vf):
    sk = w0(g)
    lp = g.newlabel("NP")
    g.wait_vm("0:nonce")
    g("s_mov_b32 s%d, 0" % S_CNT)
    g.label(lp)
    g("v_readfirstlane_b32 s%d, v%d" % (S_NONCE, vf))
    g("s_add_u32 s%d, s%d, 1" % (S_CNT, S_CNT))
    g("s_nop 2")
    g("s_cmp_lg_u32 s%d, 0" % S_NONCE)
    g("s_cbranch_scc1 %s" % sk)
    g("s_cmp_ge_u32 s%d, 0x4000" % S_CNT)
    g("s_cbranch_scc1 %s" % sk)
    g("s_sleep 8")
    g("buffer_load_dword v%d, off, %s, 0 sc1" % (vf, SRDW(S_DBG)))
    g("s_waitcnt vmcnt(0)")
    g("s_branch %s" % lp)
    g.label(sk)


def flag_issue(g, vf, line, tag="0:flag"):
    sk = w0(g)
    sg, c = line
    if sg is None:
        g("s_mov_b32 s%d, %d" % (S_FA, WS_FLG + c * FP))
    else:
        g("s_mul_i32 s%d, s%d, %d" % (S_FA, sg, FP))
        g("s_add_u32 s%d, s%d, %d" % (S_FA, S_FA, WS_FLG + c * FP))
    g.vmem("buffer_load_dword v%d, v2, %s, s%d offen sc1" % (vf, SRDW(S_WS), S_FA), tag)
    g.label(sk)


def flag_check(g, vf, count, tag="0:flag", body=None):
    lp = g.newlabel("POLL")
    ok = g.newlabel("POLLK")
    done = w0(g)
    g.wait_vm(tag)
    g("s_mov_b32 s%d, 0" % S_CNT)
    g.label(lp)
    g("v_cmp_ne_u32 vcc, s%d, v%d" % (S_NONCE, vf))
    g("s_add_u32 s%d, s%d, 1" % (S_CNT, S_CNT))
    g("s_and_b32 s%d, vcc_lo, 0x%x" % (S_EX, (1 << count) - 1))
    g("s_cbranch_scc0 %s" % ok)
    g("s_cmp_ge_u32 s%d, 0x4000" % S_CNT)
    g("s_cbranch_scc1 %s" % ok)
    g("s_sleep 4")
    g("buffer_load_dword v%d, v2, %s, s%d offen sc1" % (vf, SRDW(S_WS), S_FA))
    g("s_waitcnt vmcnt(0)")
    g("s_branch %s" % lp)
    g.label(ok)
    if body:
        body()
    g.label(done)


def publish(g, addr_code, vtmp):
    sk = w0(g)
    addr_code(g)
    g("v_mov_b32 v%d, s%d" % (vtmp, S_NONCE))
    g("s_mov_b64 exec, 1")
    g("buffer_store_dword v%d, off, %s, s%d sc1" % (vtmp, SRDW(S_WS), S_CNT))
    g("s_mov_b64 exec, -1")
    g.label(sk)


def pub_aux(g):
    g("s_lshl_b32 s%d, s2, 2" % S_CNT)
    g("s_add_u32 s%d, s%d, %d" % (S_CNT, S_CNT, WS_FLG))


def pub_h(g):
    g("s_mul_i32 s%d, s%d, %d" % (S_CNT, S_MT, FP))
    g("s_lshl_b32 s%d, s%d, 2" % (S_EX, S_FT))
    g("s_add_u32 s%d, s%d, s%d" % (S_CNT, S_CNT, S_EX))
    g("s_add_u32 s%d, s%d, %d" % (S_CNT, S_CNT, WS_FLG + FP))


def pub_ao(g):
    g("s_mul_i32 s%d, s%d, %d" % (S_CNT, S_NT, FP))
    g("s_and_b32 s%d, s2, 31" % S_EX)
    g("s_lshl_b32 s%d, s%d, 2" % (S_EX, S_EX))
    g("s_add_u32 s%d, s%d, s%d" % (S_CNT, S_CNT, S_EX))
    g("s_add_u32 s%d, s%d, %d" % (S_CNT, S_CNT, WS_FLG + 17 * FP))


def rnd_bf16(g, d, s):
    g("v_cvt_pk_bf16_f32 v%d, v%d, v%d" % (d, s, s))
    g("v_lshlrev_b32 v%d, 16, v%d" % (d, d))


def cmul1(d, a, b):
    return "v_pk_mul_f32 %s, %s, %s op_sel:[0,0] op_sel_hi:[0,1]" % (vr(d, 2), vr(a, 2), vr(b, 2))


def cmul2(d, a, b):
    return "v_pk_fma_f32 %s, %s, %s, %s op_sel:[1,1,0] op_sel_hi:[1,0,1] neg_lo:[0,1,0]" % (vr(d, 2), vr(a, 2), vr(b, 2), vr(d, 2))


def aux_need(g, vn, bits):
    g("v_mov_b32 v%d, 0x%08x" % (vn, bits * 0x01010101))
    g("v_cmp_gt_u32 vcc, 8, v1")
    g("s_nop 1")
    g("v_cndmask_b32 v%d, 0, v%d, vcc" % (vn, vn))


ROWS = {}
for _g in range(4):
    for _r in range(4):
        ROWS[(0, 4 * _g + _r)] = 4 * (_g & 1) + 128 * (_g >> 1) + _r
        ROWS[(1, 4 * _g + _r)] = (256 + 128 * (_g & 1) + 2 * _r) if _g < 2 else (512 + 4 * (_g & 1) + 128 * _r)
        ROWS[(2, 4 * _g + _r)] = 1024 + 512 * _g + 128 * _r
POS2ROW = {p: 16 + 16 * t + m for (t, m), p in ROWS.items() if p <= 2048}
assert len(POS2ROW) == 41 and max(POS2ROW.values()) == 56

PRM = 240


def kprologue(g, nyounger):
    Q = 16
    LAR, AIM, CR, CI = Q, Q + 1, Q + 2, Q + 3
    DT, ER, TU = Q + 4, Q + 5, Q + 6
    TA, TB = Q, Q + 1
    VW = 3 + 0
    VWR = Q + 7
    g("s_lshr_b32 s%d, s%d, 1" % (S_T0, S_WAVE))
    g("s_mul_i32 s%d, s%d, %d" % (S_T1, S_T0, TUNIT))
    g("s_add_u32 s%d, s%d, %d" % (S_T1, S_T1, KC))
    g("s_cmp_eq_u32 s%d, 3" % S_T0)
    g("s_cselect_b32 s%d, %d, s%d" % (S_T1, WBASE + 3 * 16384, S_T1))
    g("v_add_u32 v%d, s%d, v2" % (VWR, S_T1))
    g("s_and_b32 s%d, s%d, 1" % (S_T0, S_T0))
    g("s_lshl_b32 s%d, s%d, 4" % (S_T0, S_T0))
    g("s_sub_u32 s%d, 16, s%d" % (S_T0, S_T0))
    g("s_lshr_b32 s%d, s%d, 2" % (S_T2, S_WAVE))
    g("s_lshl_b32 s%d, s%d, 4" % (S_T2, S_T2))
    g("s_sub_u32 s%d, 16, s%d" % (S_T2, S_T2))
    g("s_waitcnt vmcnt(%d) lgkmcnt(0)" % nyounger)
    g.stamp(20)
    g("s_lshl_b32 s%d, s%d, s%d" % (S_T2, S_LDT, S_T2))
    g("s_and_b32 s%d, s%d, 0xffff0000" % (S_T2, S_T2))
    for k in range(4):
        g("v_lshlrev_b32 v%d, s%d, v%d" % (Q + k, S_T0, PRM + k))
    for k in range(4):
        g("v_and_b32 v%d, 0xffff0000, v%d" % (Q + k, Q + k))
    g("v_mov_b32 v%d, 0x%x" % (DT, LOG2E))
    g("v_mul_f32 v%d, s%d, v%d" % (DT, S_T2, DT))
    g("v_mul_f32 v%d, 0x%x, v%d" % (ER, LOG2E, LAR))
    g("v_exp_f32 v%d, v%d" % (DT, DT))
    g("v_exp_f32 v%d, v%d" % (ER, ER))
    g("s_nop 0")
    rnd_bf16(g, DT, DT)
    rnd_bf16(g, ER, ER)
    g("v_mul_f32 v%d, v%d, v%d" % (ER, ER, DT))
    g("v_mul_f32 v%d, v%d, v%d" % (TU, AIM, DT))
    g("v_mul_f32 v%d, 0x%x, v%d" % (ER, NLOG2E, ER))
    g("v_mul_f32 v%d, 0x%x, v%d" % (TU, INV2PI, TU))

    def direct(d, p, conj=False, t0=TA, t1=TB):
        g("v_mul_f32 v%d, %s, v%d" % (t0, fimm(p), ER))
        g("v_mul_f32 v%d, %s, v%d" % (t1, fimm(p), TU))
        g("v_exp_f32 v%d, v%d" % (t0, t0))
        g("v_fract_f32 v%d, v%d" % (t1, t1))
        g("v_cos_f32 v%d, v%d" % (d, t1))
        g("v_sin_f32 v%d, v%d" % (d + 1, t1))
        g("s_nop 0")
        g("v_mul_f32 v%d, v%d, v%d" % (d, d, t0))
        g("v_mul_f32 v%d, %sv%d, v%d" % (d + 1, "-" if conj else "", d + 1, t0))

    def run(chains, tmp0):
        streams = []
        ti = [0]
        for ci, c in enumerate(chains):
            s = []
            for op in c:
                if op[0] == "mul":
                    s.append(cmul1(*op[1:]))
                    s.append(cmul2(*op[1:]))
                else:
                    t = tmp0 + 2 * ci + (ti[0] & 1)
                    ti[0] += 1
                    s.append("v_cvt_pk_bf16_f32 v%d, v%d, v%d" % (t, op[2], op[2] + 1))
                    s.append("ds_write_b32 v%d, v%d offset:%d" % (VWR, t, op[1] * TP))
            streams.append(s)
        while any(streams):
            for s in streams:
                if s:
                    g(s.pop(0))

    g("s_bitcmp1_b32 s%d, 0" % S_WAVE)
    g("s_cbranch_scc1 L_KB")
    E = {}
    nxt = [Q + 8]
    def al(n):
        E[n] = nxt[0]; nxt[0] += 2
        return E[n]
    GA, GB = al("ga"), al("gb")
    g("v_add_f32 v%d, v%d, v%d" % (DT, DT, DT))
    g("v_mul_f32 v%d, v%d, v%d" % (GA, CR, DT))
    g("v_mul_f32 v%d, -v%d, v%d" % (GA + 1, CI, DT))
    direct(al(8), 8, True); direct(al(1), 1); direct(al(128), 128)
    direct(al(64), 64, True)
    GC, GD = al("gc"), al("gd")
    for p in range(2, 8):
        al(p)
    PA, PB = al("pa"), al("pb")
    T0 = nxt[0]
    c1, cur, nx = [], GA, GB
    c2 = [("mul", GC, GA, E[64])]
    for b in range(8):
        c1.append(("put", b, cur))
        if b < 7:
            c1.append(("mul", nx, cur, E[8])); cur, nx = nx, cur
    cur, nx = GC, GD
    for b in range(8, 16):
        c2.append(("put", b, cur))
        if b < 15:
            c2.append(("mul", nx, cur, E[8])); cur, nx = nx, cur
    c3 = [("put", POS2ROW[1], E[1]), ("put", POS2ROW[128], E[128])]
    for p in range(2, 8):
        c3.append(("mul", E[p], E[p - 1], E[1]))
        c3.append(("put", POS2ROW[p], E[p]))
    c4 = []
    g("v_mov_b32 v%d, 0x00003f80" % TA)
    g("ds_write_b32 v%d, v%d offset:%d" % (VWR, TA, POS2ROW[0] * TP))
    run([c2, c1, c3], T0)
    ca, cb = [], []
    for p in range(1, 8):
        (ca if p & 1 else cb).extend([("mul", PA if p & 1 else PB, E[p], E[128]), ("put", POS2ROW[128 + p], PA if p & 1 else PB)])
    run([ca, cb], T0)
    g("s_branch L_KJ")
    g.label("L_KB")
    E = {}
    nxt = [Q + 8]
    direct(al(2), 2); direct(al(128), 128); direct(al(1024), 1024)
    al(4); al(6)
    for h in list(range(2, 8)) + list(range(9, 17)):
        al(128 * h)
    PA, PB = al("pa"), al("pb")
    T0 = nxt[0]
    assert T0 + 8 <= 128
    c1 = []
    for h in range(2, 8):
        c1.append(("mul", E[128 * h], E[128 * (h - 1)], E[128])); c1.append(("put", POS2ROW[128 * h], E[128 * h]))
    c2 = [("put", POS2ROW[1024], E[1024])]
    for h in range(9, 17):
        c2.append(("mul", E[128 * h], E[128 * (h - 1)], E[128])); c2.append(("put", POS2ROW[128 * h], E[128 * h]))
    c3 = [("mul", E[4], E[2], E[2]), ("mul", E[6], E[4], E[2])]
    run([c1, c2, c3], T0)
    prods = [p for p in sorted(POS2ROW) if p >= 256 and (p & 127)]
    ca, cb = [], []
    for i, p in enumerate(prods):
        d = (PA, PB)[i & 1]
        (ca, cb)[i & 1].extend([("mul", d, E[p & 127], E[p & ~127]), ("put", POS2ROW[p], d)])
    run([ca, cb], T0)
    g.label("L_KJ")
    g.stamp(21)
    VR0, VR1 = 16, 17
    OA = 18
    g("v_and_b32 v%d, 15, v1" % VT)
    g("v_lshrrev_b32 v%d, 4, v1" % VT2)
    g("v_mul_u32_u24 v%d, %d, v%d" % (VR0, TP, VT))
    g("v_lshl_add_u32 v%d, v%d, 4, v%d" % (VR0, VT2, VR0))
    g("s_lshr_b32 s%d, s%d, 2" % (S_T2, S_WAVE))
    g("s_cmp_eq_u32 s%d, 0" % S_T2)
    g("s_mov_b32 s%d, %d" % (S_T0, KC + 2 * TUNIT))
    g("s_cmov_b32 s%d, %d" % (S_T0, KC))
    g("s_mov_b32 s%d, %d" % (S_T1, WBASE + 3 * 16384))
    g("s_cmov_b32 s%d, %d" % (S_T1, KC + TUNIT))
    g("v_add_u32 v%d, s%d, v%d" % (VR1, S_T1, VR0))
    g("v_add_u32 v%d, s%d, v%d" % (VR0, S_T0, VR0))
    g("s_and_b32 s%d, s%d, 3" % (S_T3, S_WAVE))
    g("s_mul_i32 s%d, s%d, %d" % (S_T0, S_T3, 16 * TP))
    g("v_add_u32 v22, s%d, v%d" % (S_T0, VR0))
    g("v_add_u32 v23, s%d, v%d" % (S_T0, VR1))
    tabs = [(0, 256, 1024), (128, 512, 2048), (4, 128, 512), (4, 4, 512), (1, 2, 128), (1, 128, 128)]
    SB = 84
    for i, (a, b, c) in enumerate(tabs):
        g("s_mov_b32 s%d, %d" % (SB + i, a))
    g("s_cmp_eq_u32 s%d, 1" % S_T3)
    for i, (a, b, c) in enumerate(tabs):
        g("s_cmov_b32 s%d, %d" % (SB + i, b))
    g("s_cmp_eq_u32 s%d, 2" % S_T3)
    for i, (a, b, c) in enumerate(tabs):
        g("s_cmov_b32 s%d, %d" % (SB + i, c))
    g("v_cmp_le_u32 vcc, 32, v1")
    for i in range(3):
        g("v_mov_b32 v%d, s%d" % (24 + i, SB + 2 * i))
        g("v_mov_b32 v%d, s%d" % (27 + i, SB + 2 * i + 1))
    for i in range(3):
        g("v_cndmask_b32 v%d, v%d, v%d, vcc" % (24 + i, 24 + i, 27 + i))
    g("v_and_b32 v27, 1, v%d" % VT2)
    g("v_mad_u32_u24 v24, v27, v25, v24")
    g("v_lshl_add_u32 v24, v%d, 3, v24" % VT)
    g("s_mul_i32 s%d, s%d, %d" % (S_T1, S_T2, KV_PITCH))
    g("s_add_u32 s%d, s%d, %d" % (S_T1, S_T1, KVT - 2 * KV_BIAS))
    g("v_mov_b32 v28, %d" % (KV_BIAS + KV_DUMP))
    for r in range(4):
        o = OA + r
        g("v_cvt_f32_u32 v%d, v24" % o)
        g("v_cmp_lt_u32 vcc, 2048, v24")
        g("v_lshrrev_b32 v%d, 16, v%d" % (o, o))
        g("v_max_u32 v%d, %d, v%d" % (o, KV_BIAS, o))
        g("v_cndmask_b32 v%d, v%d, v28, vcc" % (o, o))
        g("v_lshl_add_u32 v%d, v%d, 1, s%d" % (o, o, S_T1))
        if r < 3:
            g("v_add_u32 v24, v24, v26")
    g("s_waitcnt lgkmcnt(0)")
    g.stamp(22)
    g("s_barrier")
    g.stamp(23)
    sk = g.newlabel("KT3")
    g("s_cmp_eq_u32 s%d, 3" % S_T3)
    g("s_cbranch_scc1 %s" % sk)
    FB, FA, DA = 32, 64, 96
    for hf in range(2):
        for ks in range(4):
            g("ds_read_b128 %s, v%d offset:%d" % (vr(FB + 16 * hf + 4 * ks, 4), (VR0, VR1)[hf], 64 * ks))
            g("ds_read_b128 %s, v%d offset:%d" % (vr(FA + 16 * hf + 4 * ks, 4), (22, 23)[hf], 16 * TP + 64 * ks))
    for i in range(8):
        g("s_waitcnt lgkmcnt(%d)" % (14 - 2 * i))
        g("v_mfma_f32_16x16x32_bf16 %s, %s, %s, %s" % (vr(DA, 4), vr(FA + 4 * i, 4), vr(FB + 4 * i, 4), "0" if i == 0 else vr(DA, 4)))
    g("s_nop 7")
    g("s_nop 1")
    for r in range(4):
        g("v_cvt_pk_bf16_f32 v%d, v%d, v%d" % (DA + 4 + r, DA + r, DA + r))
        g("ds_write_b16 v%d, v%d" % (OA + r, DA + 4 + r))
    sk2 = g.newlabel("KT3E")
    g("s_branch %s" % sk2)
    g.label(sk)
    g("s_mul_i32 s%d, s%d, %d" % (S_T1, S_T2, KV_PITCH))
    g("s_add_u32 s%d, s%d, %d" % (S_T1, S_T1, KVT + 2 * KV_ZERO))
    g("v_mov_b32 v24, s%d" % S_T1)
    g("v_mov_b32 v25, 0")
    g("ds_write_b16 v24, v25")
    g.label(sk2)
    g.stamp(24)
    IX = 32
    g("v_and_b32 v%d, 255, v0" % VT)
    g("v_lshlrev_b32 v%d, 3, v%d" % (VT2, VT))
    g("v_sub_u32 v%d, 2047, v%d" % (VT2, VT2))
    g("v_cvt_f32_i32 v%d, v%d" % (VT2, VT2))
    g("s_mul_i32 s%d, s%d, %d" % (S_T1, S_T2, KV_PITCH))
    g("s_add_u32 s%d, s%d, %d" % (S_T1, S_T1, KVT - 2 * KV_BIAS))
    g("v_mov_b32 v44, %d" % KV_BIAS)
    g("v_mov_b32 v45, %d" % (KV_BIAS + KV_ZERO))
    for k in range(0, 12, 2):
        g("v_subrev_f32 v46, %s, v%d" % (fimm(k), VT2))
        g("v_subrev_f32 v47, %s, v%d" % (fimm(k + 1), VT2))
        g("v_cvt_pk_bf16_f32 v46, v46, v47")
        g("v_and_b32 v%d, 0xffff, v46" % (IX + k))
        g("v_lshrrev_b32 v%d, 16, v46" % (IX + k + 1))
    for k in range(11):
        g("v_med3_u32 v%d, v%d, v44, v45" % (IX + k, IX + k))
        g("v_lshl_add_u32 v%d, v%d, 1, s%d" % (IX + k, IX + k, S_T1))
    g("s_mul_i32 s%d, s%d, 16640" % (S_T1, S_T2))
    g("s_add_u32 s%d, s%d, %d" % (S_T1, S_T1, KC))
    g("v_lshl_add_u32 v46, v%d, 4, s%d" % (VT, S_T1))
    for r in range(4):
        g("v_mov_b32 v%d, 0" % (48 + r))
    g("s_waitcnt lgkmcnt(0)")
    g.stamp(25)
    g("s_barrier")
    g.stamp(26)
    D, O = 52, 64
    for k in range(11):
        g("ds_read_u16 v%d, v%d" % (D + k, IX + k))
    z6, z7 = g.newlabel("Z"), g.newlabel("Z")
    g("s_cmp_lg_u32 s%d, 6" % S_WAVE)
    g("s_cbranch_scc1 %s" % z6)
    g("v_lshrrev_b32 v47, 5, v1")
    g("v_lshlrev_b32 v47, 12, v47")
    g("v_lshl_add_u32 v47, v1, 4, v47")
    g("v_add_u32 v47, %d, v47" % UB)
    g("ds_write_b128 v47, v[48:51]")
    g.label(z6)
    g("s_cmp_lg_u32 s%d, 7" % S_WAVE)
    g("s_cbranch_scc1 %s" % z7)
    g("v_bfe_u32 v47, v1, 1, 3")
    g("v_mul_u32_u24 v47, 4160, v47")
    g("v_and_b32 v44, 1, v1")
    g("v_lshl_add_u32 v47, v44, 4, v47")
    g("v_add_u32 v47, %d, v47" % (KC + 4096))
    g("ds_write_b128 v47, v[48:51]")
    g.label(z7)
    g("s_waitcnt lgkmcnt(0)")
    for sft in range(4):
        for k in range(4):
            g("v_lshl_or_b32 v%d, v%d, 16, v%d" % (O + 4 * sft + k, D + sft + 2 * k + 1, D + sft + 2 * k))
        g("ds_write_b128 v46, %s offset:%d" % (vr(O + 4 * sft, 4), 4160 * sft))


def w2_setup(g, vd, va):
    g("v_lshrrev_b32 v%d, 4, v1" % VT)
    g("v_lshlrev_b32 v%d, 1, v%d" % (VT, VT))
    g("v_xor_b32 v%d, v%d, v1" % (VT, VT))
    g("v_and_b32 v%d, 7, v%d" % (VT, VT))
    g("v_lshrrev_b32 v%d, 3, v1" % VT2)
    g("v_lshlrev_b32 v%d, 10, v%d" % (vd, VT2))
    g("v_lshl_add_u32 v%d, v%d, 4, v%d" % (vd, VT, vd))
    g("s_mul_i32 s%d, s%d, %d" % (S_M, S_WAVE, 224 * 1024))
    g("s_lshl_b32 s%d, s%d, 7" % (S_M + 1, S_NT))
    g("s_add_u32 s%d, s%d, s%d" % (S_M, S_M, S_M + 1))
    g("s_mul_i32 s%d, s%d, %d" % (S_M + 1, S_WAVE, W2P))
    g("s_lshr_b32 s%d, s2, 2" % S_T0)
    g("s_and_b32 s%d, s%d, 6" % (S_T0, S_T0))
    g("s_and_b32 s%d, s2, 7" % S_T1)
    g("s_add_u32 s%d, s%d, s%d" % (S_T0, S_T0, S_T1))
    for j in range(7):
        if j:
            g("s_add_u32 s%d, s%d, 1" % (S_T0, S_T0))
        g("s_sub_u32 s%d, s%d, 7" % (S_T1, S_T0))
        g("s_cmp_ge_u32 s%d, 7" % S_T0)
        g("s_cselect_b32 s%d, s%d, s%d" % (S_T0, S_T1, S_T0))
        g("s_lshl_b32 s%d, s%d, 10" % (S_J + j, S_T0))
    g("v_and_b32 v%d, 3, v%d" % (VT2, VT2))
    g("v_lshlrev_b32 v%d, 5, v%d" % (VT2, VT2))
    g("v_lshrrev_b32 v%d, 2, v1" % VT)
    g("v_lshl_add_u32 v%d, v%d, 7, v%d" % (VT2, VT, VT2))
    g("v_and_b32 v%d, 3, v1" % VT)
    g("v_lshl_add_u32 v%d, v%d, 3, v%d" % (VT2, VT, VT2))
    g("v_add_u32 v%d, s%d, v%d" % (va, S_M + 1, VT2))
    for c in range(1, 4):
        g("v_xor_b32 v%d, %d, v%d" % (va + c, 32 * c, va))


def w2_dma(g, vd, j):
    g("s_lshl_b32 s%d, s%d, 5" % (S_M + 2, S_J + j))
    g("s_add_u32 s%d, s%d, s%d" % (S_M + 2, S_M + 2, S_M))
    for q in range(4):
        g("s_add_u32 m0, s%d, %d" % (S_M + 1, (j % 3) * 4096 + q * 1024))
        g("s_add_u32 s%d, s%d, %d" % (S_M + 2, S_M + 2, 8192 if q else 0))
        g.vmem("buffer_load_dwordx4 v%d, %s, s%d offen lds" % (vd, SRDW(S_W2), S_M + 2), "w2_%d" % j)


def w2_rd(g, va, j):
    g.wait_vm("w2_%d" % j)
    for c in range(4):
        d = W2F + 16 * j + 4 * c
        g("ds_read_b64_tr_b16 %s, v%d offset:%d" % (vr(d, 2), va + c, (j % 3) * 4096))
        g("ds_read_b64_tr_b16 %s, v%d offset:%d" % (vr(d + 2, 2), va + c, (j % 3) * 4096 + 2048))


def reduce8(g, p):
    g("s_nop 1")
    for i in range(4):
        g("v_permlane32_swap_b32 v%d, v%d" % (p + i, p + i + 4))
    g("s_nop 1")
    for i in range(4):
        g("v_add_f32 v%d, v%d, v%d" % (p + i, p + i, p + i + 4))
    g("s_nop 1")
    for i in range(2):
        g("v_permlane16_swap_b32 v%d, v%d" % (p + i, p + i + 2))
    g("s_nop 1")
    for i in range(2):
        g("v_add_f32 v%d, v%d, v%d" % (p + i, p + i, p + i + 2))
    for rot in (8, 4, 2, 1):
        g("s_nop 1")
        for i in range(2):
            g("v_add_f32_dpp v%d, v%d, v%d row_ror:%d row_mask:0xf bank_mask:0xf" % (p + i, p + i, p + i, rot))


V_W2D, V_W2A = 3, 4
UREG = 236
STR, CSR = 204, 220


def u_load(g):
    g("v_lshrrev_b32 v%d, 2, v0" % VT)
    g("v_mul_u32_u24 v%d, %d, v%d" % (VT, XP, VT))
    g("v_and_b32 v%d, 3, v0" % VT2)
    g("v_lshl_add_u32 v%d, v%d, 4, v%d" % (VT, VT2, VT))
    g("s_lshl_b32 s%d, s2, 6" % S_T1)
    g.vmem("buffer_load_dwordx4 %s, v%d, %s, s%d offen sc1" % (vr(UREG, 4), VT, SRDW(S_WS), S_T1), "u")


def u_store(g):
    g("v_lshrrev_b32 v%d, 2, v0" % VT)
    g("v_lshlrev_b32 v%d, 5, v%d" % (VT, VT))
    g("v_and_b32 v%d, 1, v0" % VT2)
    g("v_lshl_add_u32 v%d, v%d, 4, v%d" % (VT, VT2, VT))
    g("v_bfe_u32 v%d, v0, 1, 1" % VT2)
    g("v_mul_u32_u24 v%d, 4608, v%d" % (VT2, VT2))
    g("v_add3_u32 v%d, v%d, v%d, v%d" % (VT, VT, VT2, VT) if False else "v_add_u32 v%d, v%d, v%d" % (VT, VT, VT2))
    g("v_add_u32 v%d, %d, v%d" % (VT, UB + 512, VT))
    g.wait_vm("u")
    g("ds_write_b128 v%d, %s" % (VT, vr(UREG, 4)))


def gen(ts=False):
    g = Gen(ts)
    g.VTS = 15
    g("s_cmp_ge_u32 s2, 256")
    g("s_cbranch_scc1 L_END")
    if OPT["dbgtime"]:
        g("s_memtime s[98:99]")
        g("s_memrealtime s[100:101]")
    g("s_load_dwordx16 s[64:79], s[0:1], 0")
    g("s_load_dwordx8 s[80:87], s[0:1], 64")
    g("s_load_dwordx4 s[88:91], s[0:1], 96")
    g("s_getpc_b64 s[%d:%d]" % (S_M, S_M + 1))
    g("s_lshr_b32 s%d, s2, 3" % S_T1)
    g("s_and_b32 s%d, s%d, 3" % (S_T2, S_T1))
    g("s_lshl_b32 s%d, s%d, 13" % (S_T0, S_T2))
    g("v_lshlrev_b32 v3, 4, v0")
    g("v_add_u32 v3, s%d, v3" % S_T0)
    g.vmem("global_load_dwordx4 v[252:255], v3, s[%d:%d]" % (S_M, S_M + 1), "code")
    g("v_and_b32 v1, 63, v0")
    g("v_lshrrev_b32 v3, 6, v0")
    g("v_lshlrev_b32 v2, 2, v1")
    g("v_readfirstlane_b32 s%d, v3" % S_WAVE)
    for r in range(4, 7):
        g("v_mov_b32 v%d, 0" % r)
    if ts:
        g("v_mov_b32 v%d, 0" % g.VTS)
    g("s_and_b32 s%d, s2, 7" % S_T0)
    g("s_and_b32 s%d, s2, 3" % S_RT)
    g("s_lshl_b32 s%d, s%d, 3" % (S_RT, S_RT))
    g("s_and_b32 s%d, s2, 4" % S_T3)
    g("s_add_u32 s%d, s%d, s%d" % (S_RT, S_RT, S_T3))
    g("s_add_u32 s%d, s%d, s%d" % (S_RT, S_RT, S_T2))
    g("s_lshr_b32 s%d, s2, 5" % S_NT)
    g("s_lshl_b32 s%d, s%d, 10" % (S_WK, S_WAVE))
    g("s_lshr_b32 s%d, s%d, 2" % (S_T3, S_WAVE))
    g("s_lshl_b32 s%d, s%d, 8" % (S_T3, S_T3))
    g("s_lshl_b32 s%d, s2, 9" % S_CNT)
    g("s_add_u32 s%d, s%d, s%d" % (S_T3, S_T3, S_CNT))
    g("v_add_u32 v%d, s%d, v2" % (VT, S_T3))
    g("s_lshl_b32 s%d, s2, 2" % S_CNT)
    g("s_waitcnt lgkmcnt(0)")
    for k, p in enumerate((P_LAR, P_AIM, P_CR, P_CI)):
        g.vmem("global_load_dword v%d, v%d, s[%d:%d]" % (PRM + k, VT, p, p + 1), "prm")
    g("s_load_dword s%d, s[%d:%d], s%d" % (S_LDT, P_LDT, P_LDT + 1, S_CNT))
    g("s_load_dword s%d, s[%d:%d], s%d" % (S_DSK, P_DSK, P_DSK + 1, S_CNT))
    srd(g, S_X, 64, 2097152)
    srd(g, S_W1, 80, 1835008)
    srd(g, S_W3, 82, 1835008)
    srd(g, S_W2, 84, 1835008)
    srd(g, S_OUT, 86, 2097152)
    srd(g, S_DBG, 88, 256)
    srd(g, S_WS, 90, WS_SIZE)
    nonce_write(g)
    g.stamp(0)
    g("s_cmp_lt_u32 s2, 32")
    g("s_cbranch_scc1 L_AUX")
    vm_entry = list(g.vm)

    g("s_sub_u32 s%d, s%d, 4" % (S_T1, S_T1))
    g("s_lshr_b32 s%d, s%d, 2" % (S_T3, S_T1))
    g("s_and_b32 s%d, s%d, 3" % (S_MT, S_T0))
    g("s_lshl_b32 s%d, s%d, 1" % (S_ROT, S_MT))
    g("s_lshl_b32 s%d, s%d, 2" % (S_MT, S_MT))
    g("s_add_u32 s%d, s%d, s%d" % (S_MT, S_MT, S_T2))
    g("s_lshr_b32 s%d, s%d, 2" % (S_FT, S_T0))
    g("s_mul_i32 s%d, s%d, 7" % (S_FT, S_FT))
    g("s_add_u32 s%d, s%d, s%d" % (S_FT, S_FT, S_T3))
    g("s_and_b32 s%d, s2, 4" % S_T3)
    g("s_add_u32 s%d, s%d, s%d" % (S_ROT, S_ROT, S_T3))
    g("s_lshl_b32 s%d, s%d, 8" % (S_T0, S_FT))
    g("s_lshl_b32 s%d, s%d, 17" % (S_T1, S_MT))
    V_WD0, V_WD1, V_XD0, V_XD1 = 3, 4, 5, 6
    V_XA0, V_XA1, V_WA0, V_WA1 = 7, 8, 9, 10
    V_FL, V_NEED = 11, 12
    SETS = [16, 48]
    ACC = 80

    def offs(i):
        g("s_add_u32 s%d, s%d, %d" % (S_T2, S_ROT, i))
        g("s_and_b32 s%d, s%d, 7" % (S_T2, S_T2))
        g("s_mul_i32 s%d, s%d, %d" % (S_WOFF + i, S_T2, 64 * 3584))
        g("s_add_u32 s%d, s%d, s%d" % (S_WOFF + i, S_WOFF + i, S_T0))
        g("s_lshl_b32 s%d, s%d, 7" % (S_XOFF + i, S_T2))
        g("s_add_u32 s%d, s%d, s%d" % (S_XOFF + i, S_XOFF + i, S_T1))
    offs(0)
    g("v_lshrrev_b32 v%d, 4, v1" % VT)
    g("s_lshr_b32 s%d, s%d, 1" % (S_T2, S_WAVE))
    g("s_and_b32 s%d, s%d, 1" % (S_T2, S_T2))
    g("s_lshl_b32 s%d, s%d, 2" % (S_T2, S_T2))
    g("v_or_b32 v%d, s%d, v%d" % (VT2, S_T2, VT))
    g("v_lshlrev_b32 v%d, 1, v%d" % (VT2, VT2))
    g("v_and_b32 v%d, 15, v1" % V_WD0)
    g("v_xor_b32 v%d, v%d, v%d" % (V_WD0, V_WD0, VT2))
    g("v_lshlrev_b32 v%d, 4, v%d" % (V_WD0, V_WD0))
    g("v_lshrrev_b32 v%d, 4, v0" % VT)
    g("v_mul_u32_u24 v%d, 3584, v%d" % (VT2, VT))
    g("v_add_u32 v%d, v%d, v%d" % (V_WD0, V_WD0, VT2))
    g("v_add_u32 v%d, %d, v%d" % (V_WD1, 32 * 3584, V_WD0))
    g("v_xor_b32 v%d, v%d, v1" % (VT, VT))
    g("v_and_b32 v%d, 7, v%d" % (VT, VT))
    g("v_lshrrev_b32 v%d, 3, v0" % VT2)
    g("v_lshlrev_b32 v%d, 10, v%d" % (VT2, VT2))
    g("v_lshl_add_u32 v%d, v%d, 4, v%d" % (V_XD0, VT, VT2))
    g("v_add_u32 v%d, 0x10000, v%d" % (V_XD1, V_XD0))

    def unit_ops(k):
        r = []
        st, h = k >> 1, k & 1
        if h == 0:
            for b in range(2):
                r.append(("s_add_u32 m0, s%d, %d" % (S_WK, XBASE + (st % 3) * 16384 + b * 8192),
                          "buffer_load_dwordx4 v%d, %s, s%d offen lds" % (V_XD1 if b else V_XD0, SRDW(S_X), S_XOFF + st), "U%d" % k))
        for mat in range(2):
            r.append(("s_add_u32 m0, s%d, %d" % (S_WK, WBASE + (k % 4) * 16384 + mat * 8192),
                      "buffer_load_dwordx4 v%d, %s, s%d offen lds" % (V_WD1 if h else V_WD0, SRDW((S_W1, S_W3)[mat]), S_WOFF + st), "U%d" % k))
        return r

    def unit(k):
        for a, b, t in unit_ops(k):
            g(a); g("s_nop 0"); g.vmem(b, t)

    unit(0); unit(1)
    for i in range(1, 8):
        offs(i)
    unit(2)
    g("v_and_b32 v%d, 15, v1" % VT)
    g("v_lshrrev_b32 v%d, 4, v1" % VT2)
    g("v_lshrrev_b32 v%d, 1, v%d" % (V_XA0, VT))
    g("v_xor_b32 v%d, v%d, v%d" % (V_XA0, V_XA0, VT2))
    g("v_lshlrev_b32 v%d, 4, v%d" % (V_XA0, V_XA0))
    g("v_lshl_add_u32 v%d, v%d, 7, v%d" % (V_XA0, VT, V_XA0))
    g("s_lshr_b32 s%d, s%d, 2" % (S_T2, S_WAVE))
    g("s_lshl_b32 s%d, s%d, 13" % (S_T2, S_T2))
    g("v_add_u32 v%d, s%d, v%d" % (V_XA0, S_T2, V_XA0))
    g("v_xor_b32 v%d, 64, v%d" % (V_XA1, V_XA0))
    g("v_lshrrev_b32 v%d, 2, v%d" % (VT, VT))
    g("v_and_b32 v%d, 1, v%d" % (V_WA0, VT2))
    g("v_lshl_or_b32 v%d, v%d, 2, v%d" % (V_WA0, V_WA0, VT))
    g("s_and_b32 s%d, s%d, 3" % (S_T2, S_WAVE))
    g("s_lshl_b32 s%d, s%d, 1" % (S_T2, S_T2))
    g("v_xor_b32 v%d, s%d, v%d" % (V_WA0, S_T2, V_WA0))
    g("v_lshlrev_b32 v%d, 5, v%d" % (V_WA0, V_WA0))
    g("v_lshl_add_u32 v%d, v%d, 3, v%d" % (VT, VT2, VT))
    g("v_lshl_add_u32 v%d, v%d, 8, v%d" % (V_WA0, VT, V_WA0))
    g("v_and_b32 v%d, 3, v1" % VT)
    g("v_lshl_add_u32 v%d, v%d, 3, v%d" % (V_WA0, VT, V_WA0))
    g("v_add_u32 v%d, %d, v%d" % (V_WA0, WBASE, V_WA0))
    g("v_xor_b32 v%d, 32, v%d" % (V_WA1, V_WA0))
    nyoung = len(g.vm) - 1 - max(i for i, t in enumerate(g.vm) if t == "prm")
    vm_g = list(g.vm)
    g.label("L_KPRO")
    kprologue(g, nyoung)
    g.stamp(1)
    g("s_cmp_lt_u32 s2, 32")
    g("s_cbranch_scc1 L_AUX2")
    g.vm = [t for t in vm_g if t.startswith("U")]

    def frag_reads(it):
        S = SETS[it & 1]
        xs = (it >> 1) % 3
        va = V_XA1 if (it & 1) else V_XA0
        so = (it % 4) * 16384
        xr = ["ds_read_b128 %s, v%d offset:%d" % (vr(S + 4 * mi, 4), va, XBASE + xs * 16384 + mi * 2048) for mi in range(4)]
        wr = []
        for mat in range(2):
            for tt in range(2):
                a = (V_WA0, V_WA1)[tt]
                d = S + 16 + 4 * (2 * mat + tt)
                wr.append("ds_read_b64_tr_b16 %s, v%d offset:%d" % (vr(d, 2), a, so + mat * 8192))
                wr.append("ds_read_b64_tr_b16 %s, v%d offset:%d" % (vr(d + 2, 2), a, so + mat * 8192 + 1024))
        return xr + wr

    def mfmas(it):
        S = SETS[it & 1]
        r = []
        for mi in range(4):
            for c in range(4):
                a = ACC + 16 * mi + 4 * c
                r.append("v_mfma_f32_16x16x32_bf16 %s, %s, %s, %s" % (vr(a, 4), vr(S + 16 + 4 * c, 4), vr(S + 4 * mi, 4), "0" if it == 0 else vr(a, 4)))
        return r

    def stats_loads():
        g("v_and_b32 v%d, 15, v1" % VT)
        g("v_lshlrev_b32 v%d, 4, v%d" % (VT, VT))
        g("s_lshr_b32 s%d, s%d, 2" % (S_T2, S_WAVE))
        g("s_lshl_b32 s%d, s%d, 10" % (S_T2, S_T2))
        g("s_lshl_b32 s%d, s%d, 11" % (S_T3, S_MT))
        g("s_add_u32 s%d, s%d, s%d" % (S_T2, S_T2, S_T3))
        g("s_add_u32 s%d, s%d, %d" % (S_T2, S_T2, WS_STATS))
        for mi in range(4):
            g.vmem("buffer_load_dwordx4 %s, v%d, %s, s%d offen offset:%d sc1" % (vr(STR + 4 * mi, 4), VT, SRDW(S_WS), S_T2, mi * 256), "st")
        g("v_lshrrev_b32 v%d, 4, v1" % VT2)
        g("v_lshlrev_b32 v%d, 4, v%d" % (VT2, VT2))
        g("s_and_b32 s%d, s%d, 3" % (S_T2, S_WAVE))
        g("s_lshl_b32 s%d, s%d, 7" % (S_T2, S_T2))
        g("s_lshl_b32 s%d, s%d, 9" % (S_T3, S_FT))
        g("s_add_u32 s%d, s%d, s%d" % (S_T2, S_T2, S_T3))
        g("s_add_u32 s%d, s%d, %d" % (S_T2, S_T2, WS_CS))
        g("s_add_u32 s%d, s%d, %d" % (S_T3, S_T2, 7168))
        for mat in range(2):
            for tt in range(2):
                g.vmem("buffer_load_dwordx4 %s, v%d, %s, s%d offen offset:%d sc1" % (vr(CSR + 4 * (2 * mat + tt), 4), VT2, SRDW(S_WS), S_T3 if mat else S_T2, tt * 64), "st")
        u_load(g)

    g.wait_vm("U0", "lgkmcnt(0)")
    g("s_barrier")
    g.stamp(2)
    for r in frag_reads(0):
        g(r)
    unit(3)
    for it in range(16):
        if it == 12:
            flag_check(g, V_FL, 32)
        if it < 15:
            g.wait_vm("U%d" % (it + 1), "lgkmcnt(0)")
        else:
            g("s_waitcnt lgkmcnt(0)")
        g("s_barrier")
        rd = frag_reads(it + 1) if it < 15 else []
        mf = mfmas(it)
        dm = unit_ops(it + 4) if it + 4 < 16 else []
        for i, m in enumerate(mf):
            if i >= 7 and dm and (i - 7) % 2 == 0:
                g(dm[0][0])
            g(m)
            for _ in range(2):
                if rd:
                    g(rd.pop(0))
            if i >= 7 and dm and (i - 7) % 2 == 0:
                a, b, t = dm.pop(0)
                g.vmem(b, t)
            if it == 12 and i == 6:
                stats_loads()
            if it == 15 and i == 1:
                w2_setup(g, V_W2D, V_W2A)
                w2_dma(g, V_W2D, 0)
            if it == 15 and i == 6:
                w2_dma(g, V_W2D, 1)
            if it == 15 and i == 11:
                w2_dma(g, V_W2D, 2)
        assert not dm and not rd
        if it == 2:
            nonce_issue(g, V_NEED)
        if it == 6:
            nonce_check(g, V_NEED)
        if it == 10:
            flag_issue(g, V_FL, (None, 0))
    g.stamp(3)
    u_store(g)
    g("s_lshr_b32 s%d, s%d, 2" % (S_T2, S_WAVE))
    g("s_lshl_b32 s%d, s%d, 2" % (S_T2, S_T2))
    g("s_lshl_b32 s%d, s%d, 3" % (S_T3, S_MT))
    g("s_add_u32 s%d, s%d, s%d" % (S_T2, S_T2, S_T3))
    g("s_mul_i32 s%d, s%d, 56" % (S_T2, S_T2))
    g("s_lshl_b32 s%d, s%d, 2" % (S_T3, S_FT))
    g("s_add_u32 s%d, s%d, s%d" % (S_T2, S_T2, S_T3))
    g("s_and_b32 s%d, s%d, 3" % (S_T3, S_WAVE))
    g("s_add_u32 s%d, s%d, s%d" % (S_T2, S_T2, S_T3))
    g("s_lshl_b32 s%d, s%d, 10" % (S_T2, S_T2))
    g("s_add_u32 s%d, s%d, %d" % (S_T2, S_T2, WS_H))
    g("v_lshlrev_b32 v%d, 4, v1" % VT)
    E = 16
    for mi in range(4):
        st = STR + 4 * mi
        HO = 32 + 4 * (mi & 1)
        for tt in range(2):
            ag = ACC + 16 * mi + 4 * tt
            au = ACC + 16 * mi + 4 * (2 + tt)
            c1 = CSR + 4 * tt
            c3 = CSR + 4 * (2 + tt)
            for r in range(4):
                g("v_fma_f32 v%d, -v%d, v%d, v%d" % (ag + r, st, c1 + r, ag + r))
            for r in range(4):
                g("v_mul_f32 v%d, v%d, v%d" % (E + r, st + 1, ag + r))
            for r in range(4):
                g("v_exp_f32 v%d, v%d" % (E + r, E + r))
            for r in range(4):
                g("v_fma_f32 v%d, -v%d, v%d, v%d" % (au + r, st, c3 + r, au + r))
            for r in range(4):
                g("v_fma_f32 v%d, v%d, v%d, v%d" % (E + r, E + r, st + 2, st + 2))
            for r in range(4):
                g("v_rcp_f32 v%d, v%d" % (E + r, E + r))
            for r in range(4):
                g("v_mul_f32 v%d, v%d, v%d" % (ag + r, ag + r, au + r))
            for r in range(4):
                g("v_mul_f32 v%d, v%d, v%d" % (ag + r, ag + r, E + r))
            g("v_cvt_pk_bf16_f32 v%d, v%d, v%d" % (HO + 2 * tt, ag, ag + 1))
            g("v_cvt_pk_bf16_f32 v%d, v%d, v%d" % (HO + 2 * tt + 1, ag + 2, ag + 3))
        g.vmem("buffer_store_dwordx4 %s, v%d, %s, s%d offen sc1" % (vr(HO, 4), VT, SRDW(S_WS), S_T2), "hst")
        if mi < 3:
            g("s_add_u32 s%d, s%d, %d" % (S_T2, S_T2, 56 * 1024))
    g.stamp(4)
    g("s_branch L_COMMON")
    vm_common = list(g.vm)

    g.label("L_AUX")
    g.vm = list(vm_entry)
    aux1(g)
    g("s_branch L_KPRO")
    g.label("L_AUX2")
    g.vm = []
    aux2(g)
    g.wait_vm_all()

    g.label("L_COMMON")
    g.vm = vm_common
    common(g)
    g.label("L_END")
    g("s_endpgm")
    return g


def aux1(g):
    S_RB, S_CB, S_CV = S_MT, S_FT, S_ROT
    g("s_and_b32 s%d, s2, 3" % S_T3)
    g("s_lshl_b32 s%d, s%d, 3" % (S_RB, S_T3))
    g("s_and_b32 s%d, s2, 4" % S_CB)
    g("s_add_u32 s%d, s%d, s%d" % (S_RB, S_RB, S_CB))
    g("s_add_u32 s%d, s%d, s%d" % (S_RB, S_RB, S_T1))
    g("s_lshl_b32 s%d, s%d, 2" % (S_CV, S_T3))
    g("s_add_u32 s%d, s%d, s%d" % (S_CV, S_CV, S_T1))
    g("s_lshr_b32 s%d, s%d, 2" % (S_CB, S_CB))
    g("s_mul_i32 s%d, s%d, 14" % (S_CB, S_CB))
    g("s_add_u32 s%d, s%d, s%d" % (S_CB, S_CB, S_CV))
    g("s_cmp_ge_u32 s%d, 4" % S_WAVE)
    g("s_cbranch_scc1 L_AUXC")
    vm0 = list(g.vm)
    XR, XF, TT, RED, ONES = 16, 80, 144, 176, 184
    WA = 186
    g("v_lshlrev_b32 v%d, 4, v1" % VT)
    g("s_lshl_b32 s%d, s%d, 16" % (S_T0, S_RB))
    g("s_lshl_b32 s%d, s%d, 14" % (S_T1, S_WAVE))
    g("s_add_u32 s%d, s%d, s%d" % (S_T0, S_T0, S_T1))
    g("s_mov_b32 s%d, s%d" % (S_T2, S_T0))
    for i in range(16):
        if i and i % 4 == 0:
            g("s_add_u32 s%d, s%d, 4096" % (S_T2, S_T2))
        g.vmem("buffer_load_dwordx4 %s, v%d, %s, s%d offen offset:%d" % (vr(XR + 4 * i, 4), VT, SRDW(S_X), S_T2, (i & 3) * 1024), "x%d" % (i >> 3))
    g("v_mov_b32 v%d, 0x3f803f80" % ONES)
    g("v_and_b32 v%d, 7, v1" % VT2)
    g("v_lshlrev_b32 v%d, 4, v%d" % (VT2, VT2))
    g("v_lshl_add_u32 v%d, v1, 8, v%d" % (VT2, VT2))
    g("v_add_u32 v%d, s%d, v%d" % (WA, S_T1, VT2))
    for k in range(1, 8):
        g("v_xor_b32 v%d, %d, v%d" % (WA + k, 16 * k, WA))
    g("s_lshr_b32 s%d, s%d, 6" % (S_T0, S_T0))
    g("s_add_u32 s%d, s%d, %d" % (S_T0, S_T0, WS_STATS))
    g("v_lshrrev_b32 v3, 4, v1")
    g("v_lshlrev_b32 v3, 5, v3")
    g("s_mov_b32 s%d, 0x00010001" % S_EX)
    g("s_mov_b32 s%d, 0x00010001" % (S_EX + 1))
    SM = 36
    MEAN, SO, RI = 194, 196, 204
    for b in range(2):
        X0 = XR + 32 * b
        g.wait_vm("x%d" % b)
        g.stamp(30 + 4 * b)
        for i in range(8):
            g("v_dot2_f32_bf16 v%d, v%d, v%d, 0" % (RED + i, X0 + 4 * i, ONES))
        for k in range(1, 4):
            for i in range(8):
                g("v_dot2_f32_bf16 v%d, v%d, v%d, v%d" % (RED + i, X0 + 4 * i + k, ONES, RED + i))
        for i in range(8):
            for k in range(4):
                g("v_lshlrev_b32 v%d, 16, v%d" % (XF + 8 * i + 2 * k, X0 + 4 * i + k))
                g("v_and_b32 v%d, 0xffff0000, v%d" % (XF + 8 * i + 2 * k + 1, X0 + 4 * i + k))
        reduce8(g, RED)
        for i in range(2):
            g("v_mul_f32 v%d, 0x3b000000, v%d" % (MEAN + i, RED + i))
        g("s_nop 0")
        for row in range(8):
            g("v_readlane_b32 s%d, v%d, %d" % (SM + 2 * row, MEAN + (row & 1), 16 * (row >> 1)))
        g("s_nop 1")
        g.stamp(31 + 4 * b)
        for k in range(4):
            for i in range(8):
                d = TT + 2 * i
                g("v_pk_add_f32 %s, %s, s[%d:%d] op_sel_hi:[1,0] neg_lo:[0,1] neg_hi:[0,1]" % (vr(d, 2), vr(XF + 8 * i + 2 * k, 2), SM + 2 * i, SM + 2 * i + 1))
            for i in range(8):
                d = TT + 2 * i
                a = X0 + 2 * i
                if k == 0:
                    g("v_pk_mul_f32 %s, %s, %s" % (vr(a, 2), vr(d, 2), vr(d, 2)))
                else:
                    g("v_pk_fma_f32 %s, %s, %s, %s" % (vr(a, 2), vr(d, 2), vr(d, 2), vr(a, 2)))
        for i in range(8):
            g("v_add_f32 v%d, v%d, v%d" % (RED + i, X0 + 2 * i, X0 + 2 * i + 1))
        reduce8(g, RED)
        for i in range(2):
            o = SO + 4 * i
            g("v_mul_f32 v%d, 0x3b000000, v%d" % (RED + i, RED + i))
            rnd_bf16(g, RED + i, RED + i)
            g("v_add_f32 v%d, 0x3727c5ac, v%d" % (RED + i, RED + i))
            rnd_bf16(g, RED + i, RED + i)
            g("v_sqrt_f32 v%d, v%d" % (RED + i, RED + i))
            g("s_nop 0")
            rnd_bf16(g, RED + i, RED + i)
            g("v_rcp_f32 v%d, v%d" % (RI + i, RED + i))
            rnd_bf16(g, o, MEAN + i)
            g("v_mul_f32 v%d, 0x%x, v%d" % (o + 1, NLOG2E, RI + i))
            g("v_mul_f32 v%d, v%d, v%d" % (o + 2, RED + i, RED + i))
            g("v_mov_b32 v%d, v%d" % (o + 3, RED + i))
        g("s_nop 0")
        for row in range(8):
            g("v_readlane_b32 s%d, v%d, %d" % (SM + 2 * row, SO + 4 * (row & 1), 16 * (row >> 1)))
            g("v_readlane_b32 s%d, v%d, %d" % (SM + 2 * row + 1, RI + (row & 1), 16 * (row >> 1)))
        g("s_mov_b64 exec, s[%d:%d]" % (S_EX, S_EX + 1))
        for i in range(2):
            g.vmem("buffer_store_dwordx4 %s, v3, %s, s%d offen offset:%d sc1" % (vr(SO + 4 * i, 4), SRDW(S_WS), S_T0, 16 * i + 128 * b), "s1")
        g("s_mov_b64 exec, -1")
        g.stamp(32 + 4 * b)
        for i in range(8):
            for k in range(4):
                d = XF + 8 * i + 2 * k
                g("v_pk_add_f32 %s, %s, s[%d:%d] op_sel_hi:[1,0] neg_lo:[0,1] neg_hi:[0,1]" % (vr(d, 2), vr(d, 2), SM + 2 * i, SM + 2 * i + 1))
            for k in range(4):
                d = XF + 8 * i + 2 * k
                g("v_pk_mul_f32 %s, %s, s[%d:%d] op_sel:[0,1] op_sel_hi:[1,1]" % (vr(d, 2), vr(d, 2), SM + 2 * i, SM + 2 * i + 1))
        for c in range(8):
            for ip in range(4):
                g("v_cvt_pk_bf16_f32 v%d, v%d, v%d" % (TT + 4 * c + ip, XF + 16 * ip + c, XF + 16 * ip + 8 + c))
            pc = 2 * c + b
            g("ds_write_b128 v%d, %s offset:%d" % (WA + (pc & 7), vr(TT + 4 * c, 4), 128 * (pc >> 3)))
        g.stamp(33 + 4 * b)
    g("v_lshlrev_b32 v%d, 4, v1" % VT)
    g("v_add_u32 v%d, s%d, v%d" % (VT2, S_T1, VT))
    g("v_lshrrev_b32 v3, 4, v1")
    g("v_lshlrev_b32 v3, 4, v3")
    g("v_xor_b32 v3, v3, v%d" % VT)
    g("v_xor_b32 v4, 64, v3")
    g("s_lshl_b32 s%d, s%d, 2" % (S_T2, S_RB))
    g("s_add_u32 s%d, s%d, s%d" % (S_T2, S_T2, S_WAVE))
    g("s_mul_i32 s%d, s%d, %d" % (S_T2, S_T2, XP))
    g("s_waitcnt lgkmcnt(0)")
    for k in range(16):
        g("ds_read_b128 %s, v%d offset:%d" % (vr(XR + 4 * k, 4), VT2, k * 1024))
    for k in range(16):
        g("s_waitcnt lgkmcnt(%d)" % (15 - k))
        if k and k % 4 == 0:
            g("s_add_u32 s%d, s%d, 4096" % (S_T2, S_T2))
        g.vmem("buffer_store_dwordx4 %s, v%d, %s, s%d offen offset:%d sc1" % (vr(XR + 4 * k, 4), 4 if k & 1 else 3, SRDW(S_WS), S_T2, (k & 3) * 1024), "s1")
    nonce_issue(g, 12)
    nonce_check(g, 12)
    g.stamp(38)
    g("s_branch L_AUXJ")
    g.label("L_AUXC")
    g.vm = vm0
    g("s_cmp_ge_u32 s%d, 14" % S_CV)
    g("s_cbranch_scc1 L_AUXJ")
    SC = 84
    g("s_bitcmp1_b32 s%d, 1" % S_WAVE)
    g("s_cselect_b32 s%d, s%d, s%d" % (SC, S_W3, S_W1))
    g("s_cselect_b32 s%d, s%d, s%d" % (SC + 1, S_W3 + 1, S_W1 + 1))
    g("s_cselect_b32 s%d, 7168, 0" % S_T3)
    g("s_mov_b32 s%d, 1835008" % (SC + 2))
    g("s_mov_b32 s%d, 0x00020000" % (SC + 3))
    g("s_and_b32 s%d, s%d, 1" % (S_T0, S_WAVE))
    g("s_lshl_b32 s%d, s%d, 1" % (S_T2, S_CB))
    g("s_add_u32 s%d, s%d, s%d" % (S_T0, S_T0, S_T2))
    g("s_lshl_b32 s%d, s%d, 6" % (S_T2, S_T0))
    g("v_lshrrev_b32 v3, 2, v1")
    g("v_mul_u32_u24 v3, 3584, v3")
    g("v_and_b32 v%d, 3, v1" % VT)
    g("v_lshl_add_u32 v3, v%d, 4, v3" % VT)
    CW, CA, SELL, SELH = 16, 144, 152, 153
    g("v_mov_b32 v%d, 0x00003f80" % SELL)
    g("v_mov_b32 v%d, 0x3f800000" % SELH)
    for k in range(32):
        g.vmem("buffer_load_dwordx4 %s, v3, %s, s%d offen" % (vr(CW + 4 * k, 4), SRDW(SC), S_T2), "cw%d" % (k >> 2))
        if k < 31:
            g("s_add_u32 s%d, s%d, %d" % (S_T2, S_T2, 16 * 3584))
    for k in range(32):
        if k % 4 == 0:
            g.wait_vm("cw%d" % (k >> 2))
        for d in range(4):
            sreg = CW + 4 * k + d
            a = CA + 2 * d
            g("v_dot2_f32_bf16 v%d, v%d, v%d, %s" % (a, sreg, SELL, "0" if k == 0 else vr(a)))
            g("v_dot2_f32_bf16 v%d, v%d, v%d, %s" % (a + 1, sreg, SELH, "0" if k == 0 else vr(a + 1)))
    g("s_nop 3")
    for u in range(4):
        g("v_permlane32_swap_b32 v%d, v%d" % (CA + u, CA + u + 4))
    g("s_nop 1")
    for u in range(4):
        g("v_add_f32 v%d, v%d, v%d" % (CA + u, CA + u, CA + u + 4))
    g("s_nop 1")
    for u in range(2):
        g("v_permlane16_swap_b32 v%d, v%d" % (CA + u, CA + u + 2))
    g("s_nop 1")
    for u in range(2):
        g("v_add_f32 v%d, v%d, v%d" % (CA + u, CA + u, CA + u + 2))
    for rot in (8, 4):
        g("s_nop 1")
        for u in range(2):
            g("v_add_f32_dpp v%d, v%d, v%d row_ror:%d row_mask:0xf bank_mask:0xf" % (CA + u, CA + u, CA + u, rot))
    g("v_lshrrev_b32 v3, 4, v1")
    g("v_lshlrev_b32 v3, 3, v3")
    g("v_lshl_add_u32 v3, v%d, 5, v3" % VT)
    g("s_lshl_b32 s%d, s%d, 7" % (S_T0, S_T0))
    g("s_add_u32 s%d, s%d, s%d" % (S_T0, S_T0, S_T3))
    g("s_add_u32 s%d, s%d, %d" % (S_T0, S_T0, WS_CS))
    g("s_mov_b32 s%d, 0x000f000f" % S_EX)
    g("s_mov_b32 s%d, 0x000f000f" % (S_EX + 1))
    g("s_mov_b64 exec, s[%d:%d]" % (S_EX, S_EX + 1))
    g("buffer_store_dwordx2 %s, v3, %s, s%d offen sc1" % (vr(CA, 2), SRDW(S_WS), S_T0))
    g("s_mov_b64 exec, -1")
    g.label("L_AUXJ")
    g.stamp(39)
    g.wait_vm_all("lgkmcnt(0)")
    g.stamp(40)
    g("s_barrier")
    publish(g, pub_aux, VT)
    g.stamp(4)


def aux2(g):
    n = OPT["auxpf"]
    g("s_lshr_b32 s%d, s2, 3" % S_T0)
    g("s_lshl_b32 s%d, s%d, 1" % (S_T0, S_T0))
    g("s_and_b32 s%d, s%d, 1" % (S_T1, S_WAVE))
    g("s_add_u32 s%d, s%d, s%d" % (S_T0, S_T0, S_T1))
    g("s_mul_i32 s%d, s%d, 224" % (S_T0, S_T0))
    g("s_lshr_b32 s%d, s%d, 1" % (S_T1, S_WAVE))
    g("s_add_u32 s%d, s%d, s%d" % (S_T0, S_T0, S_T1))
    g("s_lshl_b32 s%d, s%d, 10" % (S_T0, S_T0))
    g("v_lshlrev_b32 v%d, 4, v1" % VT)
    flag_issue(g, 11, (None, 0))
    for i in range(n):
        g.vmem("buffer_load_dwordx4 %s, v%d, %s, s%d offen" % (vr(80 + 4 * (i % 16), 4), VT, SRDW(S_W2), S_T0), "pf")
        g("s_add_u32 s%d, s%d, 4096" % (S_T0, S_T0))
    flag_check(g, 11, 32)
    g("s_waitcnt lgkmcnt(0)")
    g("s_barrier")
    u_load(g)
    w2_setup(g, V_W2D, V_W2A)
    for j in range(3):
        w2_dma(g, V_W2D, j)
    u_store(g)


def common(g):
    for j in range(3):
        w2_rd(g, V_W2A, j)
    VAA, VBB = 8, 9
    g("v_and_b32 v%d, 15, v1" % VT)
    g("v_lshrrev_b32 v%d, 4, v1" % VT2)
    g("v_lshl_add_u32 v46, v%d, 3, v%d" % (VT2, VT))
    g("s_lshr_b32 s%d, s%d, 2" % (S_T2, S_WAVE))
    g("s_mul_i32 s%d, s%d, 16640" % (S_T3, S_T2))
    g("s_add_u32 s%d, s%d, %d" % (S_T3, S_T3, KC))
    g("s_and_b32 s%d, s%d, 3" % (S_T0, S_WAVE))
    g("s_lshl_b32 s%d, s%d, 5" % (S_T1, S_T0))
    g("s_sub_u32 s%d, %d, s%d" % (S_T1, 2047 + 8 - 32 * 60, S_T1))
    g("v_sub_u32 v46, s%d, v46" % S_T1)
    g("v_and_b32 v47, 3, v46")
    g("v_sub_u32 v46, v46, v47")
    g("v_lshlrev_b32 v46, 1, v46")
    g("v_mul_u32_u24 v47, 4160, v47")
    g("v_add3_u32 v%d, v46, v47, s%d" % (VAA, S_T3))
    g("v_lshlrev_b32 v46, 5, v%d" % VT)
    g("v_lshlrev_b32 v47, 4, v%d" % VT2)
    g("v_sub_u32 v46, v46, v47")
    g("s_mul_i32 s%d, s%d, 4608" % (S_T1, S_T2))
    g("s_lshl_b32 s%d, s%d, 6" % (S_T0, S_T0))
    g("s_sub_u32 s%d, s%d, s%d" % (S_T1, S_T1, S_T0))
    g("s_add_u32 s%d, s%d, %d" % (S_T1, S_T1, UB + 512 - 256 + 16))
    g("v_add_u32 v%d, s%d, v46" % (VBB, S_T1))
    g("s_waitcnt lgkmcnt(0)")
    for j in range(3, 6):
        w2_dma(g, V_W2D, j)
    g.wait_vm("hst")
    g("s_barrier")
    sk = g.newlabel("PH")
    g("s_cmp_lt_u32 s2, 32")
    g("s_cbranch_scc1 %s" % sk)
    publish(g, pub_h, VT)
    g.label(sk)
    g.stamp(5)
    BF, CACC, AF = 16, 80, 112
    NA = 4
    def rdA(ip):
        d = AF + 4 * (ip % NA)
        return ["ds_read_b64 %s, v%d offset:%d" % (vr(d, 2), VAA, 256 * (15 - ip)),
                "ds_read_b64 %s, v%d offset:%d" % (vr(d + 2, 2), VAA, 256 * (15 - ip) + 8)]
    lq = []
    def lds(s, tag):
        g(s); lq.append(tag)
    def lwait(tags):
        last = max([i for i, t in enumerate(lq) if t in tags], default=-1)
        if last < 0:
            return
        n = len(lq) - 1 - last
        g("s_waitcnt lgkmcnt(%d)" % min(n, 15))
        del lq[:last + 1]
        if n > 15:
            del lq[:len(lq) - 15]
    for s in rdA(0): lds(s, "A0")
    for tau in (0, 2, 4, 6, 8, 10, 12, 14):
        lds("ds_read_b128 %s, v%d offset:%d" % (vr(BF + 4 * (tau + 1), 4), VBB, 256 * (tau + 1)), "B%d" % tau)
    for s in rdA(1): lds(s, "A1")
    for tau in (-1, 1, 3, 5, 7, 9, 11, 13):
        lds("ds_read_b128 %s, v%d offset:%d" % (vr(BF + 4 * (tau + 1), 4), VBB, 256 * (tau + 1)), "B%d" % tau)
    for s in rdA(2): lds(s, "A2")
    for ip in range(16):
        first = True
        for j in range(ip >> 1, 8):
            tau = 2 * j - ip
            lwait(["A%d" % ip, "B%d" % tau])
            a = CACC + 4 * j
            g("v_mfma_f32_16x16x32_bf16 %s, %s, %s, %s" % (vr(a, 4), vr(AF + 4 * (ip % NA), 4), vr(BF + 4 * (tau + 1), 4), "0" if ip == 0 else vr(a, 4)))
            if first and ip + 3 < 16:
                for s in rdA(ip + 3): lds(s, "A%d" % (ip + 3))
            first = False
        if ip == 5:
            n0 = len(g.L)
            w2_rd(g, V_W2A, 3)
            lq.extend(["w2r"] * 8)
        if ip == 7:
            lwait(["w2r"])
            w2_dma(g, V_W2D, 6)
    g.stamp(6)
    VFL, VN = 10, 11
    g("s_lshr_b32 s%d, s%d, 1" % (S_T0, S_RT))
    flag_issue(g, VFL, (S_T0, 1))
    for j in (4, 5, 6):
        w2_rd(g, V_W2A, j)
    g("v_and_b32 v%d, 15, v1" % VT)
    g("v_lshrrev_b32 v%d, 4, v1" % VT2)
    g("v_lshl_add_u32 v%d, v%d, 2, v%d" % (VT, VT2, VT))
    g("v_and_b32 v%d, 15, v%d" % (VT, VT))
    g("v_lshl_add_u32 v%d, v%d, 4, v%d" % (VT, VT2, VT))
    g("v_lshl_add_u32 v%d, v%d, 4, s%d" % (VT, VT, S_M + 1))
    g("s_waitcnt lgkmcnt(0)")
    for j in range(8):
        g("ds_write_b128 v%d, %s offset:%d" % (VT, vr(CACC + 4 * j, 4), j * 1024))
    g("v_lshrrev_b32 v%d, 2, v1" % VT)
    g("v_and_b32 v%d, 3, v1" % VT2)
    g("v_lshl_add_u32 v%d, v%d, 2, v%d" % (VT, VT2, VT))
    g("v_and_b32 v%d, 15, v%d" % (VT, VT))
    g("v_lshl_add_u32 v%d, v%d, 4, v%d" % (VT, VT2, VT))
    g("v_lshl_add_u32 v%d, v%d, 4, s%d" % (VT, VT, S_WK))
    g("v_add_u32 v%d, %d, v%d" % (VT2, 4 * W2P, VT))
    g("v_lshlrev_b32 v12, 3, v0")
    g("v_add_u32 v12, %d, v12" % (UB + 512))
    g.stamp(7)
    flag_check(g, VFL, 14)
    g("s_waitcnt lgkmcnt(0)")
    g("s_barrier")
    g.stamp(8)
    P = 80
    for ch in range(2):
        for q in range(4):
            g("ds_read_b128 %s, v%d offset:%d" % (vr(P + 16 * ch + 4 * q, 4), (VT, VT2)[ch], q * W2P))
    U = 112
    g("ds_read_b64 %s, v12" % vr(U, 2))
    g("ds_read_b64 %s, v12 offset:4608" % vr(U + 2, 2))
    HF = 16
    g("v_lshlrev_b32 v3, 4, v1")
    g("s_mul_i32 s%d, s%d, %d" % (S_M + 4, S_RT, 4 * 56))
    g("s_mul_i32 s%d, s%d, 7" % (S_M + 5, S_WAVE))
    g("s_add_u32 s%d, s%d, s%d" % (S_M + 4, S_M + 4, S_M + 5))
    g("s_lshl_b32 s%d, s%d, 10" % (S_M + 4, S_M + 4))
    g("s_add_u32 s%d, s%d, %d" % (S_M + 4, S_M + 4, WS_H))
    SMI = 36
    for mi in range(4):
        g("s_add_u32 s%d, s%d, %d" % (SMI + mi, S_NT, mi))
        g("s_and_b32 s%d, s%d, 3" % (SMI + mi, SMI + mi))
    def hload(mi):
        g("s_mul_i32 s%d, s%d, %d" % (S_M + 5, SMI + mi, 56 * 1024))
        g("s_add_u32 s%d, s%d, s%d" % (S_M + 5, S_M + 5, S_M + 4))
        for j in range(7):
            g("s_add_u32 s%d, s%d, s%d" % (S_M + 2, S_M + 5, S_J + j))
            g.vmem("buffer_load_dwordx4 %s, v3, %s, s%d offen sc1" % (vr(HF + 28 * mi + 4 * j, 4), SRDW(S_WS), S_M + 2), "h%d_%d" % (mi, j))
    g("s_lshl_b32 s%d, s%d, 16" % (S_T0, S_DSK))
    g("s_and_b32 s%d, s%d, 0xffff0000" % (S_T1, S_DSK))
    g("s_waitcnt lgkmcnt(0)")
    UF = 116
    for ch in range(2):
        b = P + 16 * ch
        for r in range(4):
            g("v_add_f32 v%d, v%d, v%d" % (b + r, b + r, b + 4 + r))
            g("v_add_f32 v%d, v%d, v%d" % (b + 8 + r, b + 8 + r, b + 12 + r))
        for r in range(4):
            g("v_add_f32 v%d, v%d, v%d" % (b + r, b + r, b + 8 + r))
        for k in range(2):
            g("v_lshlrev_b32 v%d, 16, v%d" % (UF + 2 * k, U + 2 * ch + k))
            g("v_and_b32 v%d, 0xffff0000, v%d" % (UF + 2 * k + 1, U + 2 * ch + k))
        for r in range(4):
            g("v_mul_f32 v%d, s%d, v%d" % (UF + r, (S_T0, S_T1)[ch], UF + r))
        for r in range(4):
            g("v_cvt_pk_bf16_f32 v%d, v%d, v%d" % (b + 4 + r, b + r, UF + r))
        for r in range(4):
            g("v_lshlrev_b32 v%d, 16, v%d" % (b + r, b + 4 + r))
            g("v_and_b32 v%d, 0xffff0000, v%d" % (b + 4 + r, b + 4 + r))
        for r in range(4):
            g("v_add_f32 v%d, v%d, v%d" % (b + r, b + r, b + 4 + r))
    AOR = 120
    for r in range(4):
        g("v_cvt_pk_bf16_f32 v%d, v%d, v%d" % (AOR + r, P + r, P + 16 + r))
    g("v_lshlrev_b32 v%d, 4, v0" % VT)
    g("s_mul_i32 s%d, s2, %d" % (S_T0, AOP))
    g("s_add_u32 s%d, s%d, %d" % (S_T0, S_T0, WS_AO))
    g.vmem("buffer_store_dwordx4 %s, v%d, %s, s%d offen sc1" % (vr(AOR, 4), VT, SRDW(S_WS), S_T0), "ao")
    g.stamp(9)
    hload(0)
    hload(1)
    XT = 132
    g("v_lshrrev_b32 v%d, 3, v1" % VT2)
    g("v_lshlrev_b32 v%d, 10, v%d" % (VT2, VT2))
    g("v_and_b32 v12, 7, v1")
    g("v_lshl_add_u32 v12, v12, 4, v%d" % VT2)
    g("s_lshl_b32 s%d, s%d, 16" % (S_M + 3, S_RT))
    g("s_lshl_b32 s%d, s%d, 13" % (S_T1, S_WAVE))
    g("s_add_u32 s%d, s%d, s%d" % (S_M + 3, S_M + 3, S_T1))
    g("s_lshl_b32 s%d, s%d, 7" % (S_T1, S_NT))
    g("s_add_u32 s%d, s%d, s%d" % (S_M + 3, S_M + 3, S_T1))
    RA0, RA1 = 4, 5
    g("v_and_b32 v8, 15, v1")
    g("v_lshrrev_b32 v%d, 4, v1" % VT2)
    g("v_lshrrev_b32 v6, 5, v1")
    g("v_lshl_add_u32 v6, v6, 2, v8")
    g("v_add_u32 v7, 8, v6")
    g("v_and_b32 v6, 15, v6")
    g("v_and_b32 v7, 15, v7")
    g("v_lshl_add_u32 v6, v%d, 4, v6" % VT2)
    g("v_lshl_add_u32 v7, v%d, 4, v7" % VT2)
    g("s_lshl_b32 s%d, s%d, 14" % (S_T1, S_WAVE))
    g("v_lshl_add_u32 v%d, v6, 4, s%d" % (RA0, S_T1))
    g("v_lshl_add_u32 v%d, v7, 4, s%d" % (RA1, S_T1))
    accs = [128, 16, 44, 72]
    XT = 8
    def redw(mi):
        g("s_lshl_b32 s%d, s%d, 12" % (S_T1, SMI + mi))
        g("v_add_u32 v6, s%d, v%d" % (S_T1, RA0))
        g("v_add_u32 v7, s%d, v%d" % (S_T1, RA1))
        for c in range(4):
            g("ds_write_b128 v%d, %s offset:%d" % ((6, 7)[c & 1], vr(accs[mi] + 4 * c, 4), c * 1024))
    XT, AOT = 32, 36
    AOG = [128, 132, 136, 140, 16, 20, 24, 28]
    def ao_body():
        g("v_lshrrev_b32 v%d, 4, v1" % VT)
        g("v_and_b32 v%d, 15, v1" % VT2)
        g("v_mul_u32_u24 v8, %d, v%d" % (AOP, VT))
        g("v_lshl_add_u32 v8, v%d, 4, v8" % VT2)
        g("s_mul_i32 s%d, s%d, %d" % (S_T0, S_NT, 32 * AOP))
        g("s_lshl_b32 s%d, s%d, 8" % (S_T1, S_RT))
        g("s_add_u32 s%d, s%d, s%d" % (S_T0, S_T0, S_T1))
        g("s_add_u32 s%d, s%d, %d" % (S_T0, S_T0, WS_AO))
        for k in range(8):
            g.vmem("buffer_load_dwordx4 %s, v8, %s, s%d offen sc1" % (vr(AOG[k], 4), SRDW(S_WS), S_T0), "0:aot")
            if k < 7:
                g("s_add_u32 s%d, s%d, %d" % (S_T0, S_T0, 4 * AOP))
        g("v_mul_u32_u24 v8, 272, v%d" % VT)
        g("v_lshl_add_u32 v8, v%d, 4, v8" % VT2)
        g("v_add_u32 v8, %d, v8" % AOL)
    g.wait_vm("ao")
    g("s_barrier")
    publish(g, pub_ao, VT2)
    hload(2)
    for mi in range(4):
        a0 = accs[mi]
        for j in range(7):
            g.wait_vm("h%d_%d" % (mi, j))
            for c in range(4):
                a = a0 + 4 * c
                g("v_mfma_f32_16x16x32_bf16 %s, %s, %s, %s" % (vr(a, 4), vr(W2F + 16 * j + 4 * c, 4), vr(HF + 28 * mi + 4 * j, 4), "0" if j == 0 else vr(a, 4)))
            if mi == 1 and j == 1:
                flag_issue(g, VFL, (S_NT, 17))
                hload(3)
                g.vmem("buffer_load_dwordx4 %s, v12, %s, s%d offen" % (vr(XT, 4), SRDW(S_X), S_M + 3), "xt")
            if j == 2 and mi > 0:
                redw(mi - 1)
        if mi == 2:
            g("s_waitcnt lgkmcnt(0)")
            flag_check(g, VFL, 32, body=ao_body)
    g.stamp(10)
    g("v_lshrrev_b32 v%d, 3, v1" % VT)
    g("s_and_b32 s%d, s%d, 1" % (S_T0, S_WAVE))
    g("s_lshl_b32 s%d, s%d, 3" % (S_T0, S_T0))
    g("v_add_u32 v%d, s%d, v%d" % (VT, S_T0, VT))
    g("v_and_b32 v%d, 3, v1" % VT2)
    g("v_lshl_add_u32 v9, v%d, 2, v%d" % (VT2, VT))
    g("v_and_b32 v9, 15, v9")
    g("v_and_b32 v%d, 1, v1" % VT2)
    g("v_lshl_add_u32 v9, v%d, 5, v9" % VT2)
    g("v_lshlrev_b32 v9, 4, v9")
    g("v_bfe_u32 v%d, v1, 1, 2" % VT2)
    g("v_lshl_add_u32 v9, v%d, 10, v9" % VT2)
    g("s_lshr_b32 s%d, s%d, 1" % (S_T0, S_WAVE))
    g("s_lshl_b32 s%d, s%d, 12" % (S_T0, S_T0))
    g("v_add_u32 v9, s%d, v9" % S_T0)
    g("v_add_u32 v10, 0x10000, v9")
    redw(3)
    g("v_and_b32 v%d, 7, v1" % VT2)
    g("v_mul_u32_u24 v11, 1088, v%d" % VT2)
    g("v_lshrrev_b32 v%d, 3, v1" % VT2)
    g("v_lshl_add_u32 v11, v%d, 2, v11" % VT2)
    g("s_lshl_b32 s%d, s%d, 5" % (S_T0, S_WAVE))
    g("s_add_u32 s%d, s%d, %d" % (S_T0, S_T0, AOL))
    g("v_add_u32 v11, s%d, v11" % S_T0)
    g.wait_vm("xt")
    sk = g.newlabel("AOW")
    g("s_cmp_lg_u32 s%d, 0" % S_WAVE)
    g("s_cbranch_scc1 %s" % sk)
    g("s_waitcnt vmcnt(0)")
    for k in range(8):
        g("ds_write_b128 v8, %s offset:%d" % (vr(AOG[k], 4), 4 * 272 * k))
    g.label(sk)
    g("s_waitcnt lgkmcnt(0)")
    g("s_barrier")
    g.stamp(11)
    R = 144
    for w in range(8):
        for hh in range(2):
            g("ds_read_b128 %s, v%d offset:%d" % (vr(R + 8 * w + 4 * hh, 4), 10 if w >= 4 else 9, (w & 3) * 16384 + hh * 256))
    for j in range(4):
        g("ds_read_b32 v%d, v11 offset:%d" % (AOT + j, 272 * j))
    T = 48
    for k in range(4):
        g("v_lshlrev_b32 v%d, 16, v%d" % (T + 2 * k, XT + k))
        g("v_and_b32 v%d, 0xffff0000, v%d" % (T + 2 * k + 1, XT + k))
    g("s_waitcnt lgkmcnt(0)")
    for step in (32, 16, 8):
        for b in range(0, step, 8):
            for r in range(8):
                g("v_add_f32 v%d, v%d, v%d" % (R + b + r, R + b + r, R + b + step + r))
    for k in range(4):
        g("v_lshlrev_b32 v%d, 16, v%d" % (T + 8 + 2 * k, AOT + k))
        g("v_and_b32 v%d, 0xffff0000, v%d" % (T + 8 + 2 * k + 1, AOT + k))
    for r in range(8):
        g("v_add_f32 v%d, v%d, v%d" % (T + r, T + r, T + 8 + r))
    for r in range(8):
        g("v_cvt_pk_bf16_f32 v%d, v%d, v%d" % (T + 8 + r, T + r, R + r))
    for r in range(8):
        g("v_lshlrev_b32 v%d, 16, v%d" % (T + r, T + 8 + r))
        g("v_and_b32 v%d, 0xffff0000, v%d" % (T + 8 + r, T + 8 + r))
    for r in range(8):
        g("v_add_f32 v%d, v%d, v%d" % (T + r, T + r, T + 8 + r))
    for k in range(4):
        g("v_cvt_pk_bf16_f32 v%d, v%d, v%d" % (R + k, T + 2 * k, T + 2 * k + 1))
    g("buffer_store_dwordx4 %s, v12, %s, s%d offen" % (vr(R, 4), SRDW(S_OUT), S_M + 3))
    if OPT["dbgtime"]:
        sk = w0(g)
        g("s_and_b32 s%d, s2, 63" % S_T0)
        g("s_cmp_lg_u32 s%d, 40" % S_T0)
        g("s_cbranch_scc1 %s" % sk)
        g("s_memtime s[94:95]")
        g("s_memrealtime s[96:97]")
        g("s_waitcnt lgkmcnt(0)")
        g("s_sub_u32 s94, s94, s98")
        g("v_mov_b32 v20, s94")
        g("v_mov_b32 v21, s100")
        g("v_mov_b32 v22, s96")
        g("s_lshr_b32 s%d, s2, 6" % S_T0)
        g("s_mul_i32 s%d, s%d, 12" % (S_T0, S_T0))
        g("s_add_u32 s%d, s%d, 4" % (S_T0, S_T0))
        g("s_mov_b64 exec, 1")
        g("buffer_store_dwordx3 v[20:22], off, %s, s%d" % (SRDW(S_DBG), S_T0))
        g.label(sk)
    if g.ts:
        g.stamp(12)
        g.stamp(13)
        g("s_memrealtime s[98:99]")
        g("s_waitcnt lgkmcnt(0)")
        g("v_writelane_b32 v%d, s98, 14" % g.VTS)
        g("s_lshl_b32 s%d, s2, 11" % S_T0)
        g("s_lshl_b32 s%d, s%d, 8" % (S_T1, S_WAVE))
        g("s_add_u32 s%d, s%d, s%d" % (S_T0, S_T0, S_T1))
        g("s_add_u32 s%d, s%d, %d" % (S_T0, S_T0, WS_TS))
        g("buffer_store_dword v%d, v2, %s, s%d offen" % (g.VTS, SRDW(S_WS), S_T0))


HEADER = open("parallel_sum__ssm_conv_s4d__glu_gated_swiglu__prompt.s.ref").read().split("; Override launch")[0]


def emit(ts=False):
    g = gen(ts)
    body = "\n".join(g.L)
    return HEADER + """; @launch grid=(256,1,1) block=(512,1,1) lds=163840
.amdgcn_target "amdgcn-amd-amdhsa--gfx950"
.text
.globl %s
.p2align 8
.type %s,@function
%s:
%s
.fill 3072, 4, 0xBF800000
.section .rodata,"a"
.p2align 6
.amdhsa_kernel %s
  .amdhsa_next_free_vgpr 256
  .amdhsa_next_free_sgpr 102
  .amdhsa_accum_offset 256
  .amdhsa_group_segment_fixed_size 0
  .amdhsa_kernarg_size 112
  .amdhsa_user_sgpr_count 2
  .amdhsa_user_sgpr_kernarg_segment_ptr 1
  .amdhsa_system_sgpr_workgroup_id_x 1
.end_amdhsa_kernel
""" % (KNAME, KNAME, KNAME, body, KNAME)


if __name__ == "__main__":
    ts = "--ts" in sys.argv
    for a in sys.argv[1:]:
        if a.startswith("--") and "=" in a:
            k, v = a[2:].split("=")
            OPT[k] = int(v)
    out = [a for a in sys.argv[1:] if not a.startswith("--")]
    path = out[0] if out else "k.s"
    open(path, "w").write(emit(ts))
    print("wrote", path)
```

```python
import sys, struct

KNAME = "parallel_sum__ssm_conv_s4d__glu_gated_swiglu__prompt_kernel"

WS_XNT = 0
XP = 65536 + 256
WS_STATS = 3 << 20
WS_CS = WS_STATS + 32768
WS_FLG = WS_STATS + 65536
FP = 384
WS_PCS = WS_STATS + 131072
WS_H = 4 << 20
WS_AO = 12 << 20
AOP = 8192 + 128
WS_TS = 15 << 20
WS_SIZE = 16 << 20

KV_PITCH = 3072
KV_BIAS = 0x3F7F
KV_ZERO = 0x4500 - KV_BIAS + 1
KV_DUMP = KV_ZERO + 1

LOG2E = 0x3FB8AA3B
NLOG2E = 0xBFB8AA3B
INV2PI = 0x3E22F983

XBASE, WBASE = 0, 49152
KC = 114688
UB = KC + 33280
KVT = UB + 9216
TP = 272
TUNIT = 57 * TP
W2P = 14336
AOL = 131072

OPT = dict(auxpf=0, dbgtime=0)


class Gen:
    def __init__(self, ts=False):
        self.L = []
        self.vm = []
        self.ts = ts
        self.lbl = 0

    def __call__(self, s):
        self.L.append("    " + s)

    def label(self, l):
        self.L.append(l + ":")

    def newlabel(self, p="L"):
        self.lbl += 1
        return "%s_%d" % (p, self.lbl)

    def vmem(self, s, tag):
        self(s)
        self.vm.append(tag)

    def wait_vm(self, tags, extra=""):
        if isinstance(tags, str):
            tags = [tags]
        last = -1
        for i, t in enumerate(self.vm):
            if t in tags:
                last = i
        if last < 0:
            if extra:
                self("s_waitcnt " + extra)
            return
        w0 = any(t.startswith("0:") for t in tags)
        n = len([t for t in self.vm[last + 1:] if w0 or not t.startswith("0:")])
        assert n <= 63, n
        self("s_waitcnt vmcnt(%d) %s" % (n, extra))
        if w0:
            self.vm = [t for i, t in enumerate(self.vm) if i > last or not t.startswith("0:")]
        else:
            self.vm = self.vm[last + 1:]

    def wait_vm_all(self, extra=""):
        self("s_waitcnt vmcnt(0) %s" % extra)
        self.vm = []

    def stamp(self, idx):
        if not self.ts:
            return
        self("s_memtime s[98:99]")
        self("s_waitcnt lgkmcnt(0)")
        self("v_writelane_b32 v%d, s98, %d" % (self.VTS, idx))


def vr(a, n=1):
    return "v%d" % a if n == 1 else "v[%d:%d]" % (a, a + n - 1)


def fimm(k):
    if k == 0:
        return "0"
    if k in (1, 2, 4):
        return "%d.0" % k
    return "0x%08x" % struct.unpack("<I", struct.pack("<f", float(k)))[0]


S_X, S_W1, S_W3, S_W2, S_OUT, S_DBG, S_WS = 4, 8, 12, 16, 20, 24, 28
S_WAVE, S_MT, S_FT, S_ROT = 32, 33, 34, 35
S_WOFF = 36
S_XOFF = 44
S_J = 44
S_WK = 52
S_T0, S_T1, S_T2, S_T3 = 53, 54, 55, 56
S_RT, S_NT = 57, 58
S_LDT = 59
S_EX = 60
S_CNT = 62
S_DSK = 63
P_LAR, P_AIM, P_CR, P_CI, P_LDT, P_DSK = 66, 68, 70, 72, 74, 76
S_M = 92
VT, VT2 = 13, 14
W2F = 144
SRDW = lambda s: "s[%d:%d]" % (s, s + 3)


def srd(g, d, p, nbytes):
    g("s_mov_b32 s%d, s%d" % (d, p))
    g("s_mov_b32 s%d, s%d" % (d + 1, p + 1))
    g("s_mov_b32 s%d, 0x%x" % (d + 2, nbytes))
    g("s_mov_b32 s%d, 0x00020000" % (d + 3))


S_NONCE = 90
S_FA2 = 87


def w0(g):
    sk = g.newlabel("W0")
    g("s_cmp_lg_u32 s%d, 0" % S_WAVE)
    g("s_cbranch_scc1 %s" % sk)
    return sk


def nonce_write(g):
    sk = g.newlabel("NW")
    g("s_or_b32 s%d, s2, s%d" % (S_CNT, S_WAVE))
    g("s_cmp_lg_u32 s%d, 0" % S_CNT)
    g("s_cbranch_scc1 %s" % sk)
    g("s_memrealtime s[96:97]")
    g("s_waitcnt lgkmcnt(0)")
    g("s_or_b32 s%d, s96, 1" % S_CNT)
    g("v_mov_b32 v%d, s%d" % (VT2, S_CNT))
    g("s_mov_b64 exec, 1")
    g("buffer_store_dword v%d, v2, %s, 0 offen sc1" % (VT2, SRDW(S_DBG)))
    g("s_mov_b64 exec, -1")
    g.label(sk)


def nonce_issue(g, vf):
    sk = w0(g)
    g.vmem("buffer_load_dword v%d, off, %s, 0 sc1" % (vf, SRDW(S_DBG)), "0:nonce")
    g.label(sk)


def nonce_check(g, vf):
    sk = w0(g)
    lp = g.newlabel("NP")
    g.wait_vm("0:nonce")
    g("s_mov_b32 s%d, 0" % S_CNT)
    g.label(lp)
    g("v_readfirstlane_b32 s%d, v%d" % (S_NONCE, vf))
    g("s_add_u32 s%d, s%d, 1" % (S_CNT, S_CNT))
    g("s_nop 2")
    g("s_cmp_lg_u32 s%d, 0" % S_NONCE)
    g("s_cbranch_scc1 %s" % sk)
    g("s_cmp_ge_u32 s%d, 0x4000" % S_CNT)
    g("s_cbranch_scc1 %s" % sk)
    g("s_sleep 8")
    g("buffer_load_dword v%d, off, %s, 0 sc1" % (vf, SRDW(S_DBG)))
    g("s_waitcnt vmcnt(0)")
    g("s_branch %s" % lp)
    g.label(sk)


def flag_issue(g, vf, line, tag="0:flag", S_FA=91):
    sk = w0(g)
    sg, c = line
    if sg is None:
        g("s_mov_b32 s%d, %d" % (S_FA, WS_FLG + c * FP))
    else:
        g("s_mul_i32 s%d, s%d, %d" % (S_FA, sg, FP))
        g("s_add_u32 s%d, s%d, %d" % (S_FA, S_FA, WS_FLG + c * FP))
    g.vmem("buffer_load_dword v%d, v2, %s, s%d offen sc1" % (vf, SRDW(S_WS), S_FA), tag)
    g.label(sk)


def flag_check(g, vf, count, tag="0:flag", body=None, sfa=91):
    S_FA = sfa
    lp = g.newlabel("POLL")
    ok = g.newlabel("POLLK")
    done = w0(g)
    g.wait_vm(tag)
    g("s_mov_b32 s%d, 0" % S_CNT)
    g.label(lp)
    g("v_cmp_ne_u32 vcc, s%d, v%d" % (S_NONCE, vf))
    g("s_add_u32 s%d, s%d, 1" % (S_CNT, S_CNT))
    g("s_and_b32 s%d, vcc_lo, 0x%x" % (S_EX, (1 << count) - 1))
    g("s_cbranch_scc0 %s" % ok)
    g("s_cmp_ge_u32 s%d, 0x4000" % S_CNT)
    g("s_cbranch_scc1 %s" % ok)
    g("s_sleep 4")
    g("buffer_load_dword v%d, v2, %s, s%d offen sc1" % (vf, SRDW(S_WS), S_FA))
    g("s_waitcnt vmcnt(0)")
    g("s_branch %s" % lp)
    g.label(ok)
    if body:
        body()
    g.label(done)


def publish(g, addr_code, vtmp):
    sk = w0(g)
    addr_code(g)
    g("v_mov_b32 v%d, s%d" % (vtmp, S_NONCE))
    g("s_mov_b64 exec, 1")
    g("buffer_store_dword v%d, off, %s, s%d sc1" % (vtmp, SRDW(S_WS), S_CNT))
    g("s_mov_b64 exec, -1")
    g.label(sk)


def pub_aux(g):
    g("s_lshl_b32 s%d, s2, 2" % S_CNT)
    g("s_add_u32 s%d, s%d, %d" % (S_CNT, S_CNT, WS_FLG))


def pub_h(g):
    g("s_mul_i32 s%d, s%d, %d" % (S_CNT, S_MT, FP))
    g("s_lshl_b32 s%d, s%d, 2" % (S_EX, S_FT))
    g("s_add_u32 s%d, s%d, s%d" % (S_CNT, S_CNT, S_EX))
    g("s_add_u32 s%d, s%d, %d" % (S_CNT, S_CNT, WS_FLG + FP))


def pub_ao(g):
    g("s_mul_i32 s%d, s%d, %d" % (S_CNT, S_NT, FP))
    g("s_and_b32 s%d, s2, 31" % S_EX)
    g("s_lshl_b32 s%d, s%d, 2" % (S_EX, S_EX))
    g("s_add_u32 s%d, s%d, s%d" % (S_CNT, S_CNT, S_EX))
    g("s_add_u32 s%d, s%d, %d" % (S_CNT, S_CNT, WS_FLG + 17 * FP))


def rnd_bf16(g, d, s):
    g("v_cvt_pk_bf16_f32 v%d, v%d, v%d" % (d, s, s))
    g("v_lshlrev_b32 v%d, 16, v%d" % (d, d))


def cmul1(d, a, b):
    return "v_pk_mul_f32 %s, %s, %s op_sel:[0,0] op_sel_hi:[0,1]" % (vr(d, 2), vr(a, 2), vr(b, 2))


def cmul2(d, a, b):
    return "v_pk_fma_f32 %s, %s, %s, %s op_sel:[1,1,0] op_sel_hi:[1,0,1] neg_lo:[0,1,0]" % (vr(d, 2), vr(a, 2), vr(b, 2), vr(d, 2))


def aux_need(g, vn, bits):
    g("v_mov_b32 v%d, 0x%08x" % (vn, bits * 0x01010101))
    g("v_cmp_gt_u32 vcc, 8, v1")
    g("s_nop 1")
    g("v_cndmask_b32 v%d, 0, v%d, vcc" % (vn, vn))


ROWS = {}
for _g in range(4):
    for _r in range(4):
        ROWS[(0, 4 * _g + _r)] = 4 * (_g & 1) + 128 * (_g >> 1) + _r
        ROWS[(1, 4 * _g + _r)] = (256 + 128 * (_g & 1) + 2 * _r) if _g < 2 else (512 + 4 * (_g & 1) + 128 * _r)
        ROWS[(2, 4 * _g + _r)] = 1024 + 512 * _g + 128 * _r
POS2ROW = {p: 16 + 16 * t + m for (t, m), p in ROWS.items() if p <= 2048}
assert len(POS2ROW) == 41 and max(POS2ROW.values()) == 56

PRM = 240


K_WR, K_R0, K_R1, K_A0, K_A1, K_OA, K_IX, K_CP, K_ZE = 208, 209, 210, 211, 212, 213, 217, 228, 229
K_DA = 232
S_KH, S_KL = 84, 85
UNITS = [KC, KC + TUNIT, XBASE + 2 * 16384, WBASE + 3 * 16384]
assert KC + 2 * TUNIT <= KVT and KVT + 6144 <= 163840


def k_addr(g):
    g("s_lshr_b32 s%d, s%d, 1" % (S_T0, S_WAVE))
    g("s_mov_b32 s%d, %d" % (S_T1, UNITS[0]))
    for u in range(1, 4):
        g("s_cmp_eq_u32 s%d, %d" % (S_T0, u))
        g("s_cmov_b32 s%d, %d" % (S_T1, UNITS[u]))
    g("v_add_u32 v%d, s%d, v2" % (K_WR, S_T1))
    g("s_and_b32 s%d, s%d, 1" % (S_T0, S_T0))
    g("s_lshl_b32 s%d, s%d, 4" % (S_T0, S_T0))
    g("s_sub_u32 s%d, 16, s%d" % (S_KH, S_T0))
    g("s_lshr_b32 s%d, s%d, 2" % (S_T2, S_WAVE))
    g("s_lshl_b32 s%d, s%d, 4" % (S_T0, S_T2))
    g("s_sub_u32 s%d, 16, s%d" % (S_KL, S_T0))
    g("v_and_b32 v%d, 15, v1" % VT)
    g("v_lshrrev_b32 v%d, 4, v1" % VT2)
    g("v_mul_u32_u24 v%d, %d, v%d" % (K_R0, TP, VT))
    g("v_lshl_add_u32 v%d, v%d, 4, v%d" % (K_R0, VT2, K_R0))
    g("s_cmp_eq_u32 s%d, 0" % S_T2)
    g("s_mov_b32 s%d, %d" % (S_T0, UNITS[2]))
    g("s_cmov_b32 s%d, %d" % (S_T0, UNITS[0]))
    g("s_mov_b32 s%d, %d" % (S_T1, UNITS[3]))
    g("s_cmov_b32 s%d, %d" % (S_T1, UNITS[1]))
    g("v_add_u32 v%d, s%d, v%d" % (K_R1, S_T1, K_R0))
    g("v_add_u32 v%d, s%d, v%d" % (K_R0, S_T0, K_R0))
    g("s_and_b32 s%d, s%d, 3" % (S_T3, S_WAVE))
    g("s_mul_i32 s%d, s%d, %d" % (S_T0, S_T3, 16 * TP))
    g("v_add_u32 v%d, s%d, v%d" % (K_A0, S_T0, K_R0))
    g("v_add_u32 v%d, s%d, v%d" % (K_A1, S_T0, K_R1))
    tabs = [(0, 256, 1024, 4096), (128, 512, 2048, 4096), (4, 128, 512, 0), (4, 4, 512, 0), (1, 2, 128, 0), (1, 128, 128, 0)]
    SB = 92
    for i, t in enumerate(tabs):
        g("s_mov_b32 s%d, %d" % (SB + i, t[0]))
    for tt in (1, 2, 3):
        g("s_cmp_eq_u32 s%d, %d" % (S_T3, tt))
        for i, t in enumerate(tabs):
            g("s_cmov_b32 s%d, %d" % (SB + i, t[tt]))
    g("v_cmp_le_u32 vcc, 32, v1")
    for i in range(3):
        g("v_mov_b32 v%d, s%d" % (24 + i, SB + 2 * i))
        g("v_mov_b32 v%d, s%d" % (27 + i, SB + 2 * i + 1))
    for i in range(3):
        g("v_cndmask_b32 v%d, v%d, v%d, vcc" % (24 + i, 24 + i, 27 + i))
    g("v_and_b32 v27, 1, v%d" % VT2)
    g("v_mad_u32_u24 v24, v27, v25, v24")
    g("v_lshl_add_u32 v24, v%d, 3, v24" % VT)
    g("s_mul_i32 s%d, s%d, %d" % (S_T1, S_T2, KV_PITCH))
    g("s_add_u32 s%d, s%d, %d" % (S_T1, S_T1, KVT - 2 * KV_BIAS))
    g("v_mov_b32 v28, %d" % (KV_BIAS + KV_DUMP))
    for r in range(4):
        o = K_OA + r
        g("v_cvt_f32_u32 v%d, v24" % o)
        g("v_cmp_lt_u32 vcc, 2048, v24")
        g("v_lshrrev_b32 v%d, 16, v%d" % (o, o))
        g("v_max_u32 v%d, %d, v%d" % (o, KV_BIAS, o))
        g("v_cndmask_b32 v%d, v%d, v28, vcc" % (o, o))
        g("v_lshl_add_u32 v%d, v%d, 1, s%d" % (o, o, S_T1))
        if r < 3:
            g("v_add_u32 v24, v24, v26")
    g("s_add_u32 s%d, s%d, %d" % (S_T0, S_T1, 2 * (KV_BIAS + KV_ZERO)))
    g("v_mov_b32 v%d, s%d" % (K_ZE, S_T0))
    g("v_and_b32 v%d, 255, v0" % VT)
    g("v_lshlrev_b32 v%d, 3, v%d" % (VT2, VT))
    g("v_sub_u32 v%d, 2047, v%d" % (VT2, VT2))
    g("v_cvt_f32_i32 v%d, v%d" % (VT2, VT2))
    g("v_mov_b32 v24, %d" % KV_BIAS)
    g("v_mov_b32 v25, %d" % (KV_BIAS + KV_ZERO))
    for k in range(0, 12, 2):
        g("v_subrev_f32 v26, %s, v%d" % (fimm(k), VT2))
        g("v_subrev_f32 v27, %s, v%d" % (fimm(k + 1), VT2))
        g("v_cvt_pk_bf16_f32 v26, v26, v27")
        g("v_and_b32 v%d, 0xffff, v26" % (K_IX + k))
        if k < 10:
            g("v_lshrrev_b32 v%d, 16, v26" % (K_IX + k + 1))
    for k in range(11):
        g("v_med3_u32 v%d, v%d, v24, v25" % (K_IX + k, K_IX + k))
        g("v_lshl_add_u32 v%d, v%d, 1, s%d" % (K_IX + k, K_IX + k, S_T1))
    g("s_mul_i32 s%d, s%d, 16640" % (S_T1, S_T2))
    g("s_add_u32 s%d, s%d, %d" % (S_T1, S_T1, KC))
    g("v_lshl_add_u32 v%d, v%d, 4, s%d" % (K_CP, VT, S_T1))


def k_chains(g, sfx):
    Q = 16
    LAR, AIM, CR, CI = Q, Q + 1, Q + 2, Q + 3
    DT, ER, TU = Q + 4, Q + 5, Q + 6
    TA, TB = Q, Q + 1
    VWR = K_WR
    g("s_lshl_b32 s%d, s%d, s%d" % (S_T2, S_LDT, S_KL))
    g("s_and_b32 s%d, s%d, 0xffff0000" % (S_T2, S_T2))
    for k in range(4):
        g("v_lshlrev_b32 v%d, s%d, v%d" % (Q + k, S_KH, PRM + k))
    for k in range(4):
        g("v_and_b32 v%d, 0xffff0000, v%d" % (Q + k, Q + k))
    g("v_mov_b32 v%d, 0x%x" % (DT, LOG2E))
    g("v_mul_f32 v%d, s%d, v%d" % (DT, S_T2, DT))
    g("v_mul_f32 v%d, 0x%x, v%d" % (ER, LOG2E, LAR))
    g("v_exp_f32 v%d, v%d" % (DT, DT))
    g("v_exp_f32 v%d, v%d" % (ER, ER))
    g("s_nop 0")
    rnd_bf16(g, DT, DT)
    rnd_bf16(g, ER, ER)
    g("v_mul_f32 v%d, v%d, v%d" % (ER, ER, DT))
    g("v_mul_f32 v%d, v%d, v%d" % (TU, AIM, DT))
    g("v_mul_f32 v%d, 0x%x, v%d" % (ER, NLOG2E, ER))
    g("v_mul_f32 v%d, 0x%x, v%d" % (TU, INV2PI, TU))

    def direct(d, p, conj=False, t0=TA, t1=TB):
        g("v_mul_f32 v%d, %s, v%d" % (t0, fimm(p), ER))
        g("v_mul_f32 v%d, %s, v%d" % (t1, fimm(p), TU))
        g("v_exp_f32 v%d, v%d" % (t0, t0))
        g("v_fract_f32 v%d, v%d" % (t1, t1))
        g("v_cos_f32 v%d, v%d" % (d, t1))
        g("v_sin_f32 v%d, v%d" % (d + 1, t1))
        g("s_nop 0")
        g("v_mul_f32 v%d, v%d, v%d" % (d, d, t0))
        g("v_mul_f32 v%d, %sv%d, v%d" % (d + 1, "-" if conj else "", d + 1, t0))

    def run(chains, tmp0):
        streams = []
        ti = [0]
        for ci, c in enumerate(chains):
            s = []
            for op in c:
                if op[0] == "mul":
                    s.append(cmul1(*op[1:]))
                    s.append(cmul2(*op[1:]))
                else:
                    t = tmp0 + 2 * ci + (ti[0] & 1)
                    ti[0] += 1
                    s.append("v_cvt_pk_bf16_f32 v%d, v%d, v%d" % (t, op[2], op[2] + 1))
                    s.append("ds_write_b32 v%d, v%d offset:%d" % (VWR, t, op[1] * TP))
            streams.append(s)
        while any(streams):
            for s in streams:
                if s:
                    g(s.pop(0))

    g("s_bitcmp1_b32 s%d, 0" % S_WAVE)
    g("s_cbranch_scc1 L_KB" + sfx)
    E = {}
    nxt = [Q + 8]
    def al(n):
        E[n] = nxt[0]; nxt[0] += 2
        return E[n]
    GA, GB = al("ga"), al("gb")
    g("v_add_f32 v%d, v%d, v%d" % (DT, DT, DT))
    g("v_mul_f32 v%d, v%d, v%d" % (GA, CR, DT))
    g("v_mul_f32 v%d, -v%d, v%d" % (GA + 1, CI, DT))
    direct(al(8), 8, True); direct(al(1), 1); direct(al(128), 128)
    direct(al(64), 64, True)
    GC, GD = al("gc"), al("gd")
    for p in range(2, 8):
        al(p)
    PA, PB = al("pa"), al("pb")
    T0 = nxt[0]
    c1, cur, nx = [], GA, GB
    c2 = [("mul", GC, GA, E[64])]
    for b in range(8):
        c1.append(("put", b, cur))
        if b < 7:
            c1.append(("mul", nx, cur, E[8])); cur, nx = nx, cur
    cur, nx = GC, GD
    for b in range(8, 16):
        c2.append(("put", b, cur))
        if b < 15:
            c2.append(("mul", nx, cur, E[8])); cur, nx = nx, cur
    c3 = [("put", POS2ROW[1], E[1]), ("put", POS2ROW[128], E[128])]
    for p in range(2, 8):
        c3.append(("mul", E[p], E[p - 1], E[1]))
        c3.append(("put", POS2ROW[p], E[p]))
    c4 = []
    g("v_mov_b32 v%d, 0x00003f80" % TA)
    g("ds_write_b32 v%d, v%d offset:%d" % (VWR, TA, POS2ROW[0] * TP))
    run([c2, c1, c3], T0)
    ca, cb = [], []
    for p in range(1, 8):
        (ca if p & 1 else cb).extend([("mul", PA if p & 1 else PB, E[p], E[128]), ("put", POS2ROW[128 + p], PA if p & 1 else PB)])
    run([ca, cb], T0)
    g("s_branch L_KJ" + sfx)
    g.label("L_KB" + sfx)
    E = {}
    nxt = [Q + 8]
    direct(al(2), 2); direct(al(128), 128); direct(al(1024), 1024)
    al(4); al(6)
    for h in list(range(2, 8)) + list(range(9, 17)):
        al(128 * h)
    PA, PB = al("pa"), al("pb")
    T0 = nxt[0]
    assert T0 + 8 <= 128
    c1 = []
    for h in range(2, 8):
        c1.append(("mul", E[128 * h], E[128 * (h - 1)], E[128])); c1.append(("put", POS2ROW[128 * h], E[128 * h]))
    c2 = [("put", POS2ROW[1024], E[1024])]
    for h in range(9, 17):
        c2.append(("mul", E[128 * h], E[128 * (h - 1)], E[128])); c2.append(("put", POS2ROW[128 * h], E[128 * h]))
    c3 = [("mul", E[4], E[2], E[2]), ("mul", E[6], E[4], E[2])]
    run([c1, c2, c3], T0)
    prods = [p for p in sorted(POS2ROW) if p >= 256 and (p & 127)]
    ca, cb = [], []
    for i, p in enumerate(prods):
        d = (PA, PB)[i & 1]
        (ca, cb)[i & 1].extend([("mul", d, E[p & 127], E[p & ~127]), ("put", POS2ROW[p], d)])
    run([ca, cb], T0)
    g.label("L_KJ" + sfx)


K_FB, K_FA = 144, 176


def k_reads():
    r = []
    for hf in range(2):
        for ks in range(4):
            r.append("ds_read_b128 %s, v%d offset:%d" % (vr(K_FB + 16 * hf + 4 * ks, 4), (K_R0, K_R1)[hf], 64 * ks))
            r.append("ds_read_b128 %s, v%d offset:%d" % (vr(K_FA + 16 * hf + 4 * ks, 4), (K_A0, K_A1)[hf], 16 * TP + 64 * ks))
    return r


def k_mfmas():
    return ["v_mfma_f32_16x16x32_bf16 %s, %s, %s, %s" % (vr(K_DA, 4), vr(K_FA + 4 * i, 4), vr(K_FB + 4 * i, 4), "0" if i == 0 else vr(K_DA, 4)) for i in range(8)]


def k_table():
    r = ["v_mov_b32 v%d, 0" % VT]
    for k in range(4):
        r.append("v_cvt_pk_bf16_f32 v%d, v%d, v%d" % (K_DA + 4 + k, K_DA + k, K_DA + k))
    for k in range(4):
        r.append("ds_write_b16 v%d, v%d" % (K_OA + k, K_DA + 4 + k))
    r.append("ds_write_b16 v%d, v%d" % (K_ZE, VT))
    return r


def k_stage2(g):
    sk = g.newlabel("KS")
    g("v_mov_b32 v%d, 0" % VT)
    g("ds_write_b16 v%d, v%d" % (K_ZE, VT))
    g("s_and_b32 s%d, s%d, 3" % (S_T0, S_WAVE))
    g("s_cmp_eq_u32 s%d, 3" % S_T0)
    g("s_cbranch_scc1 %s" % sk)
    for r in k_reads():
        g(r)
    for i, m in enumerate(k_mfmas()):
        g("s_waitcnt lgkmcnt(%d)" % (14 - 2 * i))
        g(m)
    g("s_nop 7")
    g("s_nop 1")
    for r in k_table()[1:-1]:
        g(r)
    g.label(sk)


def k_gather():
    return ["ds_read_u16 v%d, v%d" % (144 + k, K_IX + k) for k in range(11)]


def k_build():
    D, O = 144, 160
    r = []
    for sft in range(4):
        for k in range(4):
            r.append("v_lshl_or_b32 v%d, v%d, 16, v%d" % (O + 4 * sft + k, D + sft + 2 * k + 1, D + sft + 2 * k))
        r.append("ds_write_b128 v%d, %s offset:%d" % (K_CP, vr(O + 4 * sft, 4), 4160 * sft))
    return r


def k_zero(g):
    z6, z7 = g.newlabel("Z"), g.newlabel("Z")
    g("s_cmp_lt_u32 s%d, 6" % S_WAVE)
    g("s_cbranch_scc1 %s" % z7)
    for r in range(4):
        g("v_mov_b32 v%d, 0" % (176 + r))
    g("v_lshrrev_b32 v%d, 5, v1" % VT)
    g("v_lshlrev_b32 v%d, 12, v%d" % (VT, VT))
    g("v_lshl_add_u32 v%d, v1, 4, v%d" % (VT, VT))
    g("v_add_u32 v%d, %d, v%d" % (VT, UB, VT))
    g("s_cmp_eq_u32 s%d, 6" % S_WAVE)
    g("s_cbranch_scc1 %s" % z6)
    g("v_bfe_u32 v%d, v1, 1, 3" % VT)
    g("v_mul_u32_u24 v%d, 4160, v%d" % (VT, VT))
    g("v_and_b32 v%d, 1, v1" % VT2)
    g("v_lshl_add_u32 v%d, v%d, 4, v%d" % (VT, VT2, VT))
    g("v_add_u32 v%d, %d, v%d" % (VT, KC + 4096, VT))
    g.label(z6)
    g("ds_write_b128 v%d, v[176:179]" % VT)
    g.label(z7)


def w2_setup(g, vd, va):
    g("v_lshrrev_b32 v%d, 4, v1" % VT)
    g("v_lshlrev_b32 v%d, 1, v%d" % (VT, VT))
    g("v_xor_b32 v%d, v%d, v1" % (VT, VT))
    g("v_and_b32 v%d, 7, v%d" % (VT, VT))
    g("v_lshrrev_b32 v%d, 3, v1" % VT2)
    g("v_lshlrev_b32 v%d, 10, v%d" % (vd, VT2))
    g("v_lshl_add_u32 v%d, v%d, 4, v%d" % (vd, VT, vd))
    g("s_mul_i32 s%d, s%d, %d" % (S_M, S_WAVE, 224 * 1024))
    g("s_lshl_b32 s%d, s%d, 7" % (S_M + 1, S_NT))
    g("s_add_u32 s%d, s%d, s%d" % (S_M, S_M, S_M + 1))
    g("s_mul_i32 s%d, s%d, %d" % (S_M + 1, S_WAVE, W2P))
    g("s_lshr_b32 s%d, s2, 2" % S_T0)
    g("s_and_b32 s%d, s%d, 6" % (S_T0, S_T0))
    g("s_and_b32 s%d, s2, 7" % S_T1)
    g("s_add_u32 s%d, s%d, s%d" % (S_T0, S_T0, S_T1))
    for j in range(7):
        if j:
            g("s_add_u32 s%d, s%d, 1" % (S_T0, S_T0))
        g("s_sub_u32 s%d, s%d, 7" % (S_T1, S_T0))
        g("s_cmp_ge_u32 s%d, 7" % S_T0)
        g("s_cselect_b32 s%d, s%d, s%d" % (S_T0, S_T1, S_T0))
        g("s_lshl_b32 s%d, s%d, 10" % (S_J + j, S_T0))
    g("v_and_b32 v%d, 3, v%d" % (VT2, VT2))
    g("v_lshlrev_b32 v%d, 5, v%d" % (VT2, VT2))
    g("v_lshrrev_b32 v%d, 2, v1" % VT)
    g("v_lshl_add_u32 v%d, v%d, 7, v%d" % (VT2, VT, VT2))
    g("v_and_b32 v%d, 3, v1" % VT)
    g("v_lshl_add_u32 v%d, v%d, 3, v%d" % (VT2, VT, VT2))
    g("v_add_u32 v%d, s%d, v%d" % (va, S_M + 1, VT2))
    for c in range(1, 4):
        g("v_xor_b32 v%d, %d, v%d" % (va + c, 32 * c, va))


def w2_dma(g, vd, j):
    g("s_lshl_b32 s%d, s%d, 5" % (S_M + 2, S_J + j))
    g("s_add_u32 s%d, s%d, s%d" % (S_M + 2, S_M + 2, S_M))
    for q in range(4):
        g("s_add_u32 m0, s%d, %d" % (S_M + 1, (j % 3) * 4096 + q * 1024))
        g("s_add_u32 s%d, s%d, %d" % (S_M + 2, S_M + 2, 8192 if q else 0))
        g.vmem("buffer_load_dwordx4 v%d, %s, s%d offen lds" % (vd, SRDW(S_W2), S_M + 2), "w2_%d" % j)


def w2_rd(g, va, j):
    g.wait_vm("w2_%d" % j)
    for c in range(4):
        d = W2F + 16 * j + 4 * c
        g("ds_read_b64_tr_b16 %s, v%d offset:%d" % (vr(d, 2), va + c, (j % 3) * 4096))
        g("ds_read_b64_tr_b16 %s, v%d offset:%d" % (vr(d + 2, 2), va + c, (j % 3) * 4096 + 2048))


def reduce8(g, p):
    g("s_nop 1")
    for i in range(4):
        g("v_permlane32_swap_b32 v%d, v%d" % (p + i, p + i + 4))
    g("s_nop 1")
    for i in range(4):
        g("v_add_f32 v%d, v%d, v%d" % (p + i, p + i, p + i + 4))
    g("s_nop 1")
    for i in range(2):
        g("v_permlane16_swap_b32 v%d, v%d" % (p + i, p + i + 2))
    g("s_nop 1")
    for i in range(2):
        g("v_add_f32 v%d, v%d, v%d" % (p + i, p + i, p + i + 2))
    for rot in (8, 4, 2, 1):
        g("s_nop 1")
        for i in range(2):
            g("v_add_f32_dpp v%d, v%d, v%d row_ror:%d row_mask:0xf bank_mask:0xf" % (p + i, p + i, p + i, rot))


V_W2D, V_W2A = 3, 4
UREG = 236
STR, CSR = 204, 220


def u_load(g):
    g("v_lshrrev_b32 v%d, 4, v0" % VT)
    g("v_mul_u32_u24 v%d, %d, v%d" % (VT, XP, VT))
    g("v_and_b32 v%d, 15, v0" % VT2)
    g("v_lshl_add_u32 v%d, v%d, 4, v%d" % (VT, VT2, VT))
    g("s_lshl_b32 s%d, s2, 8" % S_T1)
    g.vmem("buffer_load_dwordx4 %s, v%d, %s, s%d offen sc1" % (vr(UREG, 4), VT, SRDW(S_WS), S_T1), "u")


def u_store(g):
    g("v_lshrrev_b32 v%d, 4, v0" % VT)
    g("v_lshlrev_b32 v%d, 7, v%d" % (VT, VT))
    g("v_and_b32 v%d, 7, v0" % VT2)
    g("v_lshl_add_u32 v%d, v%d, 4, v%d" % (VT, VT2, VT))
    g("v_bfe_u32 v%d, v0, 3, 1" % VT2)
    g("v_mul_u32_u24 v%d, 4608, v%d" % (VT2, VT2))
    g("v_add_u32 v%d, v%d, v%d" % (VT, VT, VT2))
    g("v_add_u32 v%d, %d, v%d" % (VT, UB + 512, VT))
    g.wait_vm("u")
    g("ds_write_b128 v%d, %s" % (VT, vr(UREG, 4)))


def pub_pcs(g):
    g("s_mul_i32 s%d, s%d, %d" % (S_CNT, S_FT, FP))
    g("s_lshl_b32 s%d, s%d, 2" % (S_EX, S_MT))
    g("s_add_u32 s%d, s%d, s%d" % (S_CNT, S_CNT, S_EX))
    g("s_add_u32 s%d, s%d, %d" % (S_CNT, S_CNT, WS_FLG + 25 * FP))


def gen(ts=False):
    g = Gen(ts)
    g.VTS = 15
    g("s_cmp_ge_u32 s2, 256")
    g("s_cbranch_scc1 L_END")
    if OPT["dbgtime"]:
        g("s_memtime s[98:99]")
        g("s_memrealtime s[100:101]")
    g("s_load_dwordx16 s[64:79], s[0:1], 0")
    g("s_load_dwordx8 s[80:87], s[0:1], 64")
    g("s_load_dwordx4 s[88:91], s[0:1], 96")
    g("s_getpc_b64 s[%d:%d]" % (S_M, S_M + 1))
    g("s_lshr_b32 s%d, s2, 3" % S_T1)
    g("s_and_b32 s%d, s%d, 3" % (S_T2, S_T1))
    g("s_lshl_b32 s%d, s%d, 13" % (S_T0, S_T2))
    g("v_lshlrev_b32 v3, 4, v0")
    g("v_add_u32 v3, s%d, v3" % S_T0)
    g.vmem("global_load_dwordx4 v[252:255], v3, s[%d:%d]" % (S_M, S_M + 1), "code")
    g("v_and_b32 v1, 63, v0")
    g("v_lshrrev_b32 v3, 6, v0")
    g("v_lshlrev_b32 v2, 2, v1")
    g("v_readfirstlane_b32 s%d, v3" % S_WAVE)
    for r in range(4, 7):
        g("v_mov_b32 v%d, 0" % r)
    if ts:
        g("v_mov_b32 v%d, 0" % g.VTS)
    g("s_and_b32 s%d, s2, 7" % S_T0)
    g("s_and_b32 s%d, s2, 3" % S_RT)
    g("s_lshl_b32 s%d, s%d, 3" % (S_RT, S_RT))
    g("s_and_b32 s%d, s2, 4" % S_T3)
    g("s_add_u32 s%d, s%d, s%d" % (S_RT, S_RT, S_T3))
    g("s_add_u32 s%d, s%d, s%d" % (S_RT, S_RT, S_T2))
    g("s_lshr_b32 s%d, s2, 5" % S_NT)
    g("s_lshl_b32 s%d, s%d, 10" % (S_WK, S_WAVE))
    g("s_lshr_b32 s%d, s%d, 2" % (S_T3, S_WAVE))
    g("s_lshl_b32 s%d, s%d, 8" % (S_T3, S_T3))
    g("s_lshl_b32 s%d, s2, 9" % S_CNT)
    g("s_add_u32 s%d, s%d, s%d" % (S_T3, S_T3, S_CNT))
    g("v_add_u32 v%d, s%d, v2" % (VT, S_T3))
    g("s_lshl_b32 s%d, s2, 2" % S_CNT)
    g("s_waitcnt lgkmcnt(0)")
    for k, p in enumerate((P_LAR, P_AIM, P_CR, P_CI)):
        g.vmem("global_load_dword v%d, v%d, s[%d:%d]" % (PRM + k, VT, p, p + 1), "prm")
    g("s_load_dword s%d, s[%d:%d], s%d" % (S_LDT, P_LDT, P_LDT + 1, S_CNT))
    g("s_load_dword s%d, s[%d:%d], s%d" % (S_DSK, P_DSK, P_DSK + 1, S_CNT))
    srd(g, S_X, 64, 2097152)
    srd(g, S_W1, 80, 1835008)
    srd(g, S_W3, 82, 1835008)
    srd(g, S_W2, 84, 1835008)
    srd(g, S_OUT, 86, 2097152)
    srd(g, S_DBG, 88, 256)
    srd(g, S_WS, 90, WS_SIZE)
    nonce_write(g)
    g.stamp(0)
    g("s_cmp_lt_u32 s2, 32")
    g("s_cbranch_scc1 L_AUX")
    vm_entry = list(g.vm)

    g("s_sub_u32 s%d, s%d, 4" % (S_T1, S_T1))
    g("s_lshr_b32 s%d, s%d, 2" % (S_T3, S_T1))
    g("s_and_b32 s%d, s%d, 3" % (S_MT, S_T0))
    g("s_lshl_b32 s%d, s%d, 1" % (S_ROT, S_MT))
    g("s_lshl_b32 s%d, s%d, 2" % (S_MT, S_MT))
    g("s_add_u32 s%d, s%d, s%d" % (S_MT, S_MT, S_T2))
    g("s_lshr_b32 s%d, s%d, 2" % (S_FT, S_T0))
    g("s_mul_i32 s%d, s%d, 7" % (S_FT, S_FT))
    g("s_add_u32 s%d, s%d, s%d" % (S_FT, S_FT, S_T3))
    g("s_and_b32 s%d, s2, 4" % S_T3)
    g("s_add_u32 s%d, s%d, s%d" % (S_ROT, S_ROT, S_T3))
    g("s_lshl_b32 s%d, s%d, 8" % (S_T0, S_FT))
    g("s_lshl_b32 s%d, s%d, 17" % (S_T1, S_MT))
    V_WD0, V_WD1, V_XD0, V_XD1 = 3, 4, 5, 6
    V_XA0, V_XA1, V_WA0, V_WA1 = 7, 8, 9, 10
    V_FL, V_NEED = 11, 12
    SETS = [16, 48]
    ACC = 80

    def offs(i):
        g("s_add_u32 s%d, s%d, %d" % (S_T2, S_ROT, i))
        g("s_and_b32 s%d, s%d, 7" % (S_T2, S_T2))
        g("s_mul_i32 s%d, s%d, %d" % (S_WOFF + i, S_T2, 64 * 3584))
        g("s_add_u32 s%d, s%d, s%d" % (S_WOFF + i, S_WOFF + i, S_T0))
        g("s_lshl_b32 s%d, s%d, 7" % (S_XOFF + i, S_T2))
        g("s_add_u32 s%d, s%d, s%d" % (S_XOFF + i, S_XOFF + i, S_T1))
    offs(0)
    g("v_lshrrev_b32 v%d, 4, v1" % VT)
    g("s_lshr_b32 s%d, s%d, 1" % (S_T2, S_WAVE))
    g("s_and_b32 s%d, s%d, 1" % (S_T2, S_T2))
    g("s_lshl_b32 s%d, s%d, 2" % (S_T2, S_T2))
    g("v_or_b32 v%d, s%d, v%d" % (VT2, S_T2, VT))
    g("v_lshlrev_b32 v%d, 1, v%d" % (VT2, VT2))
    g("v_and_b32 v%d, 15, v1" % V_WD0)
    g("v_xor_b32 v%d, v%d, v%d" % (V_WD0, V_WD0, VT2))
    g("v_lshlrev_b32 v%d, 4, v%d" % (V_WD0, V_WD0))
    g("v_lshrrev_b32 v%d, 4, v0" % VT)
    g("v_mul_u32_u24 v%d, 3584, v%d" % (VT2, VT))
    g("v_add_u32 v%d, v%d, v%d" % (V_WD0, V_WD0, VT2))
    g("v_add_u32 v%d, %d, v%d" % (V_WD1, 32 * 3584, V_WD0))
    g("v_xor_b32 v%d, v%d, v1" % (VT, VT))
    g("v_and_b32 v%d, 7, v%d" % (VT, VT))
    g("v_lshrrev_b32 v%d, 3, v0" % VT2)
    g("v_lshlrev_b32 v%d, 10, v%d" % (VT2, VT2))
    g("v_lshl_add_u32 v%d, v%d, 4, v%d" % (V_XD0, VT, VT2))
    g("v_add_u32 v%d, 0x10000, v%d" % (V_XD1, V_XD0))

    def unit_ops(k):
        r = []
        st, h = k >> 1, k & 1
        if h == 0:
            for b in range(2):
                r.append(("s_add_u32 m0, s%d, %d" % (S_WK, XBASE + (st % 3) * 16384 + b * 8192),
                          "buffer_load_dwordx4 v%d, %s, s%d offen lds" % (V_XD1 if b else V_XD0, SRDW(S_X), S_XOFF + st), "U%d" % k))
        for mat in range(2):
            r.append(("s_add_u32 m0, s%d, %d" % (S_WK, WBASE + (k % 4) * 16384 + mat * 8192),
                      "buffer_load_dwordx4 v%d, %s, s%d offen lds" % (V_WD1 if h else V_WD0, SRDW((S_W1, S_W3)[mat]), S_WOFF + st), "U%d" % k))
        return r

    def unit(k):
        for a, b, t in unit_ops(k):
            g(a); g("s_nop 0"); g.vmem(b, t)

    unit(0); unit(1)
    for i in range(1, 8):
        offs(i)
    g("v_and_b32 v%d, 15, v1" % VT)
    g("v_lshrrev_b32 v%d, 4, v1" % VT2)
    g("v_lshrrev_b32 v%d, 1, v%d" % (V_XA0, VT))
    g("v_xor_b32 v%d, v%d, v%d" % (V_XA0, V_XA0, VT2))
    g("v_lshlrev_b32 v%d, 4, v%d" % (V_XA0, V_XA0))
    g("v_lshl_add_u32 v%d, v%d, 7, v%d" % (V_XA0, VT, V_XA0))
    g("s_lshr_b32 s%d, s%d, 2" % (S_T2, S_WAVE))
    g("s_lshl_b32 s%d, s%d, 13" % (S_T2, S_T2))
    g("v_add_u32 v%d, s%d, v%d" % (V_XA0, S_T2, V_XA0))
    g("v_xor_b32 v%d, 64, v%d" % (V_XA1, V_XA0))
    g("v_lshrrev_b32 v%d, 2, v%d" % (VT, VT))
    g("v_and_b32 v%d, 1, v%d" % (V_WA0, VT2))
    g("v_lshl_or_b32 v%d, v%d, 2, v%d" % (V_WA0, V_WA0, VT))
    g("s_and_b32 s%d, s%d, 3" % (S_T2, S_WAVE))
    g("s_lshl_b32 s%d, s%d, 1" % (S_T2, S_T2))
    g("v_xor_b32 v%d, s%d, v%d" % (V_WA0, S_T2, V_WA0))
    g("v_lshlrev_b32 v%d, 5, v%d" % (V_WA0, V_WA0))
    g("v_lshl_add_u32 v%d, v%d, 3, v%d" % (VT, VT2, VT))
    g("v_lshl_add_u32 v%d, v%d, 8, v%d" % (V_WA0, VT, V_WA0))
    g("v_and_b32 v%d, 3, v1" % VT)
    g("v_lshl_add_u32 v%d, v%d, 3, v%d" % (V_WA0, VT, V_WA0))
    g("v_add_u32 v%d, %d, v%d" % (V_WA0, WBASE, V_WA0))
    g("v_xor_b32 v%d, 32, v%d" % (V_WA1, V_WA0))
    k_addr(g)
    ONES, PD = 244, 248
    for r in range(4):
        g("v_mov_b32 v%d, 0x3f803f80" % (ONES + r))
    g.wait_vm("prm", "lgkmcnt(0)")
    g.stamp(20)
    k_chains(g, "G")
    unit(2)
    nonce_issue(g, V_NEED)
    g("s_waitcnt lgkmcnt(0)")
    g("s_barrier")
    g.stamp(21)
    k_stage2(g)
    g.stamp(1)

    def frag_reads(it):
        S = SETS[it & 1]
        xs = (it >> 1) % 3
        va = V_XA1 if (it & 1) else V_XA0
        so = (it % 4) * 16384
        xr = ["ds_read_b128 %s, v%d offset:%d" % (vr(S + 4 * mi, 4), va, XBASE + xs * 16384 + mi * 2048) for mi in range(4)]
        wr = []
        for mat in range(2):
            for tt in range(2):
                a = (V_WA0, V_WA1)[tt]
                d = S + 16 + 4 * (2 * mat + tt)
                wr.append("ds_read_b64_tr_b16 %s, v%d offset:%d" % (vr(d, 2), a, so + mat * 8192))
                wr.append("ds_read_b64_tr_b16 %s, v%d offset:%d" % (vr(d + 2, 2), a, so + mat * 8192 + 1024))
        return xr + wr

    def mfmas(it):
        S = SETS[it & 1]
        r = []
        for mi in range(4):
            for c in range(4):
                a = ACC + 16 * mi + 4 * c
                r.append("v_mfma_f32_16x16x32_bf16 %s, %s, %s, %s" % (vr(a, 4), vr(S + 16 + 4 * c, 4), vr(S + 4 * mi, 4), "0" if it == 0 else vr(a, 4)))
        return r

    def stats_loads():
        g("v_and_b32 v%d, 15, v1" % VT)
        g("v_lshlrev_b32 v%d, 4, v%d" % (VT, VT))
        g("s_lshr_b32 s%d, s%d, 2" % (S_T2, S_WAVE))
        g("s_lshl_b32 s%d, s%d, 10" % (S_T2, S_T2))
        g("s_lshl_b32 s%d, s%d, 11" % (S_T3, S_MT))
        g("s_add_u32 s%d, s%d, s%d" % (S_T2, S_T2, S_T3))
        g("s_add_u32 s%d, s%d, %d" % (S_T2, S_T2, WS_STATS))
        for mi in range(4):
            g.vmem("buffer_load_dwordx4 %s, v%d, %s, s%d offen offset:%d sc1" % (vr(STR + 4 * mi, 4), VT, SRDW(S_WS), S_T2, mi * 256), "st")

    def cs_loads():
        g("v_lshrrev_b32 v%d, 4, v1" % VT2)
        g("v_lshlrev_b32 v%d, 4, v%d" % (VT2, VT2))
        g("v_and_b32 v%d, 3, v1" % VT)
        g("v_lshl_add_u32 v%d, v%d, 9, v%d" % (VT2, VT, VT2))
        g("s_and_b32 s%d, s%d, 3" % (S_T2, S_WAVE))
        g("s_lshl_b32 s%d, s%d, 7" % (S_T2, S_T2))
        g("s_lshl_b32 s%d, s%d, 12" % (S_T3, S_FT))
        g("s_add_u32 s%d, s%d, s%d" % (S_T2, S_T2, S_T3))
        g("s_add_u32 s%d, s%d, %d" % (S_T2, S_T2, WS_PCS))
        for mat in range(2):
            for tt in range(2):
                g.vmem("buffer_load_dwordx4 %s, v%d, %s, s%d offen offset:%d sc1" % (vr(CSR + 4 * (2 * mat + tt), 4), VT2, SRDW(S_WS), S_T2, mat * 2048 + tt * 64), "st")

    def pcs_mfma(it):
        S = SETS[it & 1]
        sk, l1 = g.newlabel("PC"), g.newlabel("PC")
        g("s_cmp_lg_u32 s%d, 0" % S_PC)
        g("s_cbranch_scc1 %s" % sk)
        g("s_cmp_ge_u32 s%d, 4" % S_WAVE)
        g("s_cbranch_scc1 %s" % l1)
        for mat in range(2):
            for tt in range(2):
                g("v_mfma_f32_16x16x32_bf16 %s, %s, %s, %s" % (vr(PD + 4 * tt, 4), vr(S + 16 + 4 * (2 * mat + tt), 4), vr(ONES, 4), "0" if it == 0 else vr(PD + 4 * tt, 4)))
            if mat == 0:
                g("s_branch %s" % sk)
                g.label(l1)
        g.label(sk)

    def pcs_store():
        sk = g.newlabel("PS")
        g("s_cmp_lg_u32 s%d, 0" % S_PC)
        g("s_cbranch_scc1 %s" % sk)
        g("s_lshl_b32 s%d, s%d, 1" % (S_T2, S_FT))
        g("s_lshr_b32 s%d, s%d, 2" % (S_T3, S_WAVE))
        g("s_add_u32 s%d, s%d, s%d" % (S_T2, S_T2, S_T3))
        g("s_lshl_b32 s%d, s%d, 2" % (S_T2, S_T2))
        g("s_lshr_b32 s%d, s%d, 2" % (S_T3, S_MT))
        g("s_add_u32 s%d, s%d, s%d" % (S_T2, S_T2, S_T3))
        g("s_lshl_b32 s%d, s%d, 9" % (S_T2, S_T2))
        g("s_and_b32 s%d, s%d, 3" % (S_T3, S_WAVE))
        g("s_lshl_b32 s%d, s%d, 7" % (S_T3, S_T3))
        g("s_add_u32 s%d, s%d, s%d" % (S_T2, S_T2, S_T3))
        g("s_add_u32 s%d, s%d, %d" % (S_T2, S_T2, WS_PCS))
        g("s_mov_b32 s%d, 0x00010001" % S_EX)
        g("s_mov_b32 s%d, 0x00010001" % (S_EX + 1))
        g("s_mov_b64 exec, s[%d:%d]" % (S_EX, S_EX + 1))
        for tt in range(2):
            g("buffer_store_dwordx4 %s, v1, %s, s%d offen offset:%d sc1" % (vr(PD + 4 * tt, 4), SRDW(S_WS), S_T2, 64 * tt))
        g("s_mov_b64 exec, -1")
        g.label(sk)

    S_PC = 86
    g("s_xor_b32 s%d, s%d, s%d" % (S_PC, S_MT, S_WAVE))
    g("s_and_b32 s%d, s%d, 3" % (S_PC, S_PC))
    g.wait_vm("U0", "lgkmcnt(0)")
    g("s_barrier")
    g.stamp(2)
    for r in k_gather() + frag_reads(0):
        g(r)
    unit(3)
    k_zero(g)
    nonce_check(g, V_NEED)
    g("s_waitcnt lgkmcnt(12)")
    for r in k_build():
        g(r)
    for it in range(16):
        if it == 12:
            flag_check(g, V_NEED, 16, "0:flag2", sfa=S_FA2)
            flag_check(g, V_FL, 32)
        if it < 15:
            g.wait_vm("U%d" % (it + 1), "lgkmcnt(0)")
        else:
            g("s_waitcnt lgkmcnt(0)")
        g("s_barrier")
        g.stamp(41 + it)
        mf = mfmas(it)
        fill = [[] for _ in range(16)]
        pre = [[] for _ in range(16)]
        rd = frag_reads(it + 1) if it < 15 else []
        for i, r in enumerate(rd):
            fill[i].append(r)
        dm = unit_ops(it + 4) if it + 4 < 16 else []
        for p, (a_, b_, t_) in zip([7, 9, 11, 13], dm):
            pre[p].append(a_)
            fill[p].append((b_, t_))
        if it < 4:
            fill[0].append(lambda it=it: pcs_mfma(it))
        if it == 3:
            fill[6].append(pcs_store)
        if it == 6:
            fill[1].append(lambda: publish(g, pub_pcs, VT))
        if it == 9:
            fill[15].append(lambda: flag_issue(g, V_NEED, (S_FT, 25), "0:flag2", S_FA2))
        if it == 10:
            fill[0].append(lambda: flag_issue(g, V_FL, (None, 0)))
        if it == 12:
            fill[4].append(lambda: u_load(g))
            fill[8].append(stats_loads)
        if it == 13:
            fill[4].append(cs_loads)
        if it == 14:
            fill[13].append(lambda: u_store(g))
        if it == 15:
            fill[2].append(lambda: w2_setup(g, V_W2D, V_W2A))
            fill[8].append(lambda: w2_dma(g, V_W2D, 0))
            fill[15].append(lambda: w2_dma(g, V_W2D, 1))
        for i, m in enumerate(mf):
            for x in pre[i]:
                g(x)
            g(m)
            for x in fill[i]:
                if callable(x):
                    x()
                elif isinstance(x, tuple):
                    g.vmem(*x)
                else:
                    g(x)
    g.stamp(3)
    g("s_lshr_b32 s%d, s%d, 2" % (S_T2, S_WAVE))
    g("s_lshl_b32 s%d, s%d, 2" % (S_T2, S_T2))
    g("s_lshl_b32 s%d, s%d, 3" % (S_T3, S_MT))
    g("s_add_u32 s%d, s%d, s%d" % (S_T2, S_T2, S_T3))
    g("s_mul_i32 s%d, s%d, 56" % (S_T2, S_T2))
    g("s_lshl_b32 s%d, s%d, 2" % (S_T3, S_FT))
    g("s_add_u32 s%d, s%d, s%d" % (S_T2, S_T2, S_T3))
    g("s_and_b32 s%d, s%d, 3" % (S_T3, S_WAVE))
    g("s_add_u32 s%d, s%d, s%d" % (S_T2, S_T2, S_T3))
    g("s_lshl_b32 s%d, s%d, 10" % (S_T2, S_T2))
    g("s_add_u32 s%d, s%d, %d" % (S_T2, S_T2, WS_H))
    g("v_lshlrev_b32 v12, 4, v1")
    g.wait_vm("st")
    for qp in ("[1,0,3,2]", "[2,3,0,1]"):
        for k in range(16):
            g("v_add_f32_dpp v%d, v%d, v%d quad_perm:%s row_mask:0xf bank_mask:0xf" % (CSR + k, CSR + k, CSR + k, qp))
    E = 16
    for mi in range(4):
        st = STR + 4 * mi
        HO = 32 + 4 * (mi & 1)
        for tt in range(2):
            ag = ACC + 16 * mi + 4 * tt
            au = ACC + 16 * mi + 4 * (2 + tt)
            c1 = CSR + 4 * tt
            c3 = CSR + 4 * (2 + tt)
            for r in range(4):
                g("v_fma_f32 v%d, -v%d, v%d, v%d" % (ag + r, st, c1 + r, ag + r))
            for r in range(4):
                g("v_mul_f32 v%d, v%d, v%d" % (E + r, st + 1, ag + r))
            for r in range(4):
                g("v_exp_f32 v%d, v%d" % (E + r, E + r))
            for r in range(4):
                g("v_fma_f32 v%d, -v%d, v%d, v%d" % (au + r, st, c3 + r, au + r))
            for r in range(4):
                g("v_fma_f32 v%d, v%d, v%d, v%d" % (E + r, E + r, st + 2, st + 2))
            for r in range(4):
                g("v_rcp_f32 v%d, v%d" % (E + r, E + r))
            for r in range(4):
                g("v_mul_f32 v%d, v%d, v%d" % (ag + r, ag + r, au + r))
            for r in range(4):
                g("v_mul_f32 v%d, v%d, v%d" % (ag + r, ag + r, E + r))
            g("v_cvt_pk_bf16_f32 v%d, v%d, v%d" % (HO + 2 * tt, ag, ag + 1))
            g("v_cvt_pk_bf16_f32 v%d, v%d, v%d" % (HO + 2 * tt + 1, ag + 2, ag + 3))
        g.vmem("buffer_store_dwordx4 %s, v12, %s, s%d offen sc1" % (vr(HO, 4), SRDW(S_WS), S_T2), "hst")
        if mi < 3:
            g("s_add_u32 s%d, s%d, %d" % (S_T2, S_T2, 56 * 1024))
        if mi == 1:
            w2_dma(g, V_W2D, 2)
    g.stamp(4)
    g("s_branch L_COMMON")
    vm_common = list(g.vm)

    g.label("L_AUX")
    g.vm = list(vm_entry)
    aux(g)
    g.wait_vm_all()

    g.label("L_COMMON")
    g.vm = vm_common
    common(g)
    g.label("L_END")
    g("s_endpgm")
    return g


def aux(g):
    S_RB = S_MT
    g("s_and_b32 s%d, s2, 3" % S_T3)
    g("s_lshl_b32 s%d, s%d, 3" % (S_RB, S_T3))
    g("s_and_b32 s%d, s2, 4" % S_T3)
    g("s_add_u32 s%d, s%d, s%d" % (S_RB, S_RB, S_T3))
    g("s_add_u32 s%d, s%d, s%d" % (S_RB, S_RB, S_T1))
    XR, XF, TT, RED, ONES = 16, 48, 112, 144, 152
    g("v_lshlrev_b32 v%d, 4, v1" % VT)
    g("s_lshl_b32 s%d, s%d, 16" % (S_FT, S_RB))
    g("s_lshl_b32 s%d, s%d, 13" % (S_T1, S_WAVE))
    g("s_add_u32 s%d, s%d, s%d" % (S_FT, S_FT, S_T1))
    g("s_add_u32 s%d, s%d, 4096" % (S_T2, S_FT))
    for i in range(8):
        g.vmem("buffer_load_dwordx4 %s, v%d, %s, s%d offen offset:%d" % (vr(XR + 4 * i, 4), VT, SRDW(S_X), S_T2 if i >= 4 else S_FT, (i & 3) * 1024), "x")
    g("v_mov_b32 v%d, 0x3f803f80" % ONES)
    g("v_and_b32 v3, 7, v1")
    g("v_xor_b32 v3, s%d, v3" % S_WAVE)
    g("v_lshlrev_b32 v3, 4, v3")
    g("v_lshl_add_u32 v3, v1, 10, v3")
    g("v_lshrrev_b32 v4, 4, v1")
    g("v_lshlrev_b32 v4, 5, v4")
    g("s_lshr_b32 s%d, s%d, 6" % (S_T0, S_FT))
    g("s_add_u32 s%d, s%d, %d" % (S_T0, S_T0, WS_STATS))
    g("s_mov_b32 s%d, 0x00010001" % S_EX)
    g("s_mov_b32 s%d, 0x00010001" % (S_EX + 1))
    SM = 36
    MEAN, SO, RI = 154, 156, 164
    g.wait_vm("x")
    g.stamp(30)
    nonce_issue(g, 12)
    for i in range(8):
        g("v_dot2_f32_bf16 v%d, v%d, v%d, 0" % (RED + i, XR + 4 * i, ONES))
    for k in range(1, 4):
        for i in range(8):
            g("v_dot2_f32_bf16 v%d, v%d, v%d, v%d" % (RED + i, XR + 4 * i + k, ONES, RED + i))
    for i in range(8):
        for k in range(4):
            g("v_lshlrev_b32 v%d, 16, v%d" % (XF + 8 * i + 2 * k, XR + 4 * i + k))
            g("v_and_b32 v%d, 0xffff0000, v%d" % (XF + 8 * i + 2 * k + 1, XR + 4 * i + k))
    reduce8(g, RED)
    for i in range(2):
        g("v_mul_f32 v%d, 0x3b000000, v%d" % (MEAN + i, RED + i))
    g("s_nop 0")
    for row in range(8):
        g("v_readlane_b32 s%d, v%d, %d" % (SM + 2 * row, MEAN + (row & 1), 16 * (row >> 1)))
    g("s_nop 1")
    g.stamp(31)
    for k in range(4):
        for i in range(8):
            g("v_pk_add_f32 %s, %s, s[%d:%d] op_sel_hi:[1,0] neg_lo:[0,1] neg_hi:[0,1]" % (vr(TT + 2 * i, 2), vr(XF + 8 * i + 2 * k, 2), SM + 2 * i, SM + 2 * i + 1))
        for i in range(8):
            d, a = TT + 2 * i, XR + 2 * i
            if k == 0:
                g("v_pk_mul_f32 %s, %s, %s" % (vr(a, 2), vr(d, 2), vr(d, 2)))
            else:
                g("v_pk_fma_f32 %s, %s, %s, %s" % (vr(a, 2), vr(d, 2), vr(d, 2), vr(a, 2)))
    for i in range(8):
        g("v_add_f32 v%d, v%d, v%d" % (RED + i, XR + 2 * i, XR + 2 * i + 1))
    reduce8(g, RED)
    for i in range(2):
        o = SO + 4 * i
        g("v_mul_f32 v%d, 0x3b000000, v%d" % (RED + i, RED + i))
        rnd_bf16(g, RED + i, RED + i)
        g("v_add_f32 v%d, 0x3727c5ac, v%d" % (RED + i, RED + i))
        rnd_bf16(g, RED + i, RED + i)
        g("v_sqrt_f32 v%d, v%d" % (RED + i, RED + i))
        g("s_nop 0")
        rnd_bf16(g, RED + i, RED + i)
        g("v_rcp_f32 v%d, v%d" % (RI + i, RED + i))
        rnd_bf16(g, o, MEAN + i)
        g("v_mul_f32 v%d, 0x%x, v%d" % (o + 1, NLOG2E, RI + i))
        g("v_mul_f32 v%d, v%d, v%d" % (o + 2, RED + i, RED + i))
        g("v_mov_b32 v%d, v%d" % (o + 3, RED + i))
    g("s_nop 0")
    for row in range(8):
        g("v_readlane_b32 s%d, v%d, %d" % (SM + 2 * row, SO + 4 * (row & 1), 16 * (row >> 1)))
        g("v_readlane_b32 s%d, v%d, %d" % (SM + 2 * row + 1, RI + (row & 1), 16 * (row >> 1)))
    g("s_mov_b64 exec, s[%d:%d]" % (S_EX, S_EX + 1))
    for i in range(2):
        g.vmem("buffer_store_dwordx4 %s, v4, %s, s%d offen offset:%d sc1" % (vr(SO + 4 * i, 4), SRDW(S_WS), S_T0, 16 * i), "s1")
    g("s_mov_b64 exec, -1")
    g.stamp(32)
    for i in range(8):
        for k in range(4):
            d = XF + 8 * i + 2 * k
            g("v_pk_add_f32 %s, %s, s[%d:%d] op_sel_hi:[1,0] neg_lo:[0,1] neg_hi:[0,1]" % (vr(d, 2), vr(d, 2), SM + 2 * i, SM + 2 * i + 1))
        for k in range(4):
            d = XF + 8 * i + 2 * k
            g("v_pk_mul_f32 %s, %s, s[%d:%d] op_sel:[0,1] op_sel_hi:[1,1]" % (vr(d, 2), vr(d, 2), SM + 2 * i, SM + 2 * i + 1))
    for c in range(8):
        for ip in range(4):
            g("v_cvt_pk_bf16_f32 v%d, v%d, v%d" % (TT + 4 * c + ip, XF + 16 * ip + c, XF + 16 * ip + 8 + c))
        g("ds_write_b128 v3, %s offset:%d" % (vr(TT + 4 * c, 4), c * 128))
    g("v_lshlrev_b32 v3, 4, v1")
    g("v_add_u32 v4, s%d, v3" % S_T1)
    for k in range(8):
        g("v_xor_b32 v%d, %d, v3" % (RED + k, 16 * k))
    g("s_mul_i32 s%d, s%d, %d" % (S_T2, S_RB, XP))
    g("s_add_u32 s%d, s%d, s%d" % (S_T2, S_T2, S_T1))
    g("s_add_u32 s%d, s%d, 4096" % (S_T3, S_T2))
    g("s_waitcnt lgkmcnt(0)")
    g.stamp(33)
    g("s_barrier")
    for k in range(8):
        g("ds_read_b128 %s, v4 offset:%d" % (vr(XF + 4 * k, 4), k * 1024))
    for k in range(8):
        g("s_waitcnt lgkmcnt(%d)" % (7 - k))
        g.vmem("buffer_store_dwordx4 %s, v%d, %s, s%d offen offset:%d sc1" % (vr(XF + 4 * k, 4), RED + k, SRDW(S_WS), S_T3 if k >= 4 else S_T2, (k & 3) * 1024), "s1")
    g.stamp(34)
    nonce_check(g, 12)
    k_addr(g)
    g.wait_vm("s1")
    g("s_barrier")
    publish(g, pub_aux, VT)
    g.stamp(4)
    n = OPT["auxpf"]
    g("s_lshr_b32 s%d, s2, 3" % S_T0)
    g("s_lshl_b32 s%d, s%d, 1" % (S_T0, S_T0))
    g("s_and_b32 s%d, s%d, 1" % (S_T1, S_WAVE))
    g("s_add_u32 s%d, s%d, s%d" % (S_T0, S_T0, S_T1))
    g("s_mul_i32 s%d, s%d, 224" % (S_T0, S_T0))
    g("s_lshr_b32 s%d, s%d, 1" % (S_T1, S_WAVE))
    g("s_add_u32 s%d, s%d, s%d" % (S_T0, S_T0, S_T1))
    g("s_lshl_b32 s%d, s%d, 10" % (S_ROT, S_T0))
    g("s_and_b32 s%d, s2, 7" % S_FT)
    g("v_lshlrev_b32 v5, 4, v1")
    PFR = [80]
    def pf_batch():
        g("s_sub_u32 s%d, s%d, 7" % (S_T1, S_FT))
        g("s_cmp_ge_u32 s%d, 7" % S_FT)
        g("s_cselect_b32 s%d, s%d, s%d" % (S_FT, S_T1, S_FT))
        g("s_lshl_b32 s%d, s%d, 15" % (S_T0, S_FT))
        g("s_add_u32 s%d, s%d, s%d" % (S_T0, S_T0, S_ROT))
        for i in range(8):
            g.vmem("buffer_load_dwordx4 %s, v5, %s, s%d offen" % (vr(PFR[0] + 4 * i, 4), SRDW(S_W2), S_T0), "pf")
            g("s_add_u32 s%d, s%d, 4096" % (S_T0, S_T0))
        g("s_add_u32 s%d, s%d, 1" % (S_FT, S_FT))
    nb = [n]
    def pf():
        if nb[0] > 0:
            pf_batch(); nb[0] -= 1
    PFR[0] = 176
    pf()
    k_chains(g, "A")
    g.stamp(35)
    g.wait_vm("pf")
    PFR[0] = 80
    pf()
    g("s_waitcnt lgkmcnt(0)")
    g("s_barrier")
    k_stage2(g)
    g("s_waitcnt lgkmcnt(0)")
    pf()
    g("s_barrier")
    for r in k_gather():
        g(r)
    k_zero(g)
    g("s_waitcnt lgkmcnt(0)")
    for r in k_build():
        g(r)
    g.stamp(1)
    flag_issue(g, 11, (None, 0))
    while nb[0] > 0:
        pf()
    flag_check(g, 11, 32)
    g("s_waitcnt lgkmcnt(0)")
    g("s_barrier")
    u_load(g)
    w2_setup(g, V_W2D, V_W2A)
    for j in range(3):
        w2_dma(g, V_W2D, j)
    u_store(g)
    g("s_waitcnt lgkmcnt(0)")
    g("s_barrier")


def common(g):
    for j in range(3):
        w2_rd(g, V_W2A, j)
    VAA, VBB = 8, 9
    g("v_and_b32 v%d, 15, v1" % VT)
    g("v_lshrrev_b32 v%d, 4, v1" % VT2)
    g("v_lshl_add_u32 v46, v%d, 3, v%d" % (VT2, VT))
    g("s_lshr_b32 s%d, s%d, 2" % (S_T2, S_WAVE))
    g("s_mul_i32 s%d, s%d, 16640" % (S_T3, S_T2))
    g("s_add_u32 s%d, s%d, %d" % (S_T3, S_T3, KC))
    g("s_and_b32 s%d, s%d, 3" % (S_T0, S_WAVE))
    g("s_lshl_b32 s%d, s%d, 5" % (S_T1, S_T0))
    g("s_sub_u32 s%d, %d, s%d" % (S_T1, 2047 + 8 - 32 * 60, S_T1))
    g("v_sub_u32 v46, s%d, v46" % S_T1)
    g("v_and_b32 v47, 3, v46")
    g("v_sub_u32 v46, v46, v47")
    g("v_lshlrev_b32 v46, 1, v46")
    g("v_mul_u32_u24 v47, 4160, v47")
    g("v_add3_u32 v%d, v46, v47, s%d" % (VAA, S_T3))
    g("v_lshlrev_b32 v46, 5, v%d" % VT)
    g("v_lshlrev_b32 v47, 4, v%d" % VT2)
    g("v_sub_u32 v46, v46, v47")
    g("s_mul_i32 s%d, s%d, 4608" % (S_T1, S_T2))
    g("s_lshl_b32 s%d, s%d, 6" % (S_T0, S_T0))
    g("s_sub_u32 s%d, s%d, s%d" % (S_T1, S_T1, S_T0))
    g("s_add_u32 s%d, s%d, %d" % (S_T1, S_T1, UB + 512 - 256 + 16))
    g("v_add_u32 v%d, s%d, v46" % (VBB, S_T1))
    g("s_waitcnt lgkmcnt(0)")
    for j in range(3, 6):
        w2_dma(g, V_W2D, j)
    g.stamp(5)
    BF, CACC, AF = 16, 80, 112
    NA = 4
    def rdA(ip):
        d = AF + 4 * (ip % NA)
        return ["ds_read_b64 %s, v%d offset:%d" % (vr(d, 2), VAA, 256 * (15 - ip)),
                "ds_read_b64 %s, v%d offset:%d" % (vr(d + 2, 2), VAA, 256 * (15 - ip) + 8)]
    lq = []
    def lds(s, tag):
        g(s); lq.append(tag)
    def lwait(tags):
        last = max([i for i, t in enumerate(lq) if t in tags], default=-1)
        if last < 0:
            return
        n = len(lq) - 1 - last
        g("s_waitcnt lgkmcnt(%d)" % min(n, 15))
        del lq[:last + 1]
        if n > 15:
            del lq[:len(lq) - 15]
    for s in rdA(0): lds(s, "A0")
    for tau in (0, 2, 4, 6, 8, 10, 12, 14):
        lds("ds_read_b128 %s, v%d offset:%d" % (vr(BF + 4 * (tau + 1), 4), VBB, 256 * (tau + 1)), "B%d" % tau)
    for s in rdA(1): lds(s, "A1")
    for tau in (-1, 1, 3, 5, 7, 9, 11, 13):
        lds("ds_read_b128 %s, v%d offset:%d" % (vr(BF + 4 * (tau + 1), 4), VBB, 256 * (tau + 1)), "B%d" % tau)
    for s in rdA(2): lds(s, "A2")
    for ip in range(16):
        first = True
        for j in range(ip >> 1, 8):
            tau = 2 * j - ip
            lwait(["A%d" % ip, "B%d" % tau])
            a = CACC + 4 * j
            g("v_mfma_f32_16x16x32_bf16 %s, %s, %s, %s" % (vr(a, 4), vr(AF + 4 * (ip % NA), 4), vr(BF + 4 * (tau + 1), 4), "0" if ip == 0 else vr(a, 4)))
            if first and ip + 3 < 16:
                for s in rdA(ip + 3): lds(s, "A%d" % (ip + 3))
            first = False
        if ip == 3:
            g.wait_vm("hst")
            g("s_barrier")
            sk = g.newlabel("PH")
            g("s_cmp_lt_u32 s2, 32")
            g("s_cbranch_scc1 %s" % sk)
            publish(g, pub_h, VT)
            g.label(sk)
        if ip == 5:
            n0 = len(g.L)
            w2_rd(g, V_W2A, 3)
            lq.extend(["w2r"] * 8)
        if ip == 7:
            lwait(["w2r"])
            w2_dma(g, V_W2D, 6)
    g.stamp(6)
    VFL, VN = 10, 11
    g("s_lshr_b32 s%d, s%d, 1" % (S_T0, S_RT))
    flag_issue(g, VFL, (S_T0, 1))
    for j in (4, 5, 6):
        w2_rd(g, V_W2A, j)
    g("v_and_b32 v%d, 15, v1" % VT)
    g("v_lshrrev_b32 v%d, 4, v1" % VT2)
    g("v_lshl_add_u32 v%d, v%d, 2, v%d" % (VT, VT2, VT))
    g("v_and_b32 v%d, 15, v%d" % (VT, VT))
    g("v_lshl_add_u32 v%d, v%d, 4, v%d" % (VT, VT2, VT))
    g("v_lshl_add_u32 v%d, v%d, 4, s%d" % (VT, VT, S_M + 1))
    g("s_waitcnt lgkmcnt(0)")
    for j in range(8):
        g("ds_write_b128 v%d, %s offset:%d" % (VT, vr(CACC + 4 * j, 4), j * 1024))
    g("v_lshrrev_b32 v%d, 2, v1" % VT)
    g("v_and_b32 v%d, 3, v1" % VT2)
    g("v_lshl_add_u32 v%d, v%d, 2, v%d" % (VT, VT2, VT))
    g("v_and_b32 v%d, 15, v%d" % (VT, VT))
    g("v_lshl_add_u32 v%d, v%d, 4, v%d" % (VT, VT2, VT))
    g("v_lshl_add_u32 v%d, v%d, 4, s%d" % (VT, VT, S_WK))
    g("v_add_u32 v%d, %d, v%d" % (VT2, 4 * W2P, VT))
    g("v_lshlrev_b32 v12, 3, v0")
    g("v_add_u32 v12, %d, v12" % (UB + 512))
    g.stamp(7)
    flag_check(g, VFL, 14)
    g("s_waitcnt lgkmcnt(0)")
    g("s_barrier")
    g.stamp(8)
    P = 80
    for ch in range(2):
        for q in range(4):
            g("ds_read_b128 %s, v%d offset:%d" % (vr(P + 16 * ch + 4 * q, 4), (VT, VT2)[ch], q * W2P))
    U = 112
    g("ds_read_b64 %s, v12" % vr(U, 2))
    g("ds_read_b64 %s, v12 offset:4608" % vr(U + 2, 2))
    HF = 16
    g("v_lshlrev_b32 v3, 4, v1")
    g("s_mul_i32 s%d, s%d, %d" % (S_M + 4, S_RT, 4 * 56))
    g("s_mul_i32 s%d, s%d, 7" % (S_M + 5, S_WAVE))
    g("s_add_u32 s%d, s%d, s%d" % (S_M + 4, S_M + 4, S_M + 5))
    g("s_lshl_b32 s%d, s%d, 10" % (S_M + 4, S_M + 4))
    g("s_add_u32 s%d, s%d, %d" % (S_M + 4, S_M + 4, WS_H))
    SMI = 36
    for mi in range(4):
        g("s_add_u32 s%d, s%d, %d" % (SMI + mi, S_NT, mi))
        g("s_and_b32 s%d, s%d, 3" % (SMI + mi, SMI + mi))
    def hload(mi):
        g("s_mul_i32 s%d, s%d, %d" % (S_M + 5, SMI + mi, 56 * 1024))
        g("s_add_u32 s%d, s%d, s%d" % (S_M + 5, S_M + 5, S_M + 4))
        for j in range(7):
            g("s_add_u32 s%d, s%d, s%d" % (S_M + 2, S_M + 5, S_J + j))
            g.vmem("buffer_load_dwordx4 %s, v3, %s, s%d offen sc1" % (vr(HF + 28 * mi + 4 * j, 4), SRDW(S_WS), S_M + 2), "h%d_%d" % (mi, j))
    g("s_lshl_b32 s%d, s%d, 16" % (S_T0, S_DSK))
    g("s_and_b32 s%d, s%d, 0xffff0000" % (S_T1, S_DSK))
    g("s_waitcnt lgkmcnt(0)")
    UF = 116
    for ch in range(2):
        b = P + 16 * ch
        for r in range(4):
            g("v_add_f32 v%d, v%d, v%d" % (b + r, b + r, b + 4 + r))
            g("v_add_f32 v%d, v%d, v%d" % (b + 8 + r, b + 8 + r, b + 12 + r))
        for r in range(4):
            g("v_add_f32 v%d, v%d, v%d" % (b + r, b + r, b + 8 + r))
        for k in range(2):
            g("v_lshlrev_b32 v%d, 16, v%d" % (UF + 2 * k, U + 2 * ch + k))
            g("v_and_b32 v%d, 0xffff0000, v%d" % (UF + 2 * k + 1, U + 2 * ch + k))
        for r in range(4):
            g("v_mul_f32 v%d, s%d, v%d" % (UF + r, (S_T0, S_T1)[ch], UF + r))
        for r in range(4):
            g("v_cvt_pk_bf16_f32 v%d, v%d, v%d" % (b + 4 + r, b + r, UF + r))
        for r in range(4):
            g("v_lshlrev_b32 v%d, 16, v%d" % (b + r, b + 4 + r))
            g("v_and_b32 v%d, 0xffff0000, v%d" % (b + 4 + r, b + 4 + r))
        for r in range(4):
            g("v_add_f32 v%d, v%d, v%d" % (b + r, b + r, b + 4 + r))
    AOR = 120
    for r in range(4):
        g("v_cvt_pk_bf16_f32 v%d, v%d, v%d" % (AOR + r, P + r, P + 16 + r))
    g("v_lshlrev_b32 v%d, 4, v0" % VT)
    g("s_mul_i32 s%d, s2, %d" % (S_T0, AOP))
    g("s_add_u32 s%d, s%d, %d" % (S_T0, S_T0, WS_AO))
    g.vmem("buffer_store_dwordx4 %s, v%d, %s, s%d offen sc1" % (vr(AOR, 4), VT, SRDW(S_WS), S_T0), "ao")
    g.stamp(9)
    hload(0)
    hload(1)
    XT = 132
    g("v_lshrrev_b32 v%d, 3, v1" % VT2)
    g("v_lshlrev_b32 v%d, 10, v%d" % (VT2, VT2))
    g("v_and_b32 v12, 7, v1")
    g("v_lshl_add_u32 v12, v12, 4, v%d" % VT2)
    g("s_lshl_b32 s%d, s%d, 16" % (S_M + 3, S_RT))
    g("s_lshl_b32 s%d, s%d, 13" % (S_T1, S_WAVE))
    g("s_add_u32 s%d, s%d, s%d" % (S_M + 3, S_M + 3, S_T1))
    g("s_lshl_b32 s%d, s%d, 7" % (S_T1, S_NT))
    g("s_add_u32 s%d, s%d, s%d" % (S_M + 3, S_M + 3, S_T1))
    RA0, RA1 = 4, 5
    g("v_and_b32 v8, 15, v1")
    g("v_lshrrev_b32 v%d, 4, v1" % VT2)
    g("v_lshrrev_b32 v6, 5, v1")
    g("v_lshl_add_u32 v6, v6, 2, v8")
    g("v_add_u32 v7, 8, v6")
    g("v_and_b32 v6, 15, v6")
    g("v_and_b32 v7, 15, v7")
    g("v_lshl_add_u32 v6, v%d, 4, v6" % VT2)
    g("v_lshl_add_u32 v7, v%d, 4, v7" % VT2)
    g("s_lshl_b32 s%d, s%d, 14" % (S_T1, S_WAVE))
    g("v_lshl_add_u32 v%d, v6, 4, s%d" % (RA0, S_T1))
    g("v_lshl_add_u32 v%d, v7, 4, s%d" % (RA1, S_T1))
    accs = [128, 16, 44, 72]
    XT = 8
    def redw(mi):
        g("s_lshl_b32 s%d, s%d, 12" % (S_T1, SMI + mi))
        g("v_add_u32 v6, s%d, v%d" % (S_T1, RA0))
        g("v_add_u32 v7, s%d, v%d" % (S_T1, RA1))
        for c in range(4):
            g("ds_write_b128 v%d, %s offset:%d" % ((6, 7)[c & 1], vr(accs[mi] + 4 * c, 4), c * 1024))
    XT, AOT = 32, 36
    AOG = [128, 132, 136, 140, 16, 20, 24, 28]
    def ao_body():
        g("v_lshrrev_b32 v%d, 4, v1" % VT)
        g("v_and_b32 v%d, 15, v1" % VT2)
        g("v_mul_u32_u24 v8, %d, v%d" % (AOP, VT))
        g("v_lshl_add_u32 v8, v%d, 4, v8" % VT2)
        g("s_mul_i32 s%d, s%d, %d" % (S_T0, S_NT, 32 * AOP))
        g("s_lshl_b32 s%d, s%d, 8" % (S_T1, S_RT))
        g("s_add_u32 s%d, s%d, s%d" % (S_T0, S_T0, S_T1))
        g("s_add_u32 s%d, s%d, %d" % (S_T0, S_T0, WS_AO))
        for k in range(8):
            g.vmem("buffer_load_dwordx4 %s, v8, %s, s%d offen sc1" % (vr(AOG[k], 4), SRDW(S_WS), S_T0), "0:aot")
            if k < 7:
                g("s_add_u32 s%d, s%d, %d" % (S_T0, S_T0, 4 * AOP))
        g("v_mul_u32_u24 v8, 272, v%d" % VT)
        g("v_lshl_add_u32 v8, v%d, 4, v8" % VT2)
        g("v_add_u32 v8, %d, v8" % AOL)
    g.wait_vm("ao")
    g("s_barrier")
    publish(g, pub_ao, VT2)
    hload(2)
    for mi in range(4):
        a0 = accs[mi]
        for j in range(7):
            g.wait_vm("h%d_%d" % (mi, j))
            for c in range(4):
                a = a0 + 4 * c
                g("v_mfma_f32_16x16x32_bf16 %s, %s, %s, %s" % (vr(a, 4), vr(W2F + 16 * j + 4 * c, 4), vr(HF + 28 * mi + 4 * j, 4), "0" if j == 0 else vr(a, 4)))
            if mi == 1 and j == 1:
                flag_issue(g, VFL, (S_NT, 17))
                hload(3)
                g.vmem("buffer_load_dwordx4 %s, v12, %s, s%d offen" % (vr(XT, 4), SRDW(S_X), S_M + 3), "xt")
            if j == 2 and mi > 0:
                redw(mi - 1)
        if mi == 2:
            g("s_waitcnt lgkmcnt(0)")
            flag_check(g, VFL, 32, body=ao_body)
    g.stamp(10)
    g("v_lshrrev_b32 v%d, 3, v1" % VT)
    g("s_and_b32 s%d, s%d, 1" % (S_T0, S_WAVE))
    g("s_lshl_b32 s%d, s%d, 3" % (S_T0, S_T0))
    g("v_add_u32 v%d, s%d, v%d" % (VT, S_T0, VT))
    g("v_and_b32 v%d, 3, v1" % VT2)
    g("v_lshl_add_u32 v9, v%d, 2, v%d" % (VT2, VT))
    g("v_and_b32 v9, 15, v9")
    g("v_and_b32 v%d, 1, v1" % VT2)
    g("v_lshl_add_u32 v9, v%d, 5, v9" % VT2)
    g("v_lshlrev_b32 v9, 4, v9")
    g("v_bfe_u32 v%d, v1, 1, 2" % VT2)
    g("v_lshl_add_u32 v9, v%d, 10, v9" % VT2)
    g("s_lshr_b32 s%d, s%d, 1" % (S_T0, S_WAVE))
    g("s_lshl_b32 s%d, s%d, 12" % (S_T0, S_T0))
    g("v_add_u32 v9, s%d, v9" % S_T0)
    g("v_add_u32 v10, 0x10000, v9")
    redw(3)
    g("v_and_b32 v%d, 7, v1" % VT2)
    g("v_mul_u32_u24 v11, 1088, v%d" % VT2)
    g("v_lshrrev_b32 v%d, 3, v1" % VT2)
    g("v_lshl_add_u32 v11, v%d, 2, v11" % VT2)
    g("s_lshl_b32 s%d, s%d, 5" % (S_T0, S_WAVE))
    g("s_add_u32 s%d, s%d, %d" % (S_T0, S_T0, AOL))
    g("v_add_u32 v11, s%d, v11" % S_T0)
    g.wait_vm("xt")
    sk = g.newlabel("AOW")
    g("s_cmp_lg_u32 s%d, 0" % S_WAVE)
    g("s_cbranch_scc1 %s" % sk)
    g("s_waitcnt vmcnt(0)")
    for k in range(8):
        g("ds_write_b128 v8, %s offset:%d" % (vr(AOG[k], 4), 4 * 272 * k))
    g.label(sk)
    g("s_waitcnt lgkmcnt(0)")
    g("s_barrier")
    g.stamp(11)
    R = 144
    for w in range(8):
        for hh in range(2):
            g("ds_read_b128 %s, v%d offset:%d" % (vr(R + 8 * w + 4 * hh, 4), 10 if w >= 4 else 9, (w & 3) * 16384 + hh * 256))
    for j in range(4):
        g("ds_read_b32 v%d, v11 offset:%d" % (AOT + j, 272 * j))
    T = 48
    for k in range(4):
        g("v_lshlrev_b32 v%d, 16, v%d" % (T + 2 * k, XT + k))
        g("v_and_b32 v%d, 0xffff0000, v%d" % (T + 2 * k + 1, XT + k))
    g("s_waitcnt lgkmcnt(0)")
    for step in (32, 16, 8):
        for b in range(0, step, 8):
            for r in range(8):
                g("v_add_f32 v%d, v%d, v%d" % (R + b + r, R + b + r, R + b + step + r))
    for k in range(4):
        g("v_lshlrev_b32 v%d, 16, v%d" % (T + 8 + 2 * k, AOT + k))
        g("v_and_b32 v%d, 0xffff0000, v%d" % (T + 8 + 2 * k + 1, AOT + k))
    for r in range(8):
        g("v_add_f32 v%d, v%d, v%d" % (T + r, T + r, T + 8 + r))
    for r in range(8):
        g("v_cvt_pk_bf16_f32 v%d, v%d, v%d" % (T + 8 + r, T + r, R + r))
    for r in range(8):
        g("v_lshlrev_b32 v%d, 16, v%d" % (T + r, T + 8 + r))
        g("v_and_b32 v%d, 0xffff0000, v%d" % (T + 8 + r, T + 8 + r))
    for r in range(8):
        g("v_add_f32 v%d, v%d, v%d" % (T + r, T + r, T + 8 + r))
    for k in range(4):
        g("v_cvt_pk_bf16_f32 v%d, v%d, v%d" % (R + k, T + 2 * k, T + 2 * k + 1))
    g("buffer_store_dwordx4 %s, v12, %s, s%d offen" % (vr(R, 4), SRDW(S_OUT), S_M + 3))
    if OPT["dbgtime"]:
        sk = w0(g)
        g("s_and_b32 s%d, s2, 63" % S_T0)
        g("s_cmp_lg_u32 s%d, 40" % S_T0)
        g("s_cbranch_scc1 %s" % sk)
        g("s_memtime s[94:95]")
        g("s_memrealtime s[96:97]")
        g("s_waitcnt lgkmcnt(0)")
        g("s_sub_u32 s94, s94, s98")
        g("v_mov_b32 v20, s94")
        g("v_mov_b32 v21, s100")
        g("v_mov_b32 v22, s96")
        g("s_lshr_b32 s%d, s2, 6" % S_T0)
        g("s_mul_i32 s%d, s%d, 12" % (S_T0, S_T0))
        g("s_add_u32 s%d, s%d, 4" % (S_T0, S_T0))
        g("s_mov_b64 exec, 1")
        g("buffer_store_dwordx3 v[20:22], off, %s, s%d" % (SRDW(S_DBG), S_T0))
        g.label(sk)
    if g.ts:
        g.stamp(12)
        g.stamp(13)
        g("s_memrealtime s[98:99]")
        g("s_waitcnt lgkmcnt(0)")
        g("v_writelane_b32 v%d, s98, 14" % g.VTS)
        g("s_lshl_b32 s%d, s2, 11" % S_T0)
        g("s_lshl_b32 s%d, s%d, 8" % (S_T1, S_WAVE))
        g("s_add_u32 s%d, s%d, s%d" % (S_T0, S_T0, S_T1))
        g("s_add_u32 s%d, s%d, %d" % (S_T0, S_T0, WS_TS))
        g("buffer_store_dword v%d, v2, %s, s%d offen" % (g.VTS, SRDW(S_WS), S_T0))


HEADER = open("parallel_sum__ssm_conv_s4d__glu_gated_swiglu__prompt.s.ref").read().split("; Override launch")[0]


def emit(ts=False):
    g = gen(ts)
    body = "\n".join(g.L)
    return HEADER + """; @launch grid=(256,1,1) block=(512,1,1) lds=163840
.amdgcn_target "amdgcn-amd-amdhsa--gfx950"
.text
.globl %s
.p2align 8
.type %s,@function
%s:
%s
.fill 3072, 4, 0xBF800000
.section .rodata,"a"
.p2align 6
.amdhsa_kernel %s
  .amdhsa_next_free_vgpr 256
  .amdhsa_next_free_sgpr 102
  .amdhsa_accum_offset 256
  .amdhsa_group_segment_fixed_size 0
  .amdhsa_kernarg_size 112
  .amdhsa_user_sgpr_count 2
  .amdhsa_user_sgpr_kernarg_segment_ptr 1
  .amdhsa_system_sgpr_workgroup_id_x 1
.end_amdhsa_kernel
""" % (KNAME, KNAME, KNAME, body, KNAME)


if __name__ == "__main__":
    ts = "--ts" in sys.argv
    for a in sys.argv[1:]:
        if a.startswith("--") and "=" in a:
            k, v = a[2:].split("=")
            OPT[k] = int(v)
    out = [a for a in sys.argv[1:] if not a.startswith("--")]
    path = out[0] if out else "k.s"
    open(path, "w").write(emit(ts))
    print("wrote", path)
```

```python
import sys, struct

KNAME = "parallel_sum__ssm_conv_s4d__glu_gated_swiglu__prompt_kernel"

WS_XNT = 0
XP = 65536 + 256
WS_STATS = 3 << 20
WS_CS = WS_STATS + 32768
WS_FLG = WS_STATS + 65536
FP = 384
WS_PCS = WS_STATS + 131072
WS_H = 4 << 20
WS_AO = 12 << 20
AOP = 8192 + 128
WS_TS = 15 << 20
WS_SIZE = 16 << 20

KV_PITCH = 3072
KV_BIAS = 0x3F7F
KV_ZERO = 0x4500 - KV_BIAS + 1
KV_DUMP = KV_ZERO + 1

LOG2E = 0x3FB8AA3B
NLOG2E = 0xBFB8AA3B
INV2PI = 0x3E22F983

XBASE, WBASE = 0, 49152
KC = 114688
UB = KC + 33280
KVT = UB + 9216
TP = 272
TUNIT = 57 * TP
W2P = 14336
AOL = 131072

OPT = dict(auxpf=5, dbgtime=0, fip=13, h0=8, h1=3, fa=21, prio=0, rdfirst=0, ntx=3)


class Gen:
    def __init__(self, ts=False):
        self.L = []
        self.vm = []
        self.ts = ts
        self.lbl = 0

    def __call__(self, s):
        self.L.append("    " + s)

    def label(self, l):
        self.L.append(l + ":")

    def newlabel(self, p="L"):
        self.lbl += 1
        return "%s_%d" % (p, self.lbl)

    def vmem(self, s, tag):
        self(s)
        self.vm.append(tag)

    def wait_vm(self, tags, extra=""):
        if isinstance(tags, str):
            tags = [tags]
        last = -1
        for i, t in enumerate(self.vm):
            if t in tags:
                last = i
        if last < 0:
            if extra:
                self("s_waitcnt " + extra)
            return
        w0 = any(t.startswith("0:") for t in tags)
        n = len([t for t in self.vm[last + 1:] if w0 or not t.startswith("0:")])
        assert n <= 63, n
        self("s_waitcnt vmcnt(%d) %s" % (n, extra))
        if w0:
            self.vm = [t for i, t in enumerate(self.vm) if i > last or not t.startswith("0:")]
        else:
            self.vm = self.vm[last + 1:]

    def wait_vm_all(self, extra=""):
        self("s_waitcnt vmcnt(0) %s" % extra)
        self.vm = []

    def stamp(self, idx):
        if not self.ts:
            return
        self("s_memtime s[98:99]")
        self("s_waitcnt lgkmcnt(0)")
        self("v_writelane_b32 v%d, s98, %d" % (self.VTS, idx))


def vr(a, n=1):
    return "v%d" % a if n == 1 else "v[%d:%d]" % (a, a + n - 1)


def fimm(k):
    if k == 0:
        return "0"
    if k in (1, 2, 4):
        return "%d.0" % k
    return "0x%08x" % struct.unpack("<I", struct.pack("<f", float(k)))[0]


S_X, S_W1, S_W3, S_W2, S_OUT, S_DBG, S_WS = 4, 8, 12, 16, 20, 24, 28
S_WAVE, S_MT, S_FT, S_ROT = 32, 33, 34, 35
S_WOFF = 36
S_XOFF = 44
S_J = 44
S_WK = 52
S_T0, S_T1, S_T2, S_T3 = 53, 54, 55, 56
S_RT, S_NT = 57, 58
S_LDT = 59
S_EX = 60
S_CNT = 62
S_DSK = 63
P_LAR, P_AIM, P_CR, P_CI, P_LDT, P_DSK = 66, 68, 70, 72, 74, 76
S_M = 92
VT, VT2 = 13, 14
W2F = 144
SRDW = lambda s: "s[%d:%d]" % (s, s + 3)


def srd(g, d, p, nbytes):
    g("s_mov_b32 s%d, s%d" % (d, p))
    g("s_mov_b32 s%d, s%d" % (d + 1, p + 1))
    g("s_mov_b32 s%d, 0x%x" % (d + 2, nbytes))
    g("s_mov_b32 s%d, 0x00020000" % (d + 3))


S_NONCE = 90
S_FA2 = 87


def w0(g):
    sk = g.newlabel("W0")
    g("s_cmp_lg_u32 s%d, 0" % S_WAVE)
    g("s_cbranch_scc1 %s" % sk)
    return sk


def nonce_write(g):
    sk = g.newlabel("NW")
    g("s_or_b32 s%d, s2, s%d" % (S_CNT, S_WAVE))
    g("s_cmp_lg_u32 s%d, 0" % S_CNT)
    g("s_cbranch_scc1 %s" % sk)
    g("s_memrealtime s[96:97]")
    g("s_waitcnt lgkmcnt(0)")
    g("s_or_b32 s%d, s96, 1" % S_CNT)
    g("v_mov_b32 v%d, s%d" % (VT2, S_CNT))
    g("s_mov_b64 exec, 1")
    g("buffer_store_dword v%d, v2, %s, 0 offen sc1" % (VT2, SRDW(S_DBG)))
    g("s_mov_b64 exec, -1")
    g.label(sk)


def nonce_issue(g, vf):
    g.vmem("buffer_load_dword v%d, off, %s, 0 sc1" % (vf, SRDW(S_DBG)), "nonce")


def nonce_check(g, vf):
    sk = g.newlabel("NK")
    lp = g.newlabel("NP")
    g.wait_vm("nonce")
    g("s_mov_b32 s%d, 0" % S_CNT)
    g.label(lp)
    g("v_readfirstlane_b32 s%d, v%d" % (S_NONCE, vf))
    g("s_add_u32 s%d, s%d, 1" % (S_CNT, S_CNT))
    g("s_nop 2")
    g("s_cmp_lg_u32 s%d, 0" % S_NONCE)
    g("s_cbranch_scc1 %s" % sk)
    g("s_cmp_ge_u32 s%d, 0x4000" % S_CNT)
    g("s_cbranch_scc1 %s" % sk)
    g("s_sleep 8")
    g("buffer_load_dword v%d, off, %s, 0 sc1" % (vf, SRDW(S_DBG)))
    g("s_waitcnt vmcnt(0)")
    g("s_branch %s" % lp)
    g.label(sk)


def flag_issue(g, vf, line, tag="0:flag", S_FA=91):
    sk = w0(g)
    sg, c = line
    if sg is None:
        g("s_mov_b32 s%d, %d" % (S_FA, WS_FLG + c * FP))
    else:
        g("s_mul_i32 s%d, s%d, %d" % (S_FA, sg, FP))
        g("s_add_u32 s%d, s%d, %d" % (S_FA, S_FA, WS_FLG + c * FP))
    g.vmem("buffer_load_dword v%d, v2, %s, s%d offen sc1" % (vf, SRDW(S_WS), S_FA), tag)
    g.label(sk)


def flag_check(g, vf, count, tag="0:flag", body=None, sfa=91):
    S_FA = sfa
    lp = g.newlabel("POLL")
    ok = g.newlabel("POLLK")
    done = w0(g)
    g.wait_vm(tag)
    g("s_mov_b32 s%d, 0" % S_CNT)
    g.label(lp)
    g("v_cmp_ne_u32 vcc, s%d, v%d" % (S_NONCE, vf))
    g("s_add_u32 s%d, s%d, 1" % (S_CNT, S_CNT))
    g("s_and_b32 s%d, vcc_lo, 0x%x" % (S_EX, (1 << count) - 1))
    g("s_cbranch_scc0 %s" % ok)
    g("s_cmp_ge_u32 s%d, 0x4000" % S_CNT)
    g("s_cbranch_scc1 %s" % ok)
    g("s_sleep 4")
    g("buffer_load_dword v%d, v2, %s, s%d offen sc1" % (vf, SRDW(S_WS), S_FA))
    g("s_waitcnt vmcnt(0)")
    g("s_branch %s" % lp)
    g.label(ok)
    if body:
        body()
    g.label(done)


def wflag_issue(g, vf, line, tag="wflag"):
    sg, c = line
    g("s_mul_i32 s%d, s%d, %d" % (S_FA2, sg, FP))
    g("s_add_u32 s%d, s%d, %d" % (S_FA2, S_FA2, WS_FLG + c * FP))
    g.vmem("buffer_load_dword v%d, v2, %s, s%d offen sc1" % (vf, SRDW(S_WS), S_FA2), tag)


def wflag_check(g, vf, count, tag="wflag"):
    lp = g.newlabel("POLL")
    ok = g.newlabel("POLLK")
    g.wait_vm(tag)
    g("s_mov_b32 s%d, 0" % S_CNT)
    g.label(lp)
    g("v_cmp_ne_u32 vcc, s%d, v%d" % (S_NONCE, vf))
    g("s_add_u32 s%d, s%d, 1" % (S_CNT, S_CNT))
    g("s_and_b32 s%d, vcc_lo, 0x%x" % (S_EX, (1 << count) - 1))
    g("s_cbranch_scc0 %s" % ok)
    g("s_cmp_ge_u32 s%d, 0x4000" % S_CNT)
    g("s_cbranch_scc1 %s" % ok)
    g("s_sleep 2")
    g("buffer_load_dword v%d, v2, %s, s%d offen sc1" % (vf, SRDW(S_WS), S_FA2))
    g("s_waitcnt vmcnt(0)")
    g("s_branch %s" % lp)
    g.label(ok)


def publish(g, addr_code, vtmp):
    sk = w0(g)
    addr_code(g)
    g("v_mov_b32 v%d, s%d" % (vtmp, S_NONCE))
    g("s_mov_b64 exec, 1")
    g("buffer_store_dword v%d, off, %s, s%d sc1" % (vtmp, SRDW(S_WS), S_CNT))
    g("s_mov_b64 exec, -1")
    g.label(sk)


def pub_aux(g):
    g("s_lshl_b32 s%d, s2, 2" % S_CNT)
    g("s_add_u32 s%d, s%d, %d" % (S_CNT, S_CNT, WS_FLG))


def pub_h(g):
    g("s_mul_i32 s%d, s%d, %d" % (S_CNT, S_MT, FP))
    g("s_lshl_b32 s%d, s%d, 2" % (S_EX, S_FT))
    g("s_add_u32 s%d, s%d, s%d" % (S_CNT, S_CNT, S_EX))
    g("s_add_u32 s%d, s%d, %d" % (S_CNT, S_CNT, WS_FLG + FP))


def pub_ao(g):
    g("s_lshr_b32 s%d, s2, 5" % S_CNT)
    g("s_mul_i32 s%d, s%d, %d" % (S_CNT, S_CNT, FP))
    g("s_and_b32 s%d, s2, 31" % S_EX)
    g("s_lshl_b32 s%d, s%d, 2" % (S_EX, S_EX))
    g("s_add_u32 s%d, s%d, s%d" % (S_CNT, S_CNT, S_EX))
    g("s_add_u32 s%d, s%d, %d" % (S_CNT, S_CNT, WS_FLG + 17 * FP))


def rnd_bf16(g, d, s):
    g("v_cvt_pk_bf16_f32 v%d, v%d, v%d" % (d, s, s))
    g("v_lshlrev_b32 v%d, 16, v%d" % (d, d))


def cmul1(d, a, b):
    return "v_pk_mul_f32 %s, %s, %s op_sel:[0,0] op_sel_hi:[0,1]" % (vr(d, 2), vr(a, 2), vr(b, 2))


def cmul2(d, a, b):
    return "v_pk_fma_f32 %s, %s, %s, %s op_sel:[1,1,0] op_sel_hi:[1,0,1] neg_lo:[0,1,0]" % (vr(d, 2), vr(a, 2), vr(b, 2), vr(d, 2))


def aux_need(g, vn, bits):
    g("v_mov_b32 v%d, 0x%08x" % (vn, bits * 0x01010101))
    g("v_cmp_gt_u32 vcc, 8, v1")
    g("s_nop 1")
    g("v_cndmask_b32 v%d, 0, v%d, vcc" % (vn, vn))


ROWS = {}
for _g in range(4):
    for _r in range(4):
        ROWS[(0, 4 * _g + _r)] = 4 * (_g & 1) + 128 * (_g >> 1) + _r
        ROWS[(1, 4 * _g + _r)] = (256 + 128 * (_g & 1) + 2 * _r) if _g < 2 else (512 + 4 * (_g & 1) + 128 * _r)
        ROWS[(2, 4 * _g + _r)] = 1024 + 512 * _g + 128 * _r
POS2ROW = {p: 16 + 16 * t + m for (t, m), p in ROWS.items() if p <= 2048}
assert len(POS2ROW) == 41 and max(POS2ROW.values()) == 56

PRM = 240


K_WR, K_R0, K_R1, K_A0, K_A1, K_OA, K_IX, K_CP, K_ZE = 208, 209, 210, 211, 212, 213, 217, 228, 229
K_DA = 232
S_KH, S_KL = 84, 85
UNITS = [KC, KC + TUNIT, XBASE + 2 * 16384, WBASE + 3 * 16384]
assert KC + 2 * TUNIT <= KVT and KVT + 6144 <= 163840


def k_addr(g):
    g("s_lshr_b32 s%d, s%d, 1" % (S_T0, S_WAVE))
    g("s_mov_b32 s%d, %d" % (S_T1, UNITS[0]))
    for u in range(1, 4):
        g("s_cmp_eq_u32 s%d, %d" % (S_T0, u))
        g("s_cmov_b32 s%d, %d" % (S_T1, UNITS[u]))
    g("v_add_u32 v%d, s%d, v2" % (K_WR, S_T1))
    g("s_and_b32 s%d, s%d, 1" % (S_T0, S_T0))
    g("s_lshl_b32 s%d, s%d, 4" % (S_T0, S_T0))
    g("s_sub_u32 s%d, 16, s%d" % (S_KH, S_T0))
    g("s_lshr_b32 s%d, s%d, 2" % (S_T2, S_WAVE))
    g("s_lshl_b32 s%d, s%d, 4" % (S_T0, S_T2))
    g("s_sub_u32 s%d, 16, s%d" % (S_KL, S_T0))
    g("v_and_b32 v%d, 15, v1" % VT)
    g("v_lshrrev_b32 v%d, 4, v1" % VT2)
    g("v_mul_u32_u24 v%d, %d, v%d" % (K_R0, TP, VT))
    g("v_lshl_add_u32 v%d, v%d, 4, v%d" % (K_R0, VT2, K_R0))
    g("s_cmp_eq_u32 s%d, 0" % S_T2)
    g("s_mov_b32 s%d, %d" % (S_T0, UNITS[2]))
    g("s_cmov_b32 s%d, %d" % (S_T0, UNITS[0]))
    g("s_mov_b32 s%d, %d" % (S_T1, UNITS[3]))
    g("s_cmov_b32 s%d, %d" % (S_T1, UNITS[1]))
    g("v_add_u32 v%d, s%d, v%d" % (K_R1, S_T1, K_R0))
    g("v_add_u32 v%d, s%d, v%d" % (K_R0, S_T0, K_R0))
    g("s_and_b32 s%d, s%d, 3" % (S_T3, S_WAVE))
    g("s_mul_i32 s%d, s%d, %d" % (S_T0, S_T3, 16 * TP))
    g("v_add_u32 v%d, s%d, v%d" % (K_A0, S_T0, K_R0))
    g("v_add_u32 v%d, s%d, v%d" % (K_A1, S_T0, K_R1))
    tabs = [(0, 256, 1024, 4096), (128, 512, 2048, 4096), (4, 128, 512, 0), (4, 4, 512, 0), (1, 2, 128, 0), (1, 128, 128, 0)]
    SB = 92
    for i, t in enumerate(tabs):
        g("s_mov_b32 s%d, %d" % (SB + i, t[0]))
    for tt in (1, 2, 3):
        g("s_cmp_eq_u32 s%d, %d" % (S_T3, tt))
        for i, t in enumerate(tabs):
            g("s_cmov_b32 s%d, %d" % (SB + i, t[tt]))
    g("v_cmp_le_u32 vcc, 32, v1")
    for i in range(3):
        g("v_mov_b32 v%d, s%d" % (24 + i, SB + 2 * i))
        g("v_mov_b32 v%d, s%d" % (27 + i, SB + 2 * i + 1))
    for i in range(3):
        g("v_cndmask_b32 v%d, v%d, v%d, vcc" % (24 + i, 24 + i, 27 + i))
    g("v_and_b32 v27, 1, v%d" % VT2)
    g("v_mad_u32_u24 v24, v27, v25, v24")
    g("v_lshl_add_u32 v24, v%d, 3, v24" % VT)
    g("s_mul_i32 s%d, s%d, %d" % (S_T1, S_T2, KV_PITCH))
    g("s_add_u32 s%d, s%d, %d" % (S_T1, S_T1, KVT - 2 * KV_BIAS))
    g("v_mov_b32 v28, %d" % (KV_BIAS + KV_DUMP))
    for r in range(4):
        o = K_OA + r
        g("v_cvt_f32_u32 v%d, v24" % o)
        g("v_cmp_lt_u32 vcc, 2048, v24")
        g("v_lshrrev_b32 v%d, 16, v%d" % (o, o))
        g("v_max_u32 v%d, %d, v%d" % (o, KV_BIAS, o))
        g("v_cndmask_b32 v%d, v%d, v28, vcc" % (o, o))
        g("v_lshl_add_u32 v%d, v%d, 1, s%d" % (o, o, S_T1))
        if r < 3:
            g("v_add_u32 v24, v24, v26")
    g("s_add_u32 s%d, s%d, %d" % (S_T0, S_T1, 2 * (KV_BIAS + KV_ZERO)))
    g("v_mov_b32 v%d, s%d" % (K_ZE, S_T0))


def k_idx():
    r = ["v_and_b32 v%d, 255, v0" % K_CP,
         "v_lshlrev_b32 v200, 3, v%d" % K_CP,
         "v_sub_u32 v200, 2047, v200",
         "v_cvt_f32_i32 v200, v200",
         "v_mov_b32 v201, %d" % (KV_BIAS + KV_ZERO),
         "s_mov_b32 s%d, %d" % (S_KH, KVT - 2 * KV_BIAS),
         "s_mov_b32 s%d, %d" % (S_KL, KV_BIAS),
         "v_lshlrev_b32 v%d, 4, v%d" % (K_CP, K_CP),
         "v_add_u32 v%d, %d, v%d" % (K_CP, KC, K_CP)]
    for k in range(0, 12, 2):
        r.append("v_subrev_f32 v202, %s, v200" % fimm(k))
        r.append("v_subrev_f32 v203, %s, v200" % fimm(k + 1))
        r.append("v_cvt_pk_bf16_f32 v202, v202, v203")
        r.append("v_and_b32 v%d, 0xffff, v202" % (K_IX + k))
        if k < 10:
            r.append("v_lshrrev_b32 v%d, 16, v202" % (K_IX + k + 1))
    for k in range(11):
        r.append("v_med3_u32 v%d, v%d, s%d, v201" % (K_IX + k, K_IX + k, S_KL))
        r.append("v_lshl_add_u32 v%d, v%d, 1, s%d" % (K_IX + k, K_IX + k, S_KH))
    return r


def k_chains(g, sfx):
    Q = 16
    LAR, AIM, CR, CI = Q, Q + 1, Q + 2, Q + 3
    DT, ER, TU = Q + 4, Q + 5, Q + 6
    TA, TB = Q, Q + 1
    VWR = K_WR
    g("s_lshl_b32 s%d, s%d, s%d" % (S_T2, S_LDT, S_KL))
    g("s_and_b32 s%d, s%d, 0xffff0000" % (S_T2, S_T2))
    for k in range(4):
        g("v_lshlrev_b32 v%d, s%d, v%d" % (Q + k, S_KH, PRM + k))
    for k in range(4):
        g("v_and_b32 v%d, 0xffff0000, v%d" % (Q + k, Q + k))
    g("v_mov_b32 v%d, 0x%x" % (DT, LOG2E))
    g("v_mul_f32 v%d, s%d, v%d" % (DT, S_T2, DT))
    g("v_mul_f32 v%d, 0x%x, v%d" % (ER, LOG2E, LAR))
    g("v_exp_f32 v%d, v%d" % (DT, DT))
    g("v_exp_f32 v%d, v%d" % (ER, ER))
    g("s_nop 0")
    rnd_bf16(g, DT, DT)
    rnd_bf16(g, ER, ER)
    g("v_mul_f32 v%d, v%d, v%d" % (ER, ER, DT))
    g("v_mul_f32 v%d, v%d, v%d" % (TU, AIM, DT))
    g("v_mul_f32 v%d, 0x%x, v%d" % (ER, NLOG2E, ER))
    g("v_mul_f32 v%d, 0x%x, v%d" % (TU, INV2PI, TU))

    def direct(d, p, conj=False, t0=TA, t1=TB):
        g("v_mul_f32 v%d, %s, v%d" % (t0, fimm(p), ER))
        g("v_mul_f32 v%d, %s, v%d" % (t1, fimm(p), TU))
        g("v_exp_f32 v%d, v%d" % (t0, t0))
        g("v_fract_f32 v%d, v%d" % (t1, t1))
        g("v_cos_f32 v%d, v%d" % (d, t1))
        g("v_sin_f32 v%d, v%d" % (d + 1, t1))
        g("s_nop 0")
        g("v_mul_f32 v%d, v%d, v%d" % (d, d, t0))
        g("v_mul_f32 v%d, %sv%d, v%d" % (d + 1, "-" if conj else "", d + 1, t0))

    def run(chains, tmp0):
        streams = []
        ti = [0]
        for ci, c in enumerate(chains):
            s = []
            for op in c:
                if op[0] == "mul":
                    s.append(cmul1(*op[1:]))
                    s.append(cmul2(*op[1:]))
                else:
                    t = tmp0 + 2 * ci + (ti[0] & 1)
                    ti[0] += 1
                    s.append("v_cvt_pk_bf16_f32 v%d, v%d, v%d" % (t, op[2], op[2] + 1))
                    s.append("ds_write_b32 v%d, v%d offset:%d" % (VWR, t, op[1] * TP))
            streams.append(s)
        while any(streams):
            for s in streams:
                if s:
                    g(s.pop(0))

    g("s_bitcmp1_b32 s%d, 0" % S_WAVE)
    g("s_cbranch_scc1 L_KB" + sfx)
    E = {}
    nxt = [Q + 8]
    def al(n):
        E[n] = nxt[0]; nxt[0] += 2
        return E[n]
    GA, GB = al("ga"), al("gb")
    g("v_add_f32 v%d, v%d, v%d" % (DT, DT, DT))
    g("v_mul_f32 v%d, v%d, v%d" % (GA, CR, DT))
    g("v_mul_f32 v%d, -v%d, v%d" % (GA + 1, CI, DT))
    direct(al(8), 8, True); direct(al(1), 1); direct(al(128), 128)
    direct(al(64), 64, True)
    GC, GD = al("gc"), al("gd")
    for p in range(2, 8):
        al(p)
    PA, PB = al("pa"), al("pb")
    T0 = nxt[0]
    c1, cur, nx = [], GA, GB
    c2 = [("mul", GC, GA, E[64])]
    for b in range(8):
        c1.append(("put", b, cur))
        if b < 7:
            c1.append(("mul", nx, cur, E[8])); cur, nx = nx, cur
    cur, nx = GC, GD
    for b in range(8, 16):
        c2.append(("put", b, cur))
        if b < 15:
            c2.append(("mul", nx, cur, E[8])); cur, nx = nx, cur
    c3 = [("put", POS2ROW[1], E[1]), ("put", POS2ROW[128], E[128])]
    for p in range(2, 8):
        c3.append(("mul", E[p], E[p - 1], E[1]))
        c3.append(("put", POS2ROW[p], E[p]))
    c4 = []
    g("v_mov_b32 v%d, 0x00003f80" % TA)
    g("ds_write_b32 v%d, v%d offset:%d" % (VWR, TA, POS2ROW[0] * TP))
    run([c2, c1, c3], T0)
    ca, cb = [], []
    for p in range(1, 8):
        (ca if p & 1 else cb).extend([("mul", PA if p & 1 else PB, E[p], E[128]), ("put", POS2ROW[128 + p], PA if p & 1 else PB)])
    run([ca, cb], T0)
    g("s_branch L_KJ" + sfx)
    g.label("L_KB" + sfx)
    E = {}
    nxt = [Q + 8]
    direct(al(2), 2); direct(al(128), 128); direct(al(1024), 1024)
    al(4); al(6)
    for h in list(range(2, 8)) + list(range(9, 17)):
        al(128 * h)
    PA, PB = al("pa"), al("pb")
    T0 = nxt[0]
    assert T0 + 8 <= 128
    c1 = []
    for h in range(2, 8):
        c1.append(("mul", E[128 * h], E[128 * (h - 1)], E[128])); c1.append(("put", POS2ROW[128 * h], E[128 * h]))
    c2 = [("put", POS2ROW[1024], E[1024])]
    for h in range(9, 17):
        c2.append(("mul", E[128 * h], E[128 * (h - 1)], E[128])); c2.append(("put", POS2ROW[128 * h], E[128 * h]))
    c3 = [("mul", E[4], E[2], E[2]), ("mul", E[6], E[4], E[2])]
    run([c1, c2, c3], T0)
    prods = [p for p in sorted(POS2ROW) if p >= 256 and (p & 127)]
    ca, cb = [], []
    for i, p in enumerate(prods):
        d = (PA, PB)[i & 1]
        (ca, cb)[i & 1].extend([("mul", d, E[p & 127], E[p & ~127]), ("put", POS2ROW[p], d)])
    run([ca, cb], T0)
    g.label("L_KJ" + sfx)


K_FB, K_FA = 144, 176


def k_reads():
    r = []
    for hf in range(2):
        for ks in range(4):
            r.append("ds_read_b128 %s, v%d offset:%d" % (vr(K_FB + 16 * hf + 4 * ks, 4), (K_R0, K_R1)[hf], 64 * ks))
            r.append("ds_read_b128 %s, v%d offset:%d" % (vr(K_FA + 16 * hf + 4 * ks, 4), (K_A0, K_A1)[hf], 16 * TP + 64 * ks))
    return r


def k_mfmas():
    return ["v_mfma_f32_16x16x32_bf16 %s, %s, %s, %s" % (vr(K_DA, 4), vr(K_FA + 4 * i, 4), vr(K_FB + 4 * i, 4), "0" if i == 0 else vr(K_DA, 4)) for i in range(8)]


def k_table():
    r = ["v_mov_b32 v%d, 0" % VT]
    for k in range(4):
        r.append("v_cvt_pk_bf16_f32 v%d, v%d, v%d" % (K_DA + 4 + k, K_DA + k, K_DA + k))
    for k in range(4):
        r.append("ds_write_b16 v%d, v%d" % (K_OA + k, K_DA + 4 + k))
    r.append("ds_write_b16 v%d, v%d" % (K_ZE, VT))
    return r


def k_stage2(g):
    sk = g.newlabel("KS")
    g("v_mov_b32 v%d, 0" % VT)
    g("ds_write_b16 v%d, v%d" % (K_ZE, VT))
    g("s_and_b32 s%d, s%d, 3" % (S_T0, S_WAVE))
    g("s_cmp_eq_u32 s%d, 3" % S_T0)
    g("s_cbranch_scc1 %s" % sk)
    for r in k_reads():
        g(r)
    for i, m in enumerate(k_mfmas()):
        g("s_waitcnt lgkmcnt(%d)" % (14 - 2 * i))
        g(m)
    g("s_nop 7")
    g("s_nop 1")
    for r in k_table()[1:-1]:
        g(r)
    g.label(sk)


def k_gather(ch):
    return ["ds_read_u16 v%d, v%d offset:%d" % (144 + 12 * ch + k, K_IX + k, KV_PITCH * ch) for k in range(11)]


def k_build(ch):
    D, O = 144 + 12 * ch, 168
    r = []
    for sft in range(4):
        for k in range(4):
            r.append("v_lshl_or_b32 v%d, v%d, 16, v%d" % (O + 4 * sft + k, D + sft + 2 * k + 1, D + sft + 2 * k))
        r.append("ds_write_b128 v%d, %s offset:%d" % (K_CP, vr(O + 4 * sft, 4), 4160 * sft + 16640 * ch))
    return r


def k_zero(g):
    z6, z7 = g.newlabel("Z"), g.newlabel("Z")
    g("s_cmp_lt_u32 s%d, 6" % S_WAVE)
    g("s_cbranch_scc1 %s" % z7)
    for r in range(4):
        g("v_mov_b32 v%d, 0" % (184 + r))
    g("v_lshrrev_b32 v%d, 5, v1" % VT)
    g("v_lshlrev_b32 v%d, 12, v%d" % (VT, VT))
    g("v_lshl_add_u32 v%d, v1, 4, v%d" % (VT, VT))
    g("v_add_u32 v%d, %d, v%d" % (VT, UB, VT))
    g("s_cmp_eq_u32 s%d, 6" % S_WAVE)
    g("s_cbranch_scc1 %s" % z6)
    g("v_bfe_u32 v%d, v1, 1, 3" % VT)
    g("v_mul_u32_u24 v%d, 4160, v%d" % (VT, VT))
    g("v_and_b32 v%d, 1, v1" % VT2)
    g("v_lshl_add_u32 v%d, v%d, 4, v%d" % (VT, VT2, VT))
    g("v_add_u32 v%d, %d, v%d" % (VT, KC + 4096, VT))
    g.label(z6)
    g("ds_write_b128 v%d, v[184:187]" % VT)
    g.label(z7)


def w2_setup(g, vd, va):
    g("v_lshrrev_b32 v%d, 4, v1" % VT)
    g("v_lshlrev_b32 v%d, 1, v%d" % (VT, VT))
    g("v_xor_b32 v%d, v%d, v1" % (VT, VT))
    g("v_and_b32 v%d, 7, v%d" % (VT, VT))
    g("v_lshrrev_b32 v%d, 3, v1" % VT2)
    g("v_lshlrev_b32 v%d, 10, v%d" % (vd, VT2))
    g("v_lshl_add_u32 v%d, v%d, 4, v%d" % (vd, VT, vd))
    g("s_mul_i32 s%d, s%d, %d" % (S_M, S_WAVE, 224 * 1024))
    g("s_lshl_b32 s%d, s%d, 7" % (S_M + 1, S_NT))
    g("s_add_u32 s%d, s%d, s%d" % (S_M, S_M, S_M + 1))
    g("s_mul_i32 s%d, s%d, %d" % (S_M + 1, S_WAVE, W2P))
    g("s_lshr_b32 s%d, s2, 2" % S_T0)
    g("s_and_b32 s%d, s%d, 6" % (S_T0, S_T0))
    g("s_and_b32 s%d, s2, 7" % S_T1)
    g("s_add_u32 s%d, s%d, s%d" % (S_T0, S_T0, S_T1))
    for j in range(7):
        if j:
            g("s_add_u32 s%d, s%d, 1" % (S_T0, S_T0))
        g("s_sub_u32 s%d, s%d, 7" % (S_T1, S_T0))
        g("s_cmp_ge_u32 s%d, 7" % S_T0)
        g("s_cselect_b32 s%d, s%d, s%d" % (S_T0, S_T1, S_T0))
        g("s_lshl_b32 s%d, s%d, 10" % (S_J + j, S_T0))
    g("v_and_b32 v%d, 3, v%d" % (VT2, VT2))
    g("v_lshlrev_b32 v%d, 5, v%d" % (VT2, VT2))
    g("v_lshrrev_b32 v%d, 2, v1" % VT)
    g("v_lshl_add_u32 v%d, v%d, 7, v%d" % (VT2, VT, VT2))
    g("v_and_b32 v%d, 3, v1" % VT)
    g("v_lshl_add_u32 v%d, v%d, 3, v%d" % (VT2, VT, VT2))
    g("v_add_u32 v%d, s%d, v%d" % (va, S_M + 1, VT2))
    for c in range(1, 4):
        g("v_xor_b32 v%d, %d, v%d" % (va + c, 32 * c, va))


SEQ = [0, 1, 2, 3, 4, 5, 6]
WLOC = ["o0", "o1", "o2", "o0", "o1", "o2", "o0"]
S_KST = 88
V_W2K = 8


def w2_dma(g, vd, pos):
    j = SEQ[pos]
    loc = WLOC[pos]
    g("s_lshl_b32 s%d, s%d, 5" % (S_M + 2, S_J + j))
    g("s_add_u32 s%d, s%d, s%d" % (S_M + 2, S_M + 2, S_M))
    for q in range(4):
        if loc == "k":
            g("s_add_u32 m0, s%d, %d" % (S_KST, q * 1024))
        else:
            g("s_add_u32 m0, s%d, %d" % (S_M + 1, int(loc[1]) * 4096 + q * 1024))
        g("s_add_u32 s%d, s%d, %d" % (S_M + 2, S_M + 2, 8192 if q else 0))
        g.vmem("buffer_load_dwordx4 v%d, %s, s%d offen lds" % (vd, SRDW(S_W2), S_M + 2), "w2_%d" % pos)


def w2_rd(g, pos, wait=True):
    j = SEQ[pos]
    loc = WLOC[pos]
    if wait:
        g.wait_vm("w2_%d" % pos)
    va, off = (V_W2K, 0) if loc == "k" else (4, int(loc[1]) * 4096)
    for c in range(4):
        d = W2F + 16 * j + 4 * c
        g("ds_read_b64_tr_b16 %s, v%d offset:%d" % (vr(d, 2), va + c, off))
        g("ds_read_b64_tr_b16 %s, v%d offset:%d" % (vr(d + 2, 2), va + c, off + 2048))


def reduce8(g, p):
    g("s_nop 1")
    for i in range(4):
        g("v_permlane32_swap_b32 v%d, v%d" % (p + i, p + i + 4))
    g("s_nop 1")
    for i in range(4):
        g("v_add_f32 v%d, v%d, v%d" % (p + i, p + i, p + i + 4))
    g("s_nop 1")
    for i in range(2):
        g("v_permlane16_swap_b32 v%d, v%d" % (p + i, p + i + 2))
    g("s_nop 1")
    for i in range(2):
        g("v_add_f32 v%d, v%d, v%d" % (p + i, p + i, p + i + 2))
    for rot in (8, 4, 2, 1):
        g("s_nop 1")
        for i in range(2):
            g("v_add_f32_dpp v%d, v%d, v%d row_ror:%d row_mask:0xf bank_mask:0xf" % (p + i, p + i, p + i, rot))


V_W2D, V_W2A = 3, 4
UREG = 236
STR, CSR = 204, 220


def u_load(g):
    g("v_lshrrev_b32 v%d, 4, v0" % VT)
    g("v_mul_u32_u24 v%d, %d, v%d" % (VT, XP, VT))
    g("v_and_b32 v%d, 15, v0" % VT2)
    g("v_lshl_add_u32 v%d, v%d, 4, v%d" % (VT, VT2, VT))
    g("s_lshl_b32 s%d, s2, 8" % S_T1)
    g.vmem("buffer_load_dwordx4 %s, v%d, %s, s%d offen sc1" % (vr(UREG, 4), VT, SRDW(S_WS), S_T1), "u")


def u_store(g):
    g("v_lshrrev_b32 v%d, 4, v0" % VT)
    g("v_lshlrev_b32 v%d, 7, v%d" % (VT, VT))
    g("v_and_b32 v%d, 7, v0" % VT2)
    g("v_lshl_add_u32 v%d, v%d, 4, v%d" % (VT, VT2, VT))
    g("v_bfe_u32 v%d, v0, 3, 1" % VT2)
    g("v_mul_u32_u24 v%d, 4608, v%d" % (VT2, VT2))
    g("v_add_u32 v%d, v%d, v%d" % (VT, VT, VT2))
    g("v_add_u32 v%d, %d, v%d" % (VT, UB + 512, VT))
    g.wait_vm("u")
    g("ds_write_b128 v%d, %s" % (VT, vr(UREG, 4)))


def pub_pcs(g):
    g("s_mul_i32 s%d, s%d, %d" % (S_CNT, S_FT, FP))
    g("s_lshl_b32 s%d, s%d, 2" % (S_EX, S_MT))
    g("s_add_u32 s%d, s%d, s%d" % (S_CNT, S_CNT, S_EX))
    g("s_add_u32 s%d, s%d, %d" % (S_CNT, S_CNT, WS_FLG + 25 * FP))


def gen(ts=False):
    g = Gen(ts)
    g.VTS = 15
    g("s_cmp_ge_u32 s2, 256")
    g("s_cbranch_scc1 L_END")
    if OPT["dbgtime"]:
        g("s_memtime s[98:99]")
        g("s_memrealtime s[100:101]")
    g("s_load_dwordx16 s[64:79], s[0:1], 0")
    g("s_load_dwordx8 s[80:87], s[0:1], 64")
    g("s_load_dwordx4 s[88:91], s[0:1], 96")
    g("s_getpc_b64 s[%d:%d]" % (S_M, S_M + 1))
    g("s_lshr_b32 s%d, s2, 3" % S_T1)
    g("s_and_b32 s%d, s%d, 3" % (S_T2, S_T1))
    g("s_lshl_b32 s%d, s%d, 13" % (S_T0, S_T2))
    g("v_lshlrev_b32 v3, 4, v0")
    g("v_add_u32 v3, s%d, v3" % S_T0)
    g.vmem("global_load_dwordx4 v[252:255], v3, s[%d:%d]" % (S_M, S_M + 1), "code")
    g("v_and_b32 v1, 63, v0")
    g("v_lshrrev_b32 v3, 6, v0")
    g("v_lshlrev_b32 v2, 2, v1")
    g("v_readfirstlane_b32 s%d, v3" % S_WAVE)
    for r in range(4, 7):
        g("v_mov_b32 v%d, 0" % r)
    if ts:
        g("v_mov_b32 v%d, 0" % g.VTS)
    g("s_and_b32 s%d, s2, 7" % S_T0)
    g("s_and_b32 s%d, s2, 3" % S_RT)
    g("s_lshl_b32 s%d, s%d, 3" % (S_RT, S_RT))
    g("s_and_b32 s%d, s2, 4" % S_T3)
    g("s_add_u32 s%d, s%d, s%d" % (S_RT, S_RT, S_T3))
    g("s_add_u32 s%d, s%d, s%d" % (S_RT, S_RT, S_T2))
    g("s_lshr_b32 s%d, s2, 5" % S_NT)
    if OPT.get("ntx"):
        g("s_xor_b32 s%d, s%d, %d" % (S_NT, S_NT, OPT["ntx"]))
    g("s_lshl_b32 s%d, s%d, 10" % (S_WK, S_WAVE))
    g("s_lshr_b32 s%d, s%d, 2" % (S_T3, S_WAVE))
    g("s_lshl_b32 s%d, s%d, 8" % (S_T3, S_T3))
    g("s_lshl_b32 s%d, s2, 9" % S_CNT)
    g("s_add_u32 s%d, s%d, s%d" % (S_T3, S_T3, S_CNT))
    g("v_add_u32 v%d, s%d, v2" % (VT, S_T3))
    g("s_lshl_b32 s%d, s2, 2" % S_CNT)
    g("s_waitcnt lgkmcnt(0)")
    for k, p in enumerate((P_LAR, P_AIM, P_CR, P_CI)):
        g.vmem("global_load_dword v%d, v%d, s[%d:%d]" % (PRM + k, VT, p, p + 1), "prm")
    g("s_load_dword s%d, s[%d:%d], s%d" % (S_LDT, P_LDT, P_LDT + 1, S_CNT))
    g("s_load_dword s%d, s[%d:%d], s%d" % (S_DSK, P_DSK, P_DSK + 1, S_CNT))
    srd(g, S_X, 64, 2097152)
    srd(g, S_W1, 80, 1835008)
    srd(g, S_W3, 82, 1835008)
    srd(g, S_W2, 84, 1835008)
    srd(g, S_OUT, 86, 2097152)
    srd(g, S_DBG, 88, 256)
    srd(g, S_WS, 90, WS_SIZE)
    nonce_write(g)
    g.stamp(0)
    g("s_cmp_lt_u32 s2, 32")
    g("s_cbranch_scc1 L_AUX")
    vm_entry = list(g.vm)

    g("s_sub_u32 s%d, s%d, 4" % (S_T1, S_T1))
    g("s_lshr_b32 s%d, s%d, 2" % (S_T3, S_T1))
    g("s_and_b32 s%d, s%d, 3" % (S_MT, S_T0))
    g("s_lshl_b32 s%d, s%d, 1" % (S_ROT, S_MT))
    g("s_lshl_b32 s%d, s%d, 2" % (S_MT, S_MT))
    g("s_add_u32 s%d, s%d, s%d" % (S_MT, S_MT, S_T2))
    g("s_lshr_b32 s%d, s%d, 2" % (S_FT, S_T0))
    g("s_mul_i32 s%d, s%d, 7" % (S_FT, S_FT))
    g("s_add_u32 s%d, s%d, s%d" % (S_FT, S_FT, S_T3))
    g("s_and_b32 s%d, s2, 4" % S_T3)
    g("s_add_u32 s%d, s%d, s%d" % (S_ROT, S_ROT, S_T3))
    g("s_lshl_b32 s%d, s%d, 8" % (S_T0, S_FT))
    g("s_lshl_b32 s%d, s%d, 17" % (S_T1, S_MT))
    V_WD0, V_WD1, V_XD0, V_XD1 = 3, 4, 5, 6
    V_XA0, V_XA1, V_WA0, V_WA1 = 7, 8, 9, 10
    V_FL, V_NEED = 11, 12
    SETS = [16, 48]
    ACC = 80

    S_OB = 82
    def offs_l(i):
        b0, b1 = (S_T0, S_T1) if i < 2 else (S_OB, S_OB + 1)
        return ["s_add_u32 s%d, s%d, %d" % (S_XOFF + i, S_ROT, i),
                "s_and_b32 s%d, s%d, 7" % (S_XOFF + i, S_XOFF + i),
                "s_mul_i32 s%d, s%d, %d" % (S_WOFF + i, S_XOFF + i, 64 * 3584),
                "s_add_u32 s%d, s%d, s%d" % (S_WOFF + i, S_WOFF + i, b0),
                "s_lshl_b32 s%d, s%d, 7" % (S_XOFF + i, S_XOFF + i),
                "s_add_u32 s%d, s%d, s%d" % (S_XOFF + i, S_XOFF + i, b1)]
    def offs(i):
        for x in offs_l(i):
            g(x)
    offs(0)
    g("v_lshrrev_b32 v%d, 4, v1" % VT)
    g("s_lshr_b32 s%d, s%d, 1" % (S_T2, S_WAVE))
    g("s_and_b32 s%d, s%d, 1" % (S_T2, S_T2))
    g("s_lshl_b32 s%d, s%d, 2" % (S_T2, S_T2))
    g("v_or_b32 v%d, s%d, v%d" % (VT2, S_T2, VT))
    g("v_lshlrev_b32 v%d, 1, v%d" % (VT2, VT2))
    g("v_and_b32 v%d, 15, v1" % V_WD0)
    g("v_xor_b32 v%d, v%d, v%d" % (V_WD0, V_WD0, VT2))
    g("v_lshlrev_b32 v%d, 4, v%d" % (V_WD0, V_WD0))
    g("v_lshrrev_b32 v%d, 4, v0" % VT)
    g("v_mul_u32_u24 v%d, 3584, v%d" % (VT2, VT))
    g("v_add_u32 v%d, v%d, v%d" % (V_WD0, V_WD0, VT2))
    g("v_add_u32 v%d, %d, v%d" % (V_WD1, 32 * 3584, V_WD0))
    g("v_xor_b32 v%d, v%d, v1" % (VT, VT))
    g("v_and_b32 v%d, 7, v%d" % (VT, VT))
    g("v_lshrrev_b32 v%d, 3, v0" % VT2)
    g("v_lshlrev_b32 v%d, 10, v%d" % (VT2, VT2))
    g("v_lshl_add_u32 v%d, v%d, 4, v%d" % (V_XD0, VT, VT2))
    g("v_add_u32 v%d, 0x10000, v%d" % (V_XD1, V_XD0))

    def unit_ops(k):
        r = []
        st, h = k >> 1, k & 1
        if h == 0:
            for b in range(2):
                r.append(("s_add_u32 m0, s%d, %d" % (S_WK, XBASE + (st % 3) * 16384 + b * 8192),
                          "buffer_load_dwordx4 v%d, %s, s%d offen lds" % (V_XD1 if b else V_XD0, SRDW(S_X), S_XOFF + st), "U%d" % k))
        for mat in range(2):
            r.append(("s_add_u32 m0, s%d, %d" % (S_WK, WBASE + (k % 4) * 16384 + mat * 8192),
                      "buffer_load_dwordx4 v%d, %s, s%d offen lds" % (V_WD1 if h else V_WD0, SRDW((S_W1, S_W3)[mat]), S_WOFF + st), "U%d" % k))
        return r

    def unit(k):
        for a, b, t in unit_ops(k):
            g(a); g("s_nop 0"); g.vmem(b, t)

    unit(0); unit(1)
    offs(1)
    g("s_mov_b32 s%d, s%d" % (S_OB, S_T0))
    g("s_mov_b32 s%d, s%d" % (S_OB + 1, S_T1))
    g("v_and_b32 v%d, 15, v1" % VT)
    g("v_lshrrev_b32 v%d, 4, v1" % VT2)
    g("v_lshrrev_b32 v%d, 1, v%d" % (V_XA0, VT))
    g("v_xor_b32 v%d, v%d, v%d" % (V_XA0, V_XA0, VT2))
    g("v_lshlrev_b32 v%d, 4, v%d" % (V_XA0, V_XA0))
    g("v_lshl_add_u32 v%d, v%d, 7, v%d" % (V_XA0, VT, V_XA0))
    g("s_lshr_b32 s%d, s%d, 2" % (S_T2, S_WAVE))
    g("s_lshl_b32 s%d, s%d, 13" % (S_T2, S_T2))
    g("v_add_u32 v%d, s%d, v%d" % (V_XA0, S_T2, V_XA0))
    g("v_xor_b32 v%d, 64, v%d" % (V_XA1, V_XA0))
    g("v_lshrrev_b32 v%d, 2, v%d" % (VT, VT))
    g("v_and_b32 v%d, 1, v%d" % (V_WA0, VT2))
    g("v_lshl_or_b32 v%d, v%d, 2, v%d" % (V_WA0, V_WA0, VT))
    g("s_and_b32 s%d, s%d, 3" % (S_T2, S_WAVE))
    g("s_lshl_b32 s%d, s%d, 1" % (S_T2, S_T2))
    g("v_xor_b32 v%d, s%d, v%d" % (V_WA0, S_T2, V_WA0))
    g("v_lshlrev_b32 v%d, 5, v%d" % (V_WA0, V_WA0))
    g("v_lshl_add_u32 v%d, v%d, 3, v%d" % (VT, VT2, VT))
    g("v_lshl_add_u32 v%d, v%d, 8, v%d" % (V_WA0, VT, V_WA0))
    g("v_and_b32 v%d, 3, v1" % VT)
    g("v_lshl_add_u32 v%d, v%d, 3, v%d" % (V_WA0, VT, V_WA0))
    g("v_add_u32 v%d, %d, v%d" % (V_WA0, WBASE, V_WA0))
    g("v_xor_b32 v%d, 32, v%d" % (V_WA1, V_WA0))
    k_addr(g)
    ONES, PD = 244, 248
    for r in range(4):
        g("v_mov_b32 v%d, 0x3f803f80" % (ONES + r))
    g.wait_vm("prm", "lgkmcnt(0)")
    g.stamp(20)
    k_chains(g, "G")
    unit(2)
    nonce_issue(g, V_NEED)
    g("s_waitcnt lgkmcnt(0)")
    g("s_barrier")
    g.stamp(21)
    k_stage2(g)
    g.stamp(1)

    def frag_reads(it):
        S = SETS[it & 1]
        xs = (it >> 1) % 3
        va = V_XA1 if (it & 1) else V_XA0
        so = (it % 4) * 16384
        xr = ["ds_read_b128 %s, v%d offset:%d" % (vr(S + 4 * mi, 4), va, XBASE + xs * 16384 + mi * 2048) for mi in range(4)]
        wr = []
        for mat in range(2):
            for tt in range(2):
                a = (V_WA0, V_WA1)[tt]
                d = S + 16 + 4 * (2 * mat + tt)
                wr.append("ds_read_b64_tr_b16 %s, v%d offset:%d" % (vr(d, 2), a, so + mat * 8192))
                wr.append("ds_read_b64_tr_b16 %s, v%d offset:%d" % (vr(d + 2, 2), a, so + mat * 8192 + 1024))
        return xr + wr

    def mfmas(it):
        S = SETS[it & 1]
        r = []
        for mi in range(4):
            for c in range(4):
                a = ACC + 16 * mi + 4 * c
                r.append("v_mfma_f32_16x16x32_bf16 %s, %s, %s, %s" % (vr(a, 4), vr(S + 16 + 4 * c, 4), vr(S + 4 * mi, 4), "0" if it == 0 else vr(a, 4)))
        return r

    def stats_loads():
        g("v_and_b32 v%d, 15, v1" % VT)
        g("v_lshlrev_b32 v%d, 4, v%d" % (VT, VT))
        g("s_lshr_b32 s%d, s%d, 2" % (S_T2, S_WAVE))
        g("s_lshl_b32 s%d, s%d, 10" % (S_T2, S_T2))
        g("s_lshl_b32 s%d, s%d, 11" % (S_T3, S_MT))
        g("s_add_u32 s%d, s%d, s%d" % (S_T2, S_T2, S_T3))
        g("s_add_u32 s%d, s%d, %d" % (S_T2, S_T2, WS_STATS))
        for mi in range(4):
            g.vmem("buffer_load_dwordx4 %s, v%d, %s, s%d offen offset:%d sc1" % (vr(STR + 4 * mi, 4), VT, SRDW(S_WS), S_T2, mi * 256), "st")

    def cs_loads():
        g("v_lshrrev_b32 v%d, 4, v1" % VT2)
        g("v_lshlrev_b32 v%d, 4, v%d" % (VT2, VT2))
        g("v_and_b32 v%d, 3, v1" % VT)
        g("v_lshl_add_u32 v%d, v%d, 9, v%d" % (VT2, VT, VT2))
        g("s_and_b32 s%d, s%d, 3" % (S_T2, S_WAVE))
        g("s_lshl_b32 s%d, s%d, 7" % (S_T2, S_T2))
        g("s_lshl_b32 s%d, s%d, 12" % (S_T3, S_FT))
        g("s_add_u32 s%d, s%d, s%d" % (S_T2, S_T2, S_T3))
        g("s_add_u32 s%d, s%d, %d" % (S_T2, S_T2, WS_PCS))
        for mat in range(2):
            for tt in range(2):
                g.vmem("buffer_load_dwordx4 %s, v%d, %s, s%d offen offset:%d sc1" % (vr(CSR + 4 * (2 * mat + tt), 4), VT2, SRDW(S_WS), S_T2, mat * 2048 + tt * 64), "st")

    def pcs_mfma(it):
        S = SETS[it & 1]
        sk, l1 = g.newlabel("PC"), g.newlabel("PC")
        g("s_cmp_lg_u32 s%d, 0" % S_PC)
        g("s_cbranch_scc1 %s" % sk)
        g("s_cmp_ge_u32 s%d, 4" % S_WAVE)
        g("s_cbranch_scc1 %s" % l1)
        for mat in range(2):
            for tt in range(2):
                g("v_mfma_f32_16x16x32_bf16 %s, %s, %s, %s" % (vr(PD + 4 * tt, 4), vr(S + 16 + 4 * (2 * mat + tt), 4), vr(ONES, 4), "0" if it == 0 else vr(PD + 4 * tt, 4)))
            if mat == 0:
                g("s_branch %s" % sk)
                g.label(l1)
        g.label(sk)

    def pcs_store():
        sk = g.newlabel("PS")
        g("s_cmp_lg_u32 s%d, 0" % S_PC)
        g("s_cbranch_scc1 %s" % sk)
        g("s_lshl_b32 s%d, s%d, 1" % (S_T2, S_FT))
        g("s_lshr_b32 s%d, s%d, 2" % (S_T3, S_WAVE))
        g("s_add_u32 s%d, s%d, s%d" % (S_T2, S_T2, S_T3))
        g("s_lshl_b32 s%d, s%d, 2" % (S_T2, S_T2))
        g("s_lshr_b32 s%d, s%d, 2" % (S_T3, S_MT))
        g("s_add_u32 s%d, s%d, s%d" % (S_T2, S_T2, S_T3))
        g("s_lshl_b32 s%d, s%d, 9" % (S_T2, S_T2))
        g("s_and_b32 s%d, s%d, 3" % (S_T3, S_WAVE))
        g("s_lshl_b32 s%d, s%d, 7" % (S_T3, S_T3))
        g("s_add_u32 s%d, s%d, s%d" % (S_T2, S_T2, S_T3))
        g("s_add_u32 s%d, s%d, %d" % (S_T2, S_T2, WS_PCS))
        g("s_mov_b32 s%d, 0x00010001" % S_EX)
        g("s_mov_b32 s%d, 0x00010001" % (S_EX + 1))
        g("s_mov_b64 exec, s[%d:%d]" % (S_EX, S_EX + 1))
        for tt in range(2):
            g("buffer_store_dwordx4 %s, v1, %s, s%d offen offset:%d sc1" % (vr(PD + 4 * tt, 4), SRDW(S_WS), S_T2, 64 * tt))
        g("s_mov_b64 exec, -1")
        g.label(sk)

    S_PC = 86
    g("s_xor_b32 s%d, s%d, s%d" % (S_PC, S_MT, S_WAVE))
    g("s_and_b32 s%d, s%d, 3" % (S_PC, S_PC))
    g.wait_vm("U0", "lgkmcnt(0)")
    g("s_barrier")
    g.stamp(2)
    for r in frag_reads(0):
        g(r)
    unit(3)
    k_zero(g)

    if OPT["prio"]:
        sk = g.newlabel("PR")
        g("s_cmp_%s_u32 s%d, 4" % ("ge" if OPT["prio"] == 1 else "lt", S_WAVE))
        g("s_cbranch_scc1 %s" % sk)
        g("s_setprio 2")
        g.label(sk)

    def emit_list(lst):
        for x in lst:
            if callable(x):
                x()
            elif isinstance(x, tuple):
                g.vmem(*x)
            else:
                g(x)

    def group(cond_ge4, lst):
        if not lst:
            return
        sk = g.newlabel("GR")
        g("s_cmp_%s_u32 s%d, 4" % ("lt" if cond_ge4 else "ge", S_WAVE))
        g("s_cbranch_scc1 %s" % sk)
        emit_list(lst)
        g.label(sk)
    lgdone = False
    for it in range(16):
        if it == 12:
            flag_check(g, V_NEED, 16, "0:flag2", sfa=S_FA2)
            flag_check(g, V_FL, 32)
        lg = "" if lgdone else "lgkmcnt(0)"
        if it < 15:
            g.wait_vm("U%d" % (it + 1), lg)
        elif lg:
            g("s_waitcnt lgkmcnt(0)")
        g("s_barrier")
        if it in (0, 8, 12, 15):
            g.stamp(41 + it)
        mf = mfmas(it)
        fill = [[] for _ in range(16)]
        pre = [[] for _ in range(16)]
        rd = frag_reads(it + 1) if it < 15 else []
        for i, r in enumerate(rd):
            fill[i // 2 if OPT["rdfirst"] else i].append(r)
        dm = unit_ops(it + 4) if it + 4 < 16 else []
        for p, (a_, b_, t_) in zip([7, 9, 11, 13], dm):
            pre[p].append(a_)
            fill[p].append((b_, t_))
        if it < 4:
            fill[0].append(lambda it=it: pcs_mfma(it))
        if it == 3:
            fill[6].append(pcs_store)
        if it == 4:
            fill[2].append(lambda: nonce_check(g, V_NEED))
        if it == 6:
            fill[1].append(lambda: publish(g, pub_pcs, VT))
        if it % 2 == 0 and it // 2 + 2 < 8:
            for i, x in enumerate(offs_l(it // 2 + 2)):
                fill[i].append(x)
        aonly, both = [], []
        ki = k_idx()
        if it == 0:
            aonly += ki[:30]
        if it == 1:
            aonly += ki[30:]
        if it == 2:
            aonly += k_gather(0)
        if it == 3:
            aonly += k_gather(1) + k_build(0)[:10]
        if it == 4:
            aonly += k_build(0)[10:]
        if it == 5:
            aonly += k_build(1)[:10]
        if it == 6:
            aonly += k_build(1)[10:]
        if it == 9:
            aonly.append(lambda: flag_issue(g, V_NEED, (S_FT, 25), "0:flag2", S_FA2))
            aonly.append(lambda: flag_issue(g, V_FL, (None, 0)))
        if it == 12:
            both += [lambda: u_load(g), stats_loads]
        if it == 13:
            both += [cs_loads]
        if it == 14:
            both += [lambda: u_store(g), lambda: w2_setup(g, V_W2D, V_W2A)]
        if it == 15:
            both += [lambda: w2_dma(g, V_W2D, 0), lambda: w2_dma(g, V_W2D, 1)]
        vm_save = list(g.vm)
        group(True, both)
        g.vm = vm_save
        for i, m in enumerate(mf):
            emit_list(pre[i])
            g(m)
            emit_list(fill[i])
        lgdone = 2 <= it <= 6
        if lgdone:
            g("s_waitcnt lgkmcnt(0)")
        group(False, both + aonly)
    g("s_setprio 0")
    g.stamp(3)
    def epi(dma2):
        g("s_lshr_b32 s%d, s%d, 2" % (S_T2, S_WAVE))
        g("s_lshl_b32 s%d, s%d, 2" % (S_T2, S_T2))
        g("s_lshl_b32 s%d, s%d, 3" % (S_T3, S_MT))
        g("s_add_u32 s%d, s%d, s%d" % (S_T2, S_T2, S_T3))
        g("s_mul_i32 s%d, s%d, 56" % (S_T2, S_T2))
        g("s_lshl_b32 s%d, s%d, 2" % (S_T3, S_FT))
        g("s_add_u32 s%d, s%d, s%d" % (S_T2, S_T2, S_T3))
        g("s_and_b32 s%d, s%d, 3" % (S_T3, S_WAVE))
        g("s_add_u32 s%d, s%d, s%d" % (S_T2, S_T2, S_T3))
        g("s_lshl_b32 s%d, s%d, 10" % (S_T2, S_T2))
        g("s_add_u32 s%d, s%d, %d" % (S_T2, S_T2, WS_H))
        g("v_lshlrev_b32 v12, 4, v1")
        g.wait_vm("st")
        for qp in ("[1,0,3,2]", "[2,3,0,1]"):
            for k in range(16):
                g("v_add_f32_dpp v%d, v%d, v%d quad_perm:%s row_mask:0xf bank_mask:0xf" % (CSR + k, CSR + k, CSR + k, qp))
        E = 16
        for mi in range(4):
            st = STR + 4 * mi
            HO = 32 + 4 * (mi & 1)
            for tt in range(2):
                ag = ACC + 16 * mi + 4 * tt
                au = ACC + 16 * mi + 4 * (2 + tt)
                c1 = CSR + 4 * tt
                c3 = CSR + 4 * (2 + tt)
                for r in range(4):
                    g("v_fma_f32 v%d, -v%d, v%d, v%d" % (ag + r, st, c1 + r, ag + r))
                for r in range(4):
                    g("v_mul_f32 v%d, v%d, v%d" % (E + r, st + 1, ag + r))
                for r in range(4):
                    g("v_exp_f32 v%d, v%d" % (E + r, E + r))
                for r in range(4):
                    g("v_fma_f32 v%d, -v%d, v%d, v%d" % (au + r, st, c3 + r, au + r))
                for r in range(4):
                    g("v_fma_f32 v%d, v%d, v%d, v%d" % (E + r, E + r, st + 2, st + 2))
                for r in range(4):
                    g("v_rcp_f32 v%d, v%d" % (E + r, E + r))
                for r in range(4):
                    g("v_mul_f32 v%d, v%d, v%d" % (ag + r, ag + r, au + r))
                for r in range(4):
                    g("v_mul_f32 v%d, v%d, v%d" % (ag + r, ag + r, E + r))
                g("v_cvt_pk_bf16_f32 v%d, v%d, v%d" % (HO + 2 * tt, ag, ag + 1))
                g("v_cvt_pk_bf16_f32 v%d, v%d, v%d" % (HO + 2 * tt + 1, ag + 2, ag + 3))
            g.vmem("buffer_store_dwordx4 %s, v12, %s, s%d offen sc1" % (vr(HO, 4), SRDW(S_WS), S_T2), "hst")
            if mi < 3:
                g("s_add_u32 s%d, s%d, %d" % (S_T2, S_T2, 56 * 1024))
            if mi == 1 and dma2:
                w2_dma(g, V_W2D, 2)

    epi(True)
    g.stamp(4)
    g("s_branch L_COMMON")
    vm_common = list(g.vm)

    g.label("L_AUX")
    g.vm = list(vm_entry)
    aux(g)
    g.wait_vm_all()

    g.label("L_COMMON")
    g.vm = vm_common
    common(g)
    g.label("L_END")
    g("s_endpgm")
    return g


def aux(g):
    S_RB = S_MT
    g("s_and_b32 s%d, s2, 3" % S_T3)
    g("s_lshl_b32 s%d, s%d, 3" % (S_RB, S_T3))
    g("s_and_b32 s%d, s2, 4" % S_T3)
    g("s_add_u32 s%d, s%d, s%d" % (S_RB, S_RB, S_T3))
    g("s_add_u32 s%d, s%d, s%d" % (S_RB, S_RB, S_T1))
    XR, XF, TT, RED, ONES = 16, 48, 112, 144, 152
    g("v_lshlrev_b32 v%d, 4, v1" % VT)
    g("s_lshl_b32 s%d, s%d, 16" % (S_FT, S_RB))
    g("s_lshl_b32 s%d, s%d, 13" % (S_T1, S_WAVE))
    g("s_add_u32 s%d, s%d, s%d" % (S_FT, S_FT, S_T1))
    g("s_add_u32 s%d, s%d, 4096" % (S_T2, S_FT))
    for i in range(8):
        g.vmem("buffer_load_dwordx4 %s, v%d, %s, s%d offen offset:%d" % (vr(XR + 4 * i, 4), VT, SRDW(S_X), S_T2 if i >= 4 else S_FT, (i & 3) * 1024), "x")
    g("v_mov_b32 v%d, 0x3f803f80" % ONES)
    g("v_and_b32 v3, 7, v1")
    g("v_xor_b32 v3, s%d, v3" % S_WAVE)
    g("v_lshlrev_b32 v3, 4, v3")
    g("v_lshl_add_u32 v3, v1, 10, v3")
    g("v_lshrrev_b32 v4, 4, v1")
    g("v_lshlrev_b32 v4, 5, v4")
    g("s_lshr_b32 s%d, s%d, 6" % (S_T0, S_FT))
    g("s_add_u32 s%d, s%d, %d" % (S_T0, S_T0, WS_STATS))
    g("s_mov_b32 s%d, 0x00010001" % S_EX)
    g("s_mov_b32 s%d, 0x00010001" % (S_EX + 1))
    SM = 36
    MEAN, SO, RI = 154, 156, 164
    g.wait_vm("x")
    g.stamp(30)
    nonce_issue(g, 12)
    for i in range(8):
        g("v_dot2_f32_bf16 v%d, v%d, v%d, 0" % (RED + i, XR + 4 * i, ONES))
    for k in range(1, 4):
        for i in range(8):
            g("v_dot2_f32_bf16 v%d, v%d, v%d, v%d" % (RED + i, XR + 4 * i + k, ONES, RED + i))
    for i in range(8):
        for k in range(4):
            g("v_lshlrev_b32 v%d, 16, v%d" % (XF + 8 * i + 2 * k, XR + 4 * i + k))
            g("v_and_b32 v%d, 0xffff0000, v%d" % (XF + 8 * i + 2 * k + 1, XR + 4 * i + k))
    reduce8(g, RED)
    for i in range(2):
        g("v_mul_f32 v%d, 0x3b000000, v%d" % (MEAN + i, RED + i))
    g("s_nop 0")
    for row in range(8):
        g("v_readlane_b32 s%d, v%d, %d" % (SM + 2 * row, MEAN + (row & 1), 16 * (row >> 1)))
    g("s_nop 1")
    g.stamp(31)
    for k in range(4):
        for i in range(8):
            g("v_pk_add_f32 %s, %s, s[%d:%d] op_sel_hi:[1,0] neg_lo:[0,1] neg_hi:[0,1]" % (vr(TT + 2 * i, 2), vr(XF + 8 * i + 2 * k, 2), SM + 2 * i, SM + 2 * i + 1))
        for i in range(8):
            d, a = TT + 2 * i, XR + 2 * i
            if k == 0:
                g("v_pk_mul_f32 %s, %s, %s" % (vr(a, 2), vr(d, 2), vr(d, 2)))
            else:
                g("v_pk_fma_f32 %s, %s, %s, %s" % (vr(a, 2), vr(d, 2), vr(d, 2), vr(a, 2)))
    for i in range(8):
        g("v_add_f32 v%d, v%d, v%d" % (RED + i, XR + 2 * i, XR + 2 * i + 1))
    reduce8(g, RED)
    for i in range(2):
        o = SO + 4 * i
        g("v_mul_f32 v%d, 0x3b000000, v%d" % (RED + i, RED + i))
        rnd_bf16(g, RED + i, RED + i)
        g("v_add_f32 v%d, 0x3727c5ac, v%d" % (RED + i, RED + i))
        rnd_bf16(g, RED + i, RED + i)
        g("v_sqrt_f32 v%d, v%d" % (RED + i, RED + i))
        g("s_nop 0")
        rnd_bf16(g, RED + i, RED + i)
        g("v_rcp_f32 v%d, v%d" % (RI + i, RED + i))
        rnd_bf16(g, o, MEAN + i)
        g("v_mul_f32 v%d, 0x%x, v%d" % (o + 1, NLOG2E, RI + i))
        g("v_mul_f32 v%d, v%d, v%d" % (o + 2, RED + i, RED + i))
        g("v_mov_b32 v%d, v%d" % (o + 3, RED + i))
    g("s_nop 0")
    for row in range(8):
        g("v_readlane_b32 s%d, v%d, %d" % (SM + 2 * row, SO + 4 * (row & 1), 16 * (row >> 1)))
        g("v_readlane_b32 s%d, v%d, %d" % (SM + 2 * row + 1, RI + (row & 1), 16 * (row >> 1)))
    g("s_mov_b64 exec, s[%d:%d]" % (S_EX, S_EX + 1))
    for i in range(2):
        g.vmem("buffer_store_dwordx4 %s, v4, %s, s%d offen offset:%d sc1" % (vr(SO + 4 * i, 4), SRDW(S_WS), S_T0, 16 * i), "s1")
    g("s_mov_b64 exec, -1")
    g.stamp(32)
    for i in range(8):
        for k in range(4):
            d = XF + 8 * i + 2 * k
            g("v_pk_add_f32 %s, %s, s[%d:%d] op_sel_hi:[1,0] neg_lo:[0,1] neg_hi:[0,1]" % (vr(d, 2), vr(d, 2), SM + 2 * i, SM + 2 * i + 1))
        for k in range(4):
            d = XF + 8 * i + 2 * k
            g("v_pk_mul_f32 %s, %s, s[%d:%d] op_sel:[0,1] op_sel_hi:[1,1]" % (vr(d, 2), vr(d, 2), SM + 2 * i, SM + 2 * i + 1))
    for c in range(8):
        for ip in range(4):
            g("v_cvt_pk_bf16_f32 v%d, v%d, v%d" % (TT + 4 * c + ip, XF + 16 * ip + c, XF + 16 * ip + 8 + c))
        g("ds_write_b128 v3, %s offset:%d" % (vr(TT + 4 * c, 4), c * 128))
    g("v_lshlrev_b32 v3, 4, v1")
    g("v_add_u32 v4, s%d, v3" % S_T1)
    for k in range(8):
        g("v_xor_b32 v%d, %d, v3" % (RED + k, 16 * k))
    g("s_mul_i32 s%d, s%d, %d" % (S_T2, S_RB, XP))
    g("s_add_u32 s%d, s%d, s%d" % (S_T2, S_T2, S_T1))
    g("s_add_u32 s%d, s%d, 4096" % (S_T3, S_T2))
    g("s_waitcnt lgkmcnt(0)")
    g.stamp(33)
    g("s_barrier")
    for k in range(8):
        g("ds_read_b128 %s, v4 offset:%d" % (vr(XF + 4 * k, 4), k * 1024))
    for k in range(8):
        g("s_waitcnt lgkmcnt(%d)" % (7 - k))
        g.vmem("buffer_store_dwordx4 %s, v%d, %s, s%d offen offset:%d sc1" % (vr(XF + 4 * k, 4), RED + k, SRDW(S_WS), S_T3 if k >= 4 else S_T2, (k & 3) * 1024), "s1")
    g.stamp(34)
    nonce_check(g, 12)
    k_addr(g)
    g.wait_vm("s1")
    g("s_barrier")
    publish(g, pub_aux, VT)
    g.stamp(4)
    n = OPT["auxpf"]
    g("s_lshr_b32 s%d, s2, 3" % S_T0)
    g("s_lshl_b32 s%d, s%d, 1" % (S_T0, S_T0))
    g("s_and_b32 s%d, s%d, 1" % (S_T1, S_WAVE))
    g("s_add_u32 s%d, s%d, s%d" % (S_T0, S_T0, S_T1))
    g("s_mul_i32 s%d, s%d, 224" % (S_T0, S_T0))
    g("s_lshr_b32 s%d, s%d, 1" % (S_T1, S_WAVE))
    g("s_add_u32 s%d, s%d, s%d" % (S_T0, S_T0, S_T1))
    g("s_lshl_b32 s%d, s%d, 10" % (S_ROT, S_T0))
    g("s_and_b32 s%d, s2, 7" % S_FT)
    g("v_lshlrev_b32 v5, 4, v1")
    PFR = [80]
    def pf_batch():
        g("s_sub_u32 s%d, s%d, 7" % (S_T1, S_FT))
        g("s_cmp_ge_u32 s%d, 7" % S_FT)
        g("s_cselect_b32 s%d, s%d, s%d" % (S_FT, S_T1, S_FT))
        g("s_lshl_b32 s%d, s%d, 15" % (S_T0, S_FT))
        g("s_add_u32 s%d, s%d, s%d" % (S_T0, S_T0, S_ROT))
        for i in range(8):
            g.vmem("buffer_load_dwordx4 %s, v5, %s, s%d offen" % (vr(PFR[0] + 4 * i, 4), SRDW(S_W2), S_T0), "pf")
            g("s_add_u32 s%d, s%d, 4096" % (S_T0, S_T0))
        g("s_add_u32 s%d, s%d, 1" % (S_FT, S_FT))
    nb = [n]
    def pf():
        if nb[0] > 0:
            pf_batch(); nb[0] -= 1
    PFR[0] = 176
    pf()
    k_chains(g, "A")
    g.stamp(35)
    g.wait_vm("pf")
    PFR[0] = 80
    pf()
    g("s_waitcnt lgkmcnt(0)")
    g("s_barrier")
    k_stage2(g)
    g("s_waitcnt lgkmcnt(0)")
    pf()
    g("s_barrier")
    k_zero(g)
    sk = g.newlabel("AK")
    g("s_cmp_ge_u32 s%d, 4" % S_WAVE)
    g("s_cbranch_scc1 %s" % sk)
    for r in k_idx() + k_gather(0) + k_gather(1):
        g(r)
    g("s_waitcnt lgkmcnt(0)")
    for r in k_build(0) + k_build(1):
        g(r)
    g.label(sk)
    g.stamp(1)
    flag_issue(g, 11, (None, 0))
    while nb[0] > 0:
        pf()
    flag_check(g, 11, 32)
    g("s_waitcnt lgkmcnt(0)")
    g("s_barrier")
    u_load(g)
    w2_setup(g, V_W2D, V_W2A)
    for j in range(3):
        w2_dma(g, V_W2D, j)
    u_store(g)
    g("s_waitcnt lgkmcnt(0)")
    g("s_barrier")


BF, CACC, AF = 16, 80, 112


def conv(g, hook):
    VAA, VBB = 8, 9
    g("v_and_b32 v%d, 15, v1" % VT)
    g("v_lshrrev_b32 v%d, 4, v1" % VT2)
    g("v_lshl_add_u32 v10, v%d, 3, v%d" % (VT2, VT))
    g("s_lshr_b32 s%d, s%d, 2" % (S_T2, S_WAVE))
    g("s_mul_i32 s%d, s%d, 16640" % (S_T3, S_T2))
    g("s_add_u32 s%d, s%d, %d" % (S_T3, S_T3, KC))
    g("s_and_b32 s%d, s%d, 3" % (S_T0, S_WAVE))
    g("s_lshl_b32 s%d, s%d, 5" % (S_T1, S_T0))
    g("s_sub_u32 s%d, %d, s%d" % (S_T1, 2047 + 8 - 32 * 60, S_T1))
    g("v_sub_u32 v10, s%d, v10" % S_T1)
    g("v_and_b32 v11, 3, v10")
    g("v_sub_u32 v10, v10, v11")
    g("v_lshlrev_b32 v10, 1, v10")
    g("v_mul_u32_u24 v11, 4160, v11")
    g("v_add3_u32 v%d, v10, v11, s%d" % (VAA, S_T3))
    g("v_lshlrev_b32 v10, 5, v%d" % VT)
    g("v_lshlrev_b32 v11, 4, v%d" % VT2)
    g("v_sub_u32 v10, v10, v11")
    g("s_mul_i32 s%d, s%d, 4608" % (S_T1, S_T2))
    g("s_lshl_b32 s%d, s%d, 6" % (S_T0, S_T0))
    g("s_sub_u32 s%d, s%d, s%d" % (S_T1, S_T1, S_T0))
    g("s_add_u32 s%d, s%d, %d" % (S_T1, S_T1, UB + 512 - 256 + 16))
    g("v_add_u32 v%d, s%d, v10" % (VBB, S_T1))
    hook(-1, None, None)
    NA = 4
    def rdA(ip):
        d = AF + 4 * (ip % NA)
        return ["ds_read_b64 %s, v%d offset:%d" % (vr(d, 2), VAA, 256 * (15 - ip)),
                "ds_read_b64 %s, v%d offset:%d" % (vr(d + 2, 2), VAA, 256 * (15 - ip) + 8)]
    lq = []
    def lds(s_, tag):
        g(s_); lq.append(tag)
    def lwait(tags):
        last = max([i for i, t in enumerate(lq) if t in tags], default=-1)
        if last < 0:
            return
        n = len(lq) - 1 - last
        g("s_waitcnt lgkmcnt(%d)" % min(n, 15))
        del lq[:last + 1]
        if n > 15:
            del lq[:len(lq) - 15]
    for s_ in rdA(0): lds(s_, "A0")
    for tau in (0, 2, 4, 6, 8, 10, 12, 14):
        lds("ds_read_b128 %s, v%d offset:%d" % (vr(BF + 4 * (tau + 1), 4), VBB, 256 * (tau + 1)), "B%d" % tau)
    for s_ in rdA(1): lds(s_, "A1")
    for tau in (-1, 1, 3, 5, 7, 9, 11, 13):
        lds("ds_read_b128 %s, v%d offset:%d" % (vr(BF + 4 * (tau + 1), 4), VBB, 256 * (tau + 1)), "B%d" % tau)
    for s_ in rdA(2): lds(s_, "A2")
    for ip in range(16):
        first = True
        for j in range(ip >> 1, 8):
            tau = 2 * j - ip
            lwait(["A%d" % ip, "B%d" % tau])
            a = CACC + 4 * j
            g("v_mfma_f32_16x16x32_bf16 %s, %s, %s, %s" % (vr(a, 4), vr(AF + 4 * (ip % NA), 4), vr(BF + 4 * (tau + 1), 4), "0" if ip == 0 else vr(a, 4)))
            if first and ip + 3 < 16:
                for s_ in rdA(ip + 3): lds(s_, "A%d" % (ip + 3))
            first = False
        hook(ip, lq, lwait)


def common(g):
    for p in range(3):
        w2_rd(g, p)
    VFL = 10
    HF = 16
    SMI = 36
    def hook(ip, lq, lwait):
        if ip == -1:
            g("s_waitcnt lgkmcnt(0)")
            for p in range(3, 6):
                w2_dma(g, V_W2D, p)
            g.stamp(5)
        if ip == 2:
            g.wait_vm("hst")
            g("s_barrier")
            sk = g.newlabel("PH")
            g("s_cmp_lt_u32 s2, 32")
            g("s_cbranch_scc1 %s" % sk)
            publish(g, pub_h, VT)
            g.label(sk)
        if ip == 4:
            g("s_mul_i32 s%d, s%d, %d" % (S_M + 4, S_RT, 4 * 56))
            g("s_mul_i32 s%d, s%d, 7" % (S_M + 5, S_WAVE))
            g("s_add_u32 s%d, s%d, s%d" % (S_M + 4, S_M + 4, S_M + 5))
            g("s_lshl_b32 s%d, s%d, 10" % (S_M + 4, S_M + 4))
            g("s_add_u32 s%d, s%d, %d" % (S_M + 4, S_M + 4, WS_H))
            for mi in range(4):
                g("s_add_u32 s%d, s%d, %d" % (SMI + mi, S_NT, mi))
                g("s_and_b32 s%d, s%d, 3" % (SMI + mi, SMI + mi))
                g("s_mul_i32 s%d, s%d, %d" % (SMI + mi, SMI + mi, 56 * 1024))
                g("s_add_u32 s%d, s%d, s%d" % (SMI + mi, SMI + mi, S_M + 4))
            g("s_lshl_b32 s%d, s%d, 12" % (S_KST, S_WAVE))
            g("s_add_u32 s%d, s%d, %d" % (S_KST, S_KST, KC))
            g("s_lshl_b32 s%d, s%d, 16" % (S_M + 3, S_RT))
            g("s_lshl_b32 s%d, s%d, 13" % (S_T1, S_WAVE))
            g("s_add_u32 s%d, s%d, s%d" % (S_M + 3, S_M + 3, S_T1))
            g("s_lshl_b32 s%d, s%d, 7" % (S_T1, S_NT))
            g("s_add_u32 s%d, s%d, s%d" % (S_M + 3, S_M + 3, S_T1))
        if ip == 5:
            w2_rd(g, 3)
            lq.extend(["w2r"] * 8)
        if ip == 7:
            lwait(["w2r"])
            w2_dma(g, V_W2D, 6)
        if ip == OPT["fip"]:
            g("s_lshr_b32 s%d, s%d, 1" % (S_T0, S_RT))
            wflag_issue(g, VFL, (S_T0, 1))
    conv(g, hook)
    g.stamp(6)
    hn = [0]
    def hl(n=1):
        for _ in range(n):
            if hn[0] >= 28:
                return
            mi, j = divmod(hn[0], 7)
            hn[0] += 1
            g("s_add_u32 s%d, s%d, s%d" % (S_M + 5, SMI + mi, S_J + j))
            g.vmem("buffer_load_dwordx4 %s, v11, %s, s%d offen sc1" % (vr(HF + 28 * mi + 4 * j, 4), SRDW(S_WS), S_M + 5), "h%d_%d" % (mi, j))
    for p in (4, 5, 6):
        w2_rd(g, p)
    g("v_lshlrev_b32 v11, 4, v1")
    g("v_and_b32 v%d, 15, v1" % VT)
    g("v_lshrrev_b32 v%d, 4, v1" % VT2)
    g("v_lshl_add_u32 v%d, v%d, 2, v%d" % (VT, VT2, VT))
    g("v_and_b32 v%d, 15, v%d" % (VT, VT))
    g("v_lshl_add_u32 v%d, v%d, 4, v%d" % (VT, VT2, VT))
    g("v_lshl_add_u32 v%d, v%d, 4, s%d" % (VT, VT, S_M + 1))
    g("s_waitcnt lgkmcnt(0)")
    for j in range(8):
        g("ds_write_b128 v%d, %s offset:%d" % (VT, vr(CACC + 4 * j, 4), j * 1024))
    S_HOK = 89
    g.wait_vm("wflag")
    g("v_cmp_ne_u32 vcc, s%d, v%d" % (S_NONCE, VFL))
    g("s_and_b32 s%d, vcc_lo, 0x3fff" % S_HOK)
    g("s_cbranch_scc1 L_HN1")
    vm_s = list(g.vm)
    hl(OPT["h0"])
    g("s_branch L_HN2")
    g.label("L_HN1")
    g("buffer_load_dword v%d, v2, %s, s%d offen sc1" % (VFL, SRDW(S_WS), S_FA2))
    g.label("L_HN2")
    g.vm = vm_s
    hn[0] = 0
    g.stamp(7)
    g("v_lshrrev_b32 v%d, 2, v1" % VT)
    g("v_and_b32 v%d, 3, v1" % VT2)
    g("v_lshl_add_u32 v%d, v%d, 2, v%d" % (VT, VT2, VT))
    g("v_and_b32 v%d, 15, v%d" % (VT, VT))
    g("v_lshl_add_u32 v%d, v%d, 4, v%d" % (VT, VT2, VT))
    g("v_lshl_add_u32 v%d, v%d, 4, s%d" % (VT, VT, S_WK))
    g("v_add_u32 v%d, %d, v%d" % (VT2, 4 * W2P, VT))
    g("v_lshlrev_b32 v12, 3, v0")
    g("v_add_u32 v12, %d, v12" % (UB + 512))
    g("s_waitcnt lgkmcnt(0)")
    g("s_barrier")
    g.stamp(8)
    P = 80
    for ch in range(2):
        for q in range(4):
            g("ds_read_b128 %s, v%d offset:%d" % (vr(P + 16 * ch + 4 * q, 4), (VT, VT2)[ch], q * W2P))
    U = 112
    g("ds_read_b64 %s, v12" % vr(U, 2))
    g("ds_read_b64 %s, v12 offset:4608" % vr(U + 2, 2))
    g("s_lshl_b32 s%d, s%d, 16" % (S_T0, S_DSK))
    g("s_and_b32 s%d, s%d, 0xffff0000" % (S_T1, S_DSK))
    g("v_lshrrev_b32 v%d, 3, v1" % VT2)
    g("v_lshlrev_b32 v%d, 10, v%d" % (VT2, VT2))
    g("v_and_b32 v12, 7, v1")
    g("v_lshl_add_u32 v12, v12, 4, v%d" % VT2)
    g("s_waitcnt lgkmcnt(0)")
    UF = 116
    for ch in range(2):
        b = P + 16 * ch
        for r in range(4):
            g("v_add_f32 v%d, v%d, v%d" % (b + r, b + r, b + 4 + r))
            g("v_add_f32 v%d, v%d, v%d" % (b + 8 + r, b + 8 + r, b + 12 + r))
        for r in range(4):
            g("v_add_f32 v%d, v%d, v%d" % (b + r, b + r, b + 8 + r))
        for k in range(2):
            g("v_lshlrev_b32 v%d, 16, v%d" % (UF + 2 * k, U + 2 * ch + k))
            g("v_and_b32 v%d, 0xffff0000, v%d" % (UF + 2 * k + 1, U + 2 * ch + k))
        for r in range(4):
            g("v_mul_f32 v%d, s%d, v%d" % (UF + r, (S_T0, S_T1)[ch], UF + r))
        for r in range(4):
            g("v_cvt_pk_bf16_f32 v%d, v%d, v%d" % (b + 4 + r, b + r, UF + r))
        for r in range(4):
            g("v_lshlrev_b32 v%d, 16, v%d" % (b + r, b + 4 + r))
            g("v_and_b32 v%d, 0xffff0000, v%d" % (b + 4 + r, b + 4 + r))
        for r in range(4):
            g("v_add_f32 v%d, v%d, v%d" % (b + r, b + r, b + 4 + r))
    AOR = 120
    for r in range(4):
        g("v_cvt_pk_bf16_f32 v%d, v%d, v%d" % (AOR + r, P + r, P + 16 + r))
    g("v_lshlrev_b32 v%d, 4, v0" % VT)
    g("s_mul_i32 s%d, s2, %d" % (S_T0, AOP))
    g("s_add_u32 s%d, s%d, %d" % (S_T0, S_T0, WS_AO))
    g.vmem("buffer_store_dwordx4 %s, v%d, %s, s%d offen sc1" % (vr(AOR, 4), VT, SRDW(S_WS), S_T0), "ao")
    g("s_cmp_lg_u32 s%d, 0" % S_HOK)
    g("s_cbranch_scc1 L_HN3")
    hn[0] = OPT["h0"]
    hl(OPT["h1"])
    g("s_waitcnt vmcnt(%d)" % OPT["h1"])
    g("s_branch L_HN4")
    g.label("L_HN3")
    g("s_waitcnt vmcnt(0)")
    g.label("L_HN4")
    g("s_barrier")
    publish(g, pub_ao, VT)
    g.stamp(9)
    g("s_cmp_eq_u32 s%d, 0" % S_HOK)
    g("s_cbranch_scc1 L_HN5")
    g.vm = []
    wflag_check(g, VFL, 14, tag="none")
    hn[0] = 0
    hl(OPT["h0"] + OPT["h1"])
    g.label("L_HN5")
    RA0, RA1 = 3, VT2
    g("v_and_b32 v125, 15, v1")
    g("v_lshrrev_b32 v126, 4, v1")
    g("v_lshrrev_b32 v%d, 5, v1" % RA0)
    g("v_lshl_add_u32 v%d, v%d, 2, v125" % (RA0, RA0))
    g("v_add_u32 v%d, 8, v%d" % (RA1, RA0))
    g("v_and_b32 v%d, 15, v%d" % (RA0, RA0))
    g("v_and_b32 v%d, 15, v%d" % (RA1, RA1))
    g("v_lshl_add_u32 v%d, v126, 4, v%d" % (RA0, RA0))
    g("v_lshl_add_u32 v%d, v126, 4, v%d" % (RA1, RA1))
    g("v_lshl_add_u32 v%d, v%d, 4, s%d" % (RA0, RA0, S_M + 1))
    g("v_lshl_add_u32 v%d, v%d, 4, s%d" % (RA1, RA1, S_M + 1))
    accs = [128, 16, 44, 72]
    def redw(mi):
        if mi == 3:
            g("s_sub_u32 s%d, s%d, s%d" % (S_T0, S_KST, S_M + 1))
            g("v_add_u32 v%d, s%d, v%d" % (RA0, S_T0, RA0))
            g("v_add_u32 v%d, s%d, v%d" % (RA1, S_T0, RA1))
        for c in range(4):
            g("ds_write_b128 v%d, %s offset:%d" % ((RA0, RA1)[c & 1], vr(accs[mi] + 4 * c, 4), (mi % 3) * 4096 + c * 1024))
    XT, AOT = 32, 36
    VFL = 40
    AOLB = UB
    def ao_load():
        g("v_lshrrev_b32 v4, 4, v0")
        g("v_and_b32 v5, 15, v0")
        g("v_mul_u32_u24 v6, %d, v4" % AOP)
        g("v_lshl_add_u32 v6, v5, 4, v6")
        g("s_mul_i32 s%d, s%d, %d" % (S_T0, S_NT, 32 * AOP))
        g("s_lshl_b32 s%d, s%d, 8" % (S_T1, S_RT))
        g("s_add_u32 s%d, s%d, s%d" % (S_T0, S_T0, S_T1))
        g("s_add_u32 s%d, s%d, %d" % (S_T0, S_T0, WS_AO))
        g.vmem("buffer_load_dwordx4 %s, v6, %s, s%d offen sc1" % (vr(AOT, 4), SRDW(S_WS), S_T0), "aot")
        g("v_mul_u32_u24 v6, 272, v4")
        g("v_lshl_add_u32 v6, v5, 4, v6")
        g("v_add_u32 v6, %d, v6" % AOLB)
    fdone = [False]
    for mi in range(4):
        a0 = accs[mi]
        for j in range(7):
            g.wait_vm("h%d_%d" % (mi, j))
            for c in range(4):
                a = a0 + 4 * c
                g("v_mfma_f32_16x16x32_bf16 %s, %s, %s, %s" % (vr(a, 4), vr(W2F + 16 * j + 4 * c, 4), vr(HF + 28 * mi + 4 * j, 4), "0" if j == 0 else vr(a, 4)))
            if hn[0] == OPT["fa"] and not fdone[0]:
                assert mi >= 1
                wflag_issue(g, VFL, (S_NT, 17))
                g.vmem("buffer_load_dwordx4 %s, v12, %s, s%d offen" % (vr(XT, 4), SRDW(S_X), S_M + 3), "xt")
                fdone[0] = True
            hl(1)
            if 7 * mi + j == OPT["fa"] - 1:
                wflag_check(g, VFL, 32)
                ao_load()
            if j == 2 and mi > 0:
                redw(mi - 1)
    g.stamp(10)
    g("s_lshr_b32 s%d, s%d, 1" % (S_T0, S_WAVE))
    g("s_sub_u32 s%d, s%d, s%d" % (S_T0, S_T0, S_NT))
    g("s_and_b32 s%d, s%d, 3" % (S_T0, S_T0))
    g("s_lshl_b32 s%d, s%d, 12" % (S_T1, S_T0))
    g("s_mov_b32 s%d, %d" % (S_T2, W2P))
    g("s_cmp_eq_u32 s%d, 3" % S_T0)
    g("s_cmov_b32 s%d, %d" % (S_T1, KC))
    g("s_cmov_b32 s%d, 4096" % S_T2)
    g("v_lshrrev_b32 v7, 3, v1")
    g("s_and_b32 s%d, s%d, 1" % (S_T0, S_WAVE))
    g("s_lshl_b32 s%d, s%d, 3" % (S_T0, S_T0))
    g("v_add_u32 v8, s%d, v7" % S_T0)
    g("v_and_b32 v9, 3, v1")
    g("v_lshl_add_u32 v8, v9, 2, v8")
    g("v_and_b32 v8, 15, v8")
    g("v_and_b32 v9, 1, v1")
    g("v_lshl_add_u32 v8, v9, 5, v8")
    g("v_lshlrev_b32 v8, 4, v8")
    g("v_bfe_u32 v9, v1, 1, 2")
    g("v_lshl_add_u32 v8, v9, 10, v8")
    RD = 60
    g("v_add_u32 v%d, s%d, v8" % (RD, S_T1))
    redw(3)
    for w in range(1, 8):
        g("v_add_u32 v%d, s%d, v%d" % (RD + w, S_T2, RD + w - 1))
    g("v_and_b32 v9, 7, v1")
    g("v_mul_u32_u24 v11, 1088, v9")
    g("v_lshl_add_u32 v11, v7, 2, v11")
    g("s_lshl_b32 s%d, s%d, 5" % (S_T0, S_WAVE))
    g("s_add_u32 s%d, s%d, %d" % (S_T0, S_T0, AOLB))
    g("v_add_u32 v11, s%d, v11" % S_T0)
    g.wait_vm(["xt", "aot"])
    g("ds_write_b128 v6, %s" % vr(AOT, 4))
    g("s_waitcnt lgkmcnt(0)")
    g("s_barrier")
    g.stamp(11)
    R = 144
    for w in range(8):
        for hh in range(2):
            g("ds_read_b128 %s, v%d offset:%d" % (vr(R + 8 * w + 4 * hh, 4), RD + w, hh * 256))
    for j in range(4):
        g("ds_read_b32 v%d, v11 offset:%d" % (AOT + j, 272 * j))
    T = 88
    for k in range(4):
        g("v_lshlrev_b32 v%d, 16, v%d" % (T + 2 * k, XT + k))
        g("v_and_b32 v%d, 0xffff0000, v%d" % (T + 2 * k + 1, XT + k))
    g("s_waitcnt lgkmcnt(0)")
    for step in (32, 16, 8):
        for b in range(0, step, 8):
            for r in range(8):
                g("v_add_f32 v%d, v%d, v%d" % (R + b + r, R + b + r, R + b + step + r))
    for k in range(4):
        g("v_lshlrev_b32 v%d, 16, v%d" % (T + 8 + 2 * k, AOT + k))
        g("v_and_b32 v%d, 0xffff0000, v%d" % (T + 8 + 2 * k + 1, AOT + k))
    for r in range(8):
        g("v_add_f32 v%d, v%d, v%d" % (T + r, T + r, T + 8 + r))
    for r in range(8):
        g("v_cvt_pk_bf16_f32 v%d, v%d, v%d" % (T + 8 + r, T + r, R + r))
    for r in range(8):
        g("v_lshlrev_b32 v%d, 16, v%d" % (T + r, T + 8 + r))
        g("v_and_b32 v%d, 0xffff0000, v%d" % (T + 8 + r, T + 8 + r))
    for r in range(8):
        g("v_add_f32 v%d, v%d, v%d" % (T + r, T + r, T + 8 + r))
    for k in range(4):
        g("v_cvt_pk_bf16_f32 v%d, v%d, v%d" % (R + k, T + 2 * k, T + 2 * k + 1))
    g("buffer_store_dwordx4 %s, v12, %s, s%d offen" % (vr(R, 4), SRDW(S_OUT), S_M + 3))
    if OPT["dbgtime"]:
        sk = w0(g)
        g("s_and_b32 s%d, s2, 63" % S_T0)
        g("s_cmp_lg_u32 s%d, 40" % S_T0)
        g("s_cbranch_scc1 %s" % sk)
        g("s_memtime s[94:95]")
        g("s_memrealtime s[96:97]")
        g("s_waitcnt lgkmcnt(0)")
        g("s_sub_u32 s94, s94, s98")
        g("v_mov_b32 v20, s94")
        g("v_mov_b32 v21, s100")
        g("v_mov_b32 v22, s96")
        g("s_lshr_b32 s%d, s2, 6" % S_T0)
        g("s_mul_i32 s%d, s%d, 12" % (S_T0, S_T0))
        g("s_add_u32 s%d, s%d, 4" % (S_T0, S_T0))
        g("s_mov_b64 exec, 1")
        g("buffer_store_dwordx3 v[20:22], off, %s, s%d" % (SRDW(S_DBG), S_T0))
        g.label(sk)
    if g.ts:
        g.stamp(12)
        g.stamp(13)
        g("s_memrealtime s[98:99]")
        g("s_waitcnt lgkmcnt(0)")
        g("v_writelane_b32 v%d, s98, 14" % g.VTS)
        g("s_lshl_b32 s%d, s2, 11" % S_T0)
        g("s_lshl_b32 s%d, s%d, 8" % (S_T1, S_WAVE))
        g("s_add_u32 s%d, s%d, s%d" % (S_T0, S_T0, S_T1))
        g("s_add_u32 s%d, s%d, %d" % (S_T0, S_T0, WS_TS))
        g("buffer_store_dword v%d, v2, %s, s%d offen" % (g.VTS, SRDW(S_WS), S_T0))


HEADER = open("parallel_sum__ssm_conv_s4d__glu_gated_swiglu__prompt.s.ref").read().split("; Override launch")[0]


def emit(ts=False):
    g = gen(ts)
    body = "\n".join(g.L)
    return HEADER + """; @launch grid=(256,1,1) block=(512,1,1) lds=163840
.amdgcn_target "amdgcn-amd-amdhsa--gfx950"
.text
.globl %s
.p2align 8
.type %s,@function
%s:
%s
.fill 3072, 4, 0xBF800000
.section .rodata,"a"
.p2align 6
.amdhsa_kernel %s
  .amdhsa_next_free_vgpr 256
  .amdhsa_next_free_sgpr 102
  .amdhsa_accum_offset 256
  .amdhsa_group_segment_fixed_size 0
  .amdhsa_kernarg_size 112
  .amdhsa_user_sgpr_count 2
  .amdhsa_user_sgpr_kernarg_segment_ptr 1
  .amdhsa_system_sgpr_workgroup_id_x 1
.end_amdhsa_kernel
""" % (KNAME, KNAME, KNAME, body, KNAME)


if __name__ == "__main__":
    ts = "--ts" in sys.argv
    for a in sys.argv[1:]:
        if a.startswith("--") and "=" in a:
            k, v = a[2:].split("=")
            OPT[k] = int(v)
    out = [a for a in sys.argv[1:] if not a.startswith("--")]
    path = out[0] if out else "k.s"
    open(path, "w").write(emit(ts))
    print("wrote", path)
```

```python
import sys, struct

KNAME = "parallel_sum__ssm_conv_s4d__glu_gated_swiglu__prompt_kernel"

WS_XNT = 0
XP = 65536 + 256
WS_STATS = 3 << 20
WS_CS = WS_STATS + 32768
WS_FLG = WS_STATS + 65536
FP = 384
WS_PCS = WS_STATS + 131072
WS_H = 4 << 20
WS_AO = 12 << 20
AOP = 8192 + 128
WS_TS = 15 << 20
WS_SIZE = 16 << 20

KV_PITCH = 3072
KV_BIAS = 0x3F7F
KV_ZERO = 0x4500 - KV_BIAS + 1
KV_DUMP = KV_ZERO + 1

LOG2E = 0x3FB8AA3B
NLOG2E = 0xBFB8AA3B
INV2PI = 0x3E22F983

XBASE, WBASE = 0, 49152
KC = 114688
UB = KC + 33280
KVT = UB + 9216
TP = 272
TUNIT = 57 * TP
W2P = 14336
AOL = 131072

OPT = dict(auxpf=0, dbgtime=0)


class Gen:
    def __init__(self, ts=False):
        self.L = []
        self.vm = []
        self.ts = ts
        self.lbl = 0

    def __call__(self, s):
        self.L.append("    " + s)

    def label(self, l):
        self.L.append(l + ":")

    def newlabel(self, p="L"):
        self.lbl += 1
        return "%s_%d" % (p, self.lbl)

    def vmem(self, s, tag):
        self(s)
        self.vm.append(tag)

    def wait_vm(self, tags, extra=""):
        if isinstance(tags, str):
            tags = [tags]
        last = -1
        for i, t in enumerate(self.vm):
            if t in tags:
                last = i
        if last < 0:
            if extra:
                self("s_waitcnt " + extra)
            return
        w0 = any(t.startswith("0:") for t in tags)
        n = len([t for t in self.vm[last + 1:] if w0 or not t.startswith("0:")])
        assert n <= 63, n
        self("s_waitcnt vmcnt(%d) %s" % (n, extra))
        if w0:
            self.vm = [t for i, t in enumerate(self.vm) if i > last or not t.startswith("0:")]
        else:
            self.vm = self.vm[last + 1:]

    def wait_vm_all(self, extra=""):
        self("s_waitcnt vmcnt(0) %s" % extra)
        self.vm = []

    def stamp(self, idx):
        if not self.ts:
            return
        self("s_memtime s[98:99]")
        self("s_waitcnt lgkmcnt(0)")
        self("v_writelane_b32 v%d, s98, %d" % (self.VTS, idx))


def vr(a, n=1):
    return "v%d" % a if n == 1 else "v[%d:%d]" % (a, a + n - 1)


def fimm(k):
    if k == 0:
        return "0"
    if k in (1, 2, 4):
        return "%d.0" % k
    return "0x%08x" % struct.unpack("<I", struct.pack("<f", float(k)))[0]


S_X, S_W1, S_W3, S_W2, S_OUT, S_DBG, S_WS = 4, 8, 12, 16, 20, 24, 28
S_WAVE, S_MT, S_FT, S_ROT = 32, 33, 34, 35
S_WOFF = 36
S_XOFF = 44
S_J = 44
S_WK = 52
S_T0, S_T1, S_T2, S_T3 = 53, 54, 55, 56
S_RT, S_NT = 57, 58
S_LDT = 59
S_EX = 60
S_CNT = 62
S_DSK = 63
P_LAR, P_AIM, P_CR, P_CI, P_LDT, P_DSK = 66, 68, 70, 72, 74, 76
S_M = 92
VT, VT2 = 13, 14
W2F = 144
SRDW = lambda s: "s[%d:%d]" % (s, s + 3)


def srd(g, d, p, nbytes):
    g("s_mov_b32 s%d, s%d" % (d, p))
    g("s_mov_b32 s%d, s%d" % (d + 1, p + 1))
    g("s_mov_b32 s%d, 0x%x" % (d + 2, nbytes))
    g("s_mov_b32 s%d, 0x00020000" % (d + 3))


S_NONCE = 90
S_FA2 = 87


def w0(g):
    sk = g.newlabel("W0")
    g("s_cmp_lg_u32 s%d, 0" % S_WAVE)
    g("s_cbranch_scc1 %s" % sk)
    return sk


def nonce_write(g):
    sk = g.newlabel("NW")
    g("s_or_b32 s%d, s2, s%d" % (S_CNT, S_WAVE))
    g("s_cmp_lg_u32 s%d, 0" % S_CNT)
    g("s_cbranch_scc1 %s" % sk)
    g("s_memrealtime s[96:97]")
    g("s_waitcnt lgkmcnt(0)")
    g("s_or_b32 s%d, s96, 1" % S_CNT)
    g("v_mov_b32 v%d, s%d" % (VT2, S_CNT))
    g("s_mov_b64 exec, 1")
    g("buffer_store_dword v%d, v2, %s, 0 offen sc1" % (VT2, SRDW(S_DBG)))
    g("s_mov_b64 exec, -1")
    g.label(sk)


def nonce_issue(g, vf):
    sk = w0(g)
    g.vmem("buffer_load_dword v%d, off, %s, 0 sc1" % (vf, SRDW(S_DBG)), "0:nonce")
    g.label(sk)


def nonce_check(g, vf):
    sk = w0(g)
    lp = g.newlabel("NP")
    g.wait_vm("0:nonce")
    g("s_mov_b32 s%d, 0" % S_CNT)
    g.label(lp)
    g("v_readfirstlane_b32 s%d, v%d" % (S_NONCE, vf))
    g("s_add_u32 s%d, s%d, 1" % (S_CNT, S_CNT))
    g("s_nop 2")
    g("s_cmp_lg_u32 s%d, 0" % S_NONCE)
    g("s_cbranch_scc1 %s" % sk)
    g("s_cmp_ge_u32 s%d, 0x4000" % S_CNT)
    g("s_cbranch_scc1 %s" % sk)
    g("s_sleep 8")
    g("buffer_load_dword v%d, off, %s, 0 sc1" % (vf, SRDW(S_DBG)))
    g("s_waitcnt vmcnt(0)")
    g("s_branch %s" % lp)
    g.label(sk)


def flag_issue(g, vf, line, tag="0:flag", S_FA=91):
    sk = w0(g)
    sg, c = line
    if sg is None:
        g("s_mov_b32 s%d, %d" % (S_FA, WS_FLG + c * FP))
    else:
        g("s_mul_i32 s%d, s%d, %d" % (S_FA, sg, FP))
        g("s_add_u32 s%d, s%d, %d" % (S_FA, S_FA, WS_FLG + c * FP))
    g.vmem("buffer_load_dword v%d, v2, %s, s%d offen sc1" % (vf, SRDW(S_WS), S_FA), tag)
    g.label(sk)


def flag_check(g, vf, count, tag="0:flag", body=None, sfa=91):
    S_FA = sfa
    lp = g.newlabel("POLL")
    ok = g.newlabel("POLLK")
    done = w0(g)
    g.wait_vm(tag)
    g("s_mov_b32 s%d, 0" % S_CNT)
    g.label(lp)
    g("v_cmp_ne_u32 vcc, s%d, v%d" % (S_NONCE, vf))
    g("s_add_u32 s%d, s%d, 1" % (S_CNT, S_CNT))
    g("s_and_b32 s%d, vcc_lo, 0x%x" % (S_EX, (1 << count) - 1))
    g("s_cbranch_scc0 %s" % ok)
    g("s_cmp_ge_u32 s%d, 0x4000" % S_CNT)
    g("s_cbranch_scc1 %s" % ok)
    g("s_sleep 4")
    g("buffer_load_dword v%d, v2, %s, s%d offen sc1" % (vf, SRDW(S_WS), S_FA))
    g("s_waitcnt vmcnt(0)")
    g("s_branch %s" % lp)
    g.label(ok)
    if body:
        body()
    g.label(done)


def publish(g, addr_code, vtmp):
    sk = w0(g)
    addr_code(g)
    g("v_mov_b32 v%d, s%d" % (vtmp, S_NONCE))
    g("s_mov_b64 exec, 1")
    g("buffer_store_dword v%d, off, %s, s%d sc1" % (vtmp, SRDW(S_WS), S_CNT))
    g("s_mov_b64 exec, -1")
    g.label(sk)


def pub_aux(g):
    g("s_lshl_b32 s%d, s2, 2" % S_CNT)
    g("s_add_u32 s%d, s%d, %d" % (S_CNT, S_CNT, WS_FLG))


def pub_h(g):
    g("s_mul_i32 s%d, s%d, %d" % (S_CNT, S_MT, FP))
    g("s_lshl_b32 s%d, s%d, 2" % (S_EX, S_FT))
    g("s_add_u32 s%d, s%d, s%d" % (S_CNT, S_CNT, S_EX))
    g("s_add_u32 s%d, s%d, %d" % (S_CNT, S_CNT, WS_FLG + FP))


def pub_ao(g):
    g("s_mul_i32 s%d, s%d, %d" % (S_CNT, S_NT, FP))
    g("s_and_b32 s%d, s2, 31" % S_EX)
    g("s_lshl_b32 s%d, s%d, 2" % (S_EX, S_EX))
    g("s_add_u32 s%d, s%d, s%d" % (S_CNT, S_CNT, S_EX))
    g("s_add_u32 s%d, s%d, %d" % (S_CNT, S_CNT, WS_FLG + 17 * FP))


def rnd_bf16(g, d, s):
    g("v_cvt_pk_bf16_f32 v%d, v%d, v%d" % (d, s, s))
    g("v_lshlrev_b32 v%d, 16, v%d" % (d, d))


def cmul1(d, a, b):
    return "v_pk_mul_f32 %s, %s, %s op_sel:[0,0] op_sel_hi:[0,1]" % (vr(d, 2), vr(a, 2), vr(b, 2))


def cmul2(d, a, b):
    return "v_pk_fma_f32 %s, %s, %s, %s op_sel:[1,1,0] op_sel_hi:[1,0,1] neg_lo:[0,1,0]" % (vr(d, 2), vr(a, 2), vr(b, 2), vr(d, 2))


def aux_need(g, vn, bits):
    g("v_mov_b32 v%d, 0x%08x" % (vn, bits * 0x01010101))
    g("v_cmp_gt_u32 vcc, 8, v1")
    g("s_nop 1")
    g("v_cndmask_b32 v%d, 0, v%d, vcc" % (vn, vn))


ROWS = {}
for _g in range(4):
    for _r in range(4):
        ROWS[(0, 4 * _g + _r)] = 4 * (_g & 1) + 128 * (_g >> 1) + _r
        ROWS[(1, 4 * _g + _r)] = (256 + 128 * (_g & 1) + 2 * _r) if _g < 2 else (512 + 4 * (_g & 1) + 128 * _r)
        ROWS[(2, 4 * _g + _r)] = 1024 + 512 * _g + 128 * _r
POS2ROW = {p: 16 + 16 * t + m for (t, m), p in ROWS.items() if p <= 2048}
assert len(POS2ROW) == 41 and max(POS2ROW.values()) == 56

PRM = 240


K_WR, K_R0, K_R1, K_A0, K_A1, K_OA, K_IX, K_CP, K_ZE = 208, 209, 210, 211, 212, 213, 217, 228, 229
K_DA = 232
S_KH, S_KL = 84, 85
UNITS = [KC, KC + TUNIT, XBASE + 2 * 16384, WBASE + 3 * 16384]
assert KC + 2 * TUNIT <= KVT and KVT + 6144 <= 163840


def k_addr(g):
    g("s_lshr_b32 s%d, s%d, 1" % (S_T0, S_WAVE))
    g("s_mov_b32 s%d, %d" % (S_T1, UNITS[0]))
    for u in range(1, 4):
        g("s_cmp_eq_u32 s%d, %d" % (S_T0, u))
        g("s_cmov_b32 s%d, %d" % (S_T1, UNITS[u]))
    g("v_add_u32 v%d, s%d, v2" % (K_WR, S_T1))
    g("s_and_b32 s%d, s%d, 1" % (S_T0, S_T0))
    g("s_lshl_b32 s%d, s%d, 4" % (S_T0, S_T0))
    g("s_sub_u32 s%d, 16, s%d" % (S_KH, S_T0))
    g("s_lshr_b32 s%d, s%d, 2" % (S_T2, S_WAVE))
    g("s_lshl_b32 s%d, s%d, 4" % (S_T0, S_T2))
    g("s_sub_u32 s%d, 16, s%d" % (S_KL, S_T0))
    g("v_and_b32 v%d, 15, v1" % VT)
    g("v_lshrrev_b32 v%d, 4, v1" % VT2)
    g("v_mul_u32_u24 v%d, %d, v%d" % (K_R0, TP, VT))
    g("v_lshl_add_u32 v%d, v%d, 4, v%d" % (K_R0, VT2, K_R0))
    g("s_cmp_eq_u32 s%d, 0" % S_T2)
    g("s_mov_b32 s%d, %d" % (S_T0, UNITS[2]))
    g("s_cmov_b32 s%d, %d" % (S_T0, UNITS[0]))
    g("s_mov_b32 s%d, %d" % (S_T1, UNITS[3]))
    g("s_cmov_b32 s%d, %d" % (S_T1, UNITS[1]))
    g("v_add_u32 v%d, s%d, v%d" % (K_R1, S_T1, K_R0))
    g("v_add_u32 v%d, s%d, v%d" % (K_R0, S_T0, K_R0))
    g("s_and_b32 s%d, s%d, 3" % (S_T3, S_WAVE))
    g("s_mul_i32 s%d, s%d, %d" % (S_T0, S_T3, 16 * TP))
    g("v_add_u32 v%d, s%d, v%d" % (K_A0, S_T0, K_R0))
    g("v_add_u32 v%d, s%d, v%d" % (K_A1, S_T0, K_R1))
    tabs = [(0, 256, 1024, 4096), (128, 512, 2048, 4096), (4, 128, 512, 0), (4, 4, 512, 0), (1, 2, 128, 0), (1, 128, 128, 0)]
    SB = 92
    for i, t in enumerate(tabs):
        g("s_mov_b32 s%d, %d" % (SB + i, t[0]))
    for tt in (1, 2, 3):
        g("s_cmp_eq_u32 s%d, %d" % (S_T3, tt))
        for i, t in enumerate(tabs):
            g("s_cmov_b32 s%d, %d" % (SB + i, t[tt]))
    g("v_cmp_le_u32 vcc, 32, v1")
    for i in range(3):
        g("v_mov_b32 v%d, s%d" % (24 + i, SB + 2 * i))
        g("v_mov_b32 v%d, s%d" % (27 + i, SB + 2 * i + 1))
    for i in range(3):
        g("v_cndmask_b32 v%d, v%d, v%d, vcc" % (24 + i, 24 + i, 27 + i))
    g("v_and_b32 v27, 1, v%d" % VT2)
    g("v_mad_u32_u24 v24, v27, v25, v24")
    g("v_lshl_add_u32 v24, v%d, 3, v24" % VT)
    g("s_mul_i32 s%d, s%d, %d" % (S_T1, S_T2, KV_PITCH))
    g("s_add_u32 s%d, s%d, %d" % (S_T1, S_T1, KVT - 2 * KV_BIAS))
    g("v_mov_b32 v28, %d" % (KV_BIAS + KV_DUMP))
    for r in range(4):
        o = K_OA + r
        g("v_cvt_f32_u32 v%d, v24" % o)
        g("v_cmp_lt_u32 vcc, 2048, v24")
        g("v_lshrrev_b32 v%d, 16, v%d" % (o, o))
        g("v_max_u32 v%d, %d, v%d" % (o, KV_BIAS, o))
        g("v_cndmask_b32 v%d, v%d, v28, vcc" % (o, o))
        g("v_lshl_add_u32 v%d, v%d, 1, s%d" % (o, o, S_T1))
        if r < 3:
            g("v_add_u32 v24, v24, v26")
    g("s_add_u32 s%d, s%d, %d" % (S_T0, S_T1, 2 * (KV_BIAS + KV_ZERO)))
    g("v_mov_b32 v%d, s%d" % (K_ZE, S_T0))
    g("v_and_b32 v%d, 255, v0" % VT)
    g("v_lshlrev_b32 v%d, 3, v%d" % (VT2, VT))
    g("v_sub_u32 v%d, 2047, v%d" % (VT2, VT2))
    g("v_cvt_f32_i32 v%d, v%d" % (VT2, VT2))
    g("v_mov_b32 v24, %d" % KV_BIAS)
    g("v_mov_b32 v25, %d" % (KV_BIAS + KV_ZERO))
    for k in range(0, 12, 2):
        g("v_subrev_f32 v26, %s, v%d" % (fimm(k), VT2))
        g("v_subrev_f32 v27, %s, v%d" % (fimm(k + 1), VT2))
        g("v_cvt_pk_bf16_f32 v26, v26, v27")
        g("v_and_b32 v%d, 0xffff, v26" % (K_IX + k))
        if k < 10:
            g("v_lshrrev_b32 v%d, 16, v26" % (K_IX + k + 1))
    for k in range(11):
        g("v_med3_u32 v%d, v%d, v24, v25" % (K_IX + k, K_IX + k))
        g("v_lshl_add_u32 v%d, v%d, 1, s%d" % (K_IX + k, K_IX + k, S_T1))
    g("s_mul_i32 s%d, s%d, 16640" % (S_T1, S_T2))
    g("s_add_u32 s%d, s%d, %d" % (S_T1, S_T1, KC))
    g("v_lshl_add_u32 v%d, v%d, 4, s%d" % (K_CP, VT, S_T1))


def k_chains(g, sfx):
    Q = 16
    LAR, AIM, CR, CI = Q, Q + 1, Q + 2, Q + 3
    DT, ER, TU = Q + 4, Q + 5, Q + 6
    TA, TB = Q, Q + 1
    VWR = K_WR
    g("s_lshl_b32 s%d, s%d, s%d" % (S_T2, S_LDT, S_KL))
    g("s_and_b32 s%d, s%d, 0xffff0000" % (S_T2, S_T2))
    for k in range(4):
        g("v_lshlrev_b32 v%d, s%d, v%d" % (Q + k, S_KH, PRM + k))
    for k in range(4):
        g("v_and_b32 v%d, 0xffff0000, v%d" % (Q + k, Q + k))
    g("v_mov_b32 v%d, 0x%x" % (DT, LOG2E))
    g("v_mul_f32 v%d, s%d, v%d" % (DT, S_T2, DT))
    g("v_mul_f32 v%d, 0x%x, v%d" % (ER, LOG2E, LAR))
    g("v_exp_f32 v%d, v%d" % (DT, DT))
    g("v_exp_f32 v%d, v%d" % (ER, ER))
    g("s_nop 0")
    rnd_bf16(g, DT, DT)
    rnd_bf16(g, ER, ER)
    g("v_mul_f32 v%d, v%d, v%d" % (ER, ER, DT))
    g("v_mul_f32 v%d, v%d, v%d" % (TU, AIM, DT))
    g("v_mul_f32 v%d, 0x%x, v%d" % (ER, NLOG2E, ER))
    g("v_mul_f32 v%d, 0x%x, v%d" % (TU, INV2PI, TU))

    def direct(d, p, conj=False, t0=TA, t1=TB):
        g("v_mul_f32 v%d, %s, v%d" % (t0, fimm(p), ER))
        g("v_mul_f32 v%d, %s, v%d" % (t1, fimm(p), TU))
        g("v_exp_f32 v%d, v%d" % (t0, t0))
        g("v_fract_f32 v%d, v%d" % (t1, t1))
        g("v_cos_f32 v%d, v%d" % (d, t1))
        g("v_sin_f32 v%d, v%d" % (d + 1, t1))
        g("s_nop 0")
        g("v_mul_f32 v%d, v%d, v%d" % (d, d, t0))
        g("v_mul_f32 v%d, %sv%d, v%d" % (d + 1, "-" if conj else "", d + 1, t0))

    def run(chains, tmp0):
        streams = []
        ti = [0]
        for ci, c in enumerate(chains):
            s = []
            for op in c:
                if op[0] == "mul":
                    s.append(cmul1(*op[1:]))
                    s.append(cmul2(*op[1:]))
                else:
                    t = tmp0 + 2 * ci + (ti[0] & 1)
                    ti[0] += 1
                    s.append("v_cvt_pk_bf16_f32 v%d, v%d, v%d" % (t, op[2], op[2] + 1))
                    s.append("ds_write_b32 v%d, v%d offset:%d" % (VWR, t, op[1] * TP))
            streams.append(s)
        while any(streams):
            for s in streams:
                if s:
                    g(s.pop(0))

    g("s_bitcmp1_b32 s%d, 0" % S_WAVE)
    g("s_cbranch_scc1 L_KB" + sfx)
    E = {}
    nxt = [Q + 8]
    def al(n):
        E[n] = nxt[0]; nxt[0] += 2
        return E[n]
    GA, GB = al("ga"), al("gb")
    g("v_add_f32 v%d, v%d, v%d" % (DT, DT, DT))
    g("v_mul_f32 v%d, v%d, v%d" % (GA, CR, DT))
    g("v_mul_f32 v%d, -v%d, v%d" % (GA + 1, CI, DT))
    direct(al(8), 8, True); direct(al(1), 1); direct(al(128), 128)
    direct(al(64), 64, True)
    GC, GD = al("gc"), al("gd")
    for p in range(2, 8):
        al(p)
    PA, PB = al("pa"), al("pb")
    T0 = nxt[0]
    c1, cur, nx = [], GA, GB
    c2 = [("mul", GC, GA, E[64])]
    for b in range(8):
        c1.append(("put", b, cur))
        if b < 7:
            c1.append(("mul", nx, cur, E[8])); cur, nx = nx, cur
    cur, nx = GC, GD
    for b in range(8, 16):
        c2.append(("put", b, cur))
        if b < 15:
            c2.append(("mul", nx, cur, E[8])); cur, nx = nx, cur
    c3 = [("put", POS2ROW[1], E[1]), ("put", POS2ROW[128], E[128])]
    for p in range(2, 8):
        c3.append(("mul", E[p], E[p - 1], E[1]))
        c3.append(("put", POS2ROW[p], E[p]))
    c4 = []
    g("v_mov_b32 v%d, 0x00003f80" % TA)
    g("ds_write_b32 v%d, v%d offset:%d" % (VWR, TA, POS2ROW[0] * TP))
    run([c2, c1, c3], T0)
    ca, cb = [], []
    for p in range(1, 8):
        (ca if p & 1 else cb).extend([("mul", PA if p & 1 else PB, E[p], E[128]), ("put", POS2ROW[128 + p], PA if p & 1 else PB)])
    run([ca, cb], T0)
    g("s_branch L_KJ" + sfx)
    g.label("L_KB" + sfx)
    E = {}
    nxt = [Q + 8]
    direct(al(2), 2); direct(al(128), 128); direct(al(1024), 1024)
    al(4); al(6)
    for h in list(range(2, 8)) + list(range(9, 17)):
        al(128 * h)
    PA, PB = al("pa"), al("pb")
    T0 = nxt[0]
    assert T0 + 8 <= 128
    c1 = []
    for h in range(2, 8):
        c1.append(("mul", E[128 * h], E[128 * (h - 1)], E[128])); c1.append(("put", POS2ROW[128 * h], E[128 * h]))
    c2 = [("put", POS2ROW[1024], E[1024])]
    for h in range(9, 17):
        c2.append(("mul", E[128 * h], E[128 * (h - 1)], E[128])); c2.append(("put", POS2ROW[128 * h], E[128 * h]))
    c3 = [("mul", E[4], E[2], E[2]), ("mul", E[6], E[4], E[2])]
    run([c1, c2, c3], T0)
    prods = [p for p in sorted(POS2ROW) if p >= 256 and (p & 127)]
    ca, cb = [], []
    for i, p in enumerate(prods):
        d = (PA, PB)[i & 1]
        (ca, cb)[i & 1].extend([("mul", d, E[p & 127], E[p & ~127]), ("put", POS2ROW[p], d)])
    run([ca, cb], T0)
    g.label("L_KJ" + sfx)


K_FB, K_FA = 144, 176


def k_reads():
    r = []
    for hf in range(2):
        for ks in range(4):
            r.append("ds_read_b128 %s, v%d offset:%d" % (vr(K_FB + 16 * hf + 4 * ks, 4), (K_R0, K_R1)[hf], 64 * ks))
            r.append("ds_read_b128 %s, v%d offset:%d" % (vr(K_FA + 16 * hf + 4 * ks, 4), (K_A0, K_A1)[hf], 16 * TP + 64 * ks))
    return r


def k_mfmas():
    return ["v_mfma_f32_16x16x32_bf16 %s, %s, %s, %s" % (vr(K_DA, 4), vr(K_FA + 4 * i, 4), vr(K_FB + 4 * i, 4), "0" if i == 0 else vr(K_DA, 4)) for i in range(8)]


def k_table():
    r = ["v_mov_b32 v%d, 0" % VT]
    for k in range(4):
        r.append("v_cvt_pk_bf16_f32 v%d, v%d, v%d" % (K_DA + 4 + k, K_DA + k, K_DA + k))
    for k in range(4):
        r.append("ds_write_b16 v%d, v%d" % (K_OA + k, K_DA + 4 + k))
    r.append("ds_write_b16 v%d, v%d" % (K_ZE, VT))
    return r


def k_stage2(g):
    sk = g.newlabel("KS")
    g("v_mov_b32 v%d, 0" % VT)
    g("ds_write_b16 v%d, v%d" % (K_ZE, VT))
    g("s_and_b32 s%d, s%d, 3" % (S_T0, S_WAVE))
    g("s_cmp_eq_u32 s%d, 3" % S_T0)
    g("s_cbranch_scc1 %s" % sk)
    for r in k_reads():
        g(r)
    for i, m in enumerate(k_mfmas()):
        g("s_waitcnt lgkmcnt(%d)" % (14 - 2 * i))
        g(m)
    g("s_nop 7")
    g("s_nop 1")
    for r in k_table()[1:-1]:
        g(r)
    g.label(sk)


def k_gather():
    return ["ds_read_u16 v%d, v%d" % (144 + k, K_IX + k) for k in range(11)]


def k_build():
    D, O = 144, 160
    r = []
    for sft in range(4):
        for k in range(4):
            r.append("v_lshl_or_b32 v%d, v%d, 16, v%d" % (O + 4 * sft + k, D + sft + 2 * k + 1, D + sft + 2 * k))
        r.append("ds_write_b128 v%d, %s offset:%d" % (K_CP, vr(O + 4 * sft, 4), 4160 * sft))
    return r


def k_zero(g):
    z6, z7 = g.newlabel("Z"), g.newlabel("Z")
    g("s_cmp_lt_u32 s%d, 6" % S_WAVE)
    g("s_cbranch_scc1 %s" % z7)
    for r in range(4):
        g("v_mov_b32 v%d, 0" % (176 + r))
    g("v_lshrrev_b32 v%d, 5, v1" % VT)
    g("v_lshlrev_b32 v%d, 12, v%d" % (VT, VT))
    g("v_lshl_add_u32 v%d, v1, 4, v%d" % (VT, VT))
    g("v_add_u32 v%d, %d, v%d" % (VT, UB, VT))
    g("s_cmp_eq_u32 s%d, 6" % S_WAVE)
    g("s_cbranch_scc1 %s" % z6)
    g("v_bfe_u32 v%d, v1, 1, 3" % VT)
    g("v_mul_u32_u24 v%d, 4160, v%d" % (VT, VT))
    g("v_and_b32 v%d, 1, v1" % VT2)
    g("v_lshl_add_u32 v%d, v%d, 4, v%d" % (VT, VT2, VT))
    g("v_add_u32 v%d, %d, v%d" % (VT, KC + 4096, VT))
    g.label(z6)
    g("ds_write_b128 v%d, v[176:179]" % VT)
    g.label(z7)


def w2_setup(g, vd, va):
    g("v_lshrrev_b32 v%d, 4, v1" % VT)
    g("v_lshlrev_b32 v%d, 1, v%d" % (VT, VT))
    g("v_xor_b32 v%d, v%d, v1" % (VT, VT))
    g("v_and_b32 v%d, 7, v%d" % (VT, VT))
    g("v_lshrrev_b32 v%d, 3, v1" % VT2)
    g("v_lshlrev_b32 v%d, 10, v%d" % (vd, VT2))
    g("v_lshl_add_u32 v%d, v%d, 4, v%d" % (vd, VT, vd))
    g("s_mul_i32 s%d, s%d, %d" % (S_M, S_WAVE, 224 * 1024))
    g("s_lshl_b32 s%d, s%d, 7" % (S_M + 1, S_NT))
    g("s_add_u32 s%d, s%d, s%d" % (S_M, S_M, S_M + 1))
    g("s_mul_i32 s%d, s%d, %d" % (S_M + 1, S_WAVE, W2P))
    g("s_lshr_b32 s%d, s2, 2" % S_T0)
    g("s_and_b32 s%d, s%d, 6" % (S_T0, S_T0))
    g("s_and_b32 s%d, s2, 7" % S_T1)
    g("s_add_u32 s%d, s%d, s%d" % (S_T0, S_T0, S_T1))
    for j in range(7):
        if j:
            g("s_add_u32 s%d, s%d, 1" % (S_T0, S_T0))
        g("s_sub_u32 s%d, s%d, 7" % (S_T1, S_T0))
        g("s_cmp_ge_u32 s%d, 7" % S_T0)
        g("s_cselect_b32 s%d, s%d, s%d" % (S_T0, S_T1, S_T0))
        g("s_lshl_b32 s%d, s%d, 10" % (S_J + j, S_T0))
    g("v_and_b32 v%d, 3, v%d" % (VT2, VT2))
    g("v_lshlrev_b32 v%d, 5, v%d" % (VT2, VT2))
    g("v_lshrrev_b32 v%d, 2, v1" % VT)
    g("v_lshl_add_u32 v%d, v%d, 7, v%d" % (VT2, VT, VT2))
    g("v_and_b32 v%d, 3, v1" % VT)
    g("v_lshl_add_u32 v%d, v%d, 3, v%d" % (VT2, VT, VT2))
    g("v_add_u32 v%d, s%d, v%d" % (va, S_M + 1, VT2))
    for c in range(1, 4):
        g("v_xor_b32 v%d, %d, v%d" % (va + c, 32 * c, va))


SEQ = [3, 4, 5, 6, 0, 1, 2]
WLOC = ["o0", "o1", "o2", "o2", "k", "o2", "k"]
S_KST = 88
V_W2K = 8


def w2_dma(g, vd, pos):
    j = SEQ[pos]
    loc = WLOC[pos]
    g("s_lshl_b32 s%d, s%d, 5" % (S_M + 2, S_J + j))
    g("s_add_u32 s%d, s%d, s%d" % (S_M + 2, S_M + 2, S_M))
    for q in range(4):
        if loc == "k":
            g("s_add_u32 m0, s%d, %d" % (S_KST, q * 1024))
        else:
            g("s_add_u32 m0, s%d, %d" % (S_M + 1, int(loc[1]) * 4096 + q * 1024))
        g("s_add_u32 s%d, s%d, %d" % (S_M + 2, S_M + 2, 8192 if q else 0))
        g.vmem("buffer_load_dwordx4 v%d, %s, s%d offen lds" % (vd, SRDW(S_W2), S_M + 2), "w2_%d" % pos)


def w2_rd(g, pos, wait=True):
    j = SEQ[pos]
    loc = WLOC[pos]
    if wait:
        g.wait_vm("w2_%d" % pos)
    va, off = (V_W2K, 0) if loc == "k" else (4, int(loc[1]) * 4096)
    for c in range(4):
        d = W2F + 16 * j + 4 * c
        g("ds_read_b64_tr_b16 %s, v%d offset:%d" % (vr(d, 2), va + c, off))
        g("ds_read_b64_tr_b16 %s, v%d offset:%d" % (vr(d + 2, 2), va + c, off + 2048))


def reduce8(g, p):
    g("s_nop 1")
    for i in range(4):
        g("v_permlane32_swap_b32 v%d, v%d" % (p + i, p + i + 4))
    g("s_nop 1")
    for i in range(4):
        g("v_add_f32 v%d, v%d, v%d" % (p + i, p + i, p + i + 4))
    g("s_nop 1")
    for i in range(2):
        g("v_permlane16_swap_b32 v%d, v%d" % (p + i, p + i + 2))
    g("s_nop 1")
    for i in range(2):
        g("v_add_f32 v%d, v%d, v%d" % (p + i, p + i, p + i + 2))
    for rot in (8, 4, 2, 1):
        g("s_nop 1")
        for i in range(2):
            g("v_add_f32_dpp v%d, v%d, v%d row_ror:%d row_mask:0xf bank_mask:0xf" % (p + i, p + i, p + i, rot))


V_W2D, V_W2A = 3, 4
UREG = 236
STR, CSR = 204, 220


def u_load(g):
    g("v_lshrrev_b32 v%d, 4, v0" % VT)
    g("v_mul_u32_u24 v%d, %d, v%d" % (VT, XP, VT))
    g("v_and_b32 v%d, 15, v0" % VT2)
    g("v_lshl_add_u32 v%d, v%d, 4, v%d" % (VT, VT2, VT))
    g("s_lshl_b32 s%d, s2, 8" % S_T1)
    g.vmem("buffer_load_dwordx4 %s, v%d, %s, s%d offen sc1" % (vr(UREG, 4), VT, SRDW(S_WS), S_T1), "u")


def u_store(g):
    g("v_lshrrev_b32 v%d, 4, v0" % VT)
    g("v_lshlrev_b32 v%d, 7, v%d" % (VT, VT))
    g("v_and_b32 v%d, 7, v0" % VT2)
    g("v_lshl_add_u32 v%d, v%d, 4, v%d" % (VT, VT2, VT))
    g("v_bfe_u32 v%d, v0, 3, 1" % VT2)
    g("v_mul_u32_u24 v%d, 4608, v%d" % (VT2, VT2))
    g("v_add_u32 v%d, v%d, v%d" % (VT, VT, VT2))
    g("v_add_u32 v%d, %d, v%d" % (VT, UB + 512, VT))
    g.wait_vm("u")
    g("ds_write_b128 v%d, %s" % (VT, vr(UREG, 4)))


def pub_pcs(g):
    g("s_mul_i32 s%d, s%d, %d" % (S_CNT, S_FT, FP))
    g("s_lshl_b32 s%d, s%d, 2" % (S_EX, S_MT))
    g("s_add_u32 s%d, s%d, s%d" % (S_CNT, S_CNT, S_EX))
    g("s_add_u32 s%d, s%d, %d" % (S_CNT, S_CNT, WS_FLG + 25 * FP))


def gen(ts=False):
    g = Gen(ts)
    g.VTS = 15
    g("s_cmp_ge_u32 s2, 256")
    g("s_cbranch_scc1 L_END")
    if OPT["dbgtime"]:
        g("s_memtime s[98:99]")
        g("s_memrealtime s[100:101]")
    g("s_load_dwordx16 s[64:79], s[0:1], 0")
    g("s_load_dwordx8 s[80:87], s[0:1], 64")
    g("s_load_dwordx4 s[88:91], s[0:1], 96")
    g("s_getpc_b64 s[%d:%d]" % (S_M, S_M + 1))
    g("s_lshr_b32 s%d, s2, 3" % S_T1)
    g("s_and_b32 s%d, s%d, 3" % (S_T2, S_T1))
    g("s_lshl_b32 s%d, s%d, 13" % (S_T0, S_T2))
    g("v_lshlrev_b32 v3, 4, v0")
    g("v_add_u32 v3, s%d, v3" % S_T0)
    g.vmem("global_load_dwordx4 v[252:255], v3, s[%d:%d]" % (S_M, S_M + 1), "code")
    g("v_and_b32 v1, 63, v0")
    g("v_lshrrev_b32 v3, 6, v0")
    g("v_lshlrev_b32 v2, 2, v1")
    g("v_readfirstlane_b32 s%d, v3" % S_WAVE)
    for r in range(4, 7):
        g("v_mov_b32 v%d, 0" % r)
    if ts:
        g("v_mov_b32 v%d, 0" % g.VTS)
    g("s_and_b32 s%d, s2, 7" % S_T0)
    g("s_and_b32 s%d, s2, 3" % S_RT)
    g("s_lshl_b32 s%d, s%d, 3" % (S_RT, S_RT))
    g("s_and_b32 s%d, s2, 4" % S_T3)
    g("s_add_u32 s%d, s%d, s%d" % (S_RT, S_RT, S_T3))
    g("s_add_u32 s%d, s%d, s%d" % (S_RT, S_RT, S_T2))
    g("s_lshr_b32 s%d, s2, 5" % S_NT)
    g("s_lshl_b32 s%d, s%d, 10" % (S_WK, S_WAVE))
    g("s_lshr_b32 s%d, s%d, 2" % (S_T3, S_WAVE))
    g("s_lshl_b32 s%d, s%d, 8" % (S_T3, S_T3))
    g("s_lshl_b32 s%d, s2, 9" % S_CNT)
    g("s_add_u32 s%d, s%d, s%d" % (S_T3, S_T3, S_CNT))
    g("v_add_u32 v%d, s%d, v2" % (VT, S_T3))
    g("s_lshl_b32 s%d, s2, 2" % S_CNT)
    g("s_waitcnt lgkmcnt(0)")
    for k, p in enumerate((P_LAR, P_AIM, P_CR, P_CI)):
        g.vmem("global_load_dword v%d, v%d, s[%d:%d]" % (PRM + k, VT, p, p + 1), "prm")
    g("s_load_dword s%d, s[%d:%d], s%d" % (S_LDT, P_LDT, P_LDT + 1, S_CNT))
    g("s_load_dword s%d, s[%d:%d], s%d" % (S_DSK, P_DSK, P_DSK + 1, S_CNT))
    srd(g, S_X, 64, 2097152)
    srd(g, S_W1, 80, 1835008)
    srd(g, S_W3, 82, 1835008)
    srd(g, S_W2, 84, 1835008)
    srd(g, S_OUT, 86, 2097152)
    srd(g, S_DBG, 88, 256)
    srd(g, S_WS, 90, WS_SIZE)
    nonce_write(g)
    g.stamp(0)
    g("s_cmp_lt_u32 s2, 32")
    g("s_cbranch_scc1 L_AUX")
    vm_entry = list(g.vm)

    g("s_sub_u32 s%d, s%d, 4" % (S_T1, S_T1))
    g("s_lshr_b32 s%d, s%d, 2" % (S_T3, S_T1))
    g("s_and_b32 s%d, s%d, 3" % (S_MT, S_T0))
    g("s_lshl_b32 s%d, s%d, 1" % (S_ROT, S_MT))
    g("s_lshl_b32 s%d, s%d, 2" % (S_MT, S_MT))
    g("s_add_u32 s%d, s%d, s%d" % (S_MT, S_MT, S_T2))
    g("s_lshr_b32 s%d, s%d, 2" % (S_FT, S_T0))
    g("s_mul_i32 s%d, s%d, 7" % (S_FT, S_FT))
    g("s_add_u32 s%d, s%d, s%d" % (S_FT, S_FT, S_T3))
    g("s_and_b32 s%d, s2, 4" % S_T3)
    g("s_add_u32 s%d, s%d, s%d" % (S_ROT, S_ROT, S_T3))
    g("s_lshl_b32 s%d, s%d, 8" % (S_T0, S_FT))
    g("s_lshl_b32 s%d, s%d, 17" % (S_T1, S_MT))
    V_WD0, V_WD1, V_XD0, V_XD1 = 3, 4, 5, 6
    V_XA0, V_XA1, V_WA0, V_WA1 = 7, 8, 9, 10
    V_FL, V_NEED = 11, 12
    SETS = [16, 48]
    ACC = 80

    def offs(i):
        g("s_add_u32 s%d, s%d, %d" % (S_T2, S_ROT, i))
        g("s_and_b32 s%d, s%d, 7" % (S_T2, S_T2))
        g("s_mul_i32 s%d, s%d, %d" % (S_WOFF + i, S_T2, 64 * 3584))
        g("s_add_u32 s%d, s%d, s%d" % (S_WOFF + i, S_WOFF + i, S_T0))
        g("s_lshl_b32 s%d, s%d, 7" % (S_XOFF + i, S_T2))
        g("s_add_u32 s%d, s%d, s%d" % (S_XOFF + i, S_XOFF + i, S_T1))
    offs(0)
    g("v_lshrrev_b32 v%d, 4, v1" % VT)
    g("s_lshr_b32 s%d, s%d, 1" % (S_T2, S_WAVE))
    g("s_and_b32 s%d, s%d, 1" % (S_T2, S_T2))
    g("s_lshl_b32 s%d, s%d, 2" % (S_T2, S_T2))
    g("v_or_b32 v%d, s%d, v%d" % (VT2, S_T2, VT))
    g("v_lshlrev_b32 v%d, 1, v%d" % (VT2, VT2))
    g("v_and_b32 v%d, 15, v1" % V_WD0)
    g("v_xor_b32 v%d, v%d, v%d" % (V_WD0, V_WD0, VT2))
    g("v_lshlrev_b32 v%d, 4, v%d" % (V_WD0, V_WD0))
    g("v_lshrrev_b32 v%d, 4, v0" % VT)
    g("v_mul_u32_u24 v%d, 3584, v%d" % (VT2, VT))
    g("v_add_u32 v%d, v%d, v%d" % (V_WD0, V_WD0, VT2))
    g("v_add_u32 v%d, %d, v%d" % (V_WD1, 32 * 3584, V_WD0))
    g("v_xor_b32 v%d, v%d, v1" % (VT, VT))
    g("v_and_b32 v%d, 7, v%d" % (VT, VT))
    g("v_lshrrev_b32 v%d, 3, v0" % VT2)
    g("v_lshlrev_b32 v%d, 10, v%d" % (VT2, VT2))
    g("v_lshl_add_u32 v%d, v%d, 4, v%d" % (V_XD0, VT, VT2))
    g("v_add_u32 v%d, 0x10000, v%d" % (V_XD1, V_XD0))

    def unit_ops(k):
        r = []
        st, h = k >> 1, k & 1
        if h == 0:
            for b in range(2):
                r.append(("s_add_u32 m0, s%d, %d" % (S_WK, XBASE + (st % 3) * 16384 + b * 8192),
                          "buffer_load_dwordx4 v%d, %s, s%d offen lds" % (V_XD1 if b else V_XD0, SRDW(S_X), S_XOFF + st), "U%d" % k))
        for mat in range(2):
            r.append(("s_add_u32 m0, s%d, %d" % (S_WK, WBASE + (k % 4) * 16384 + mat * 8192),
                      "buffer_load_dwordx4 v%d, %s, s%d offen lds" % (V_WD1 if h else V_WD0, SRDW((S_W1, S_W3)[mat]), S_WOFF + st), "U%d" % k))
        return r

    def unit(k):
        for a, b, t in unit_ops(k):
            g(a); g("s_nop 0"); g.vmem(b, t)

    unit(0); unit(1)
    for i in range(1, 8):
        offs(i)
    g("v_and_b32 v%d, 15, v1" % VT)
    g("v_lshrrev_b32 v%d, 4, v1" % VT2)
    g("v_lshrrev_b32 v%d, 1, v%d" % (V_XA0, VT))
    g("v_xor_b32 v%d, v%d, v%d" % (V_XA0, V_XA0, VT2))
    g("v_lshlrev_b32 v%d, 4, v%d" % (V_XA0, V_XA0))
    g("v_lshl_add_u32 v%d, v%d, 7, v%d" % (V_XA0, VT, V_XA0))
    g("s_lshr_b32 s%d, s%d, 2" % (S_T2, S_WAVE))
    g("s_lshl_b32 s%d, s%d, 13" % (S_T2, S_T2))
    g("v_add_u32 v%d, s%d, v%d" % (V_XA0, S_T2, V_XA0))
    g("v_xor_b32 v%d, 64, v%d" % (V_XA1, V_XA0))
    g("v_lshrrev_b32 v%d, 2, v%d" % (VT, VT))
    g("v_and_b32 v%d, 1, v%d" % (V_WA0, VT2))
    g("v_lshl_or_b32 v%d, v%d, 2, v%d" % (V_WA0, V_WA0, VT))
    g("s_and_b32 s%d, s%d, 3" % (S_T2, S_WAVE))
    g("s_lshl_b32 s%d, s%d, 1" % (S_T2, S_T2))
    g("v_xor_b32 v%d, s%d, v%d" % (V_WA0, S_T2, V_WA0))
    g("v_lshlrev_b32 v%d, 5, v%d" % (V_WA0, V_WA0))
    g("v_lshl_add_u32 v%d, v%d, 3, v%d" % (VT, VT2, VT))
    g("v_lshl_add_u32 v%d, v%d, 8, v%d" % (V_WA0, VT, V_WA0))
    g("v_and_b32 v%d, 3, v1" % VT)
    g("v_lshl_add_u32 v%d, v%d, 3, v%d" % (V_WA0, VT, V_WA0))
    g("v_add_u32 v%d, %d, v%d" % (V_WA0, WBASE, V_WA0))
    g("v_xor_b32 v%d, 32, v%d" % (V_WA1, V_WA0))
    k_addr(g)
    ONES, PD = 244, 248
    for r in range(4):
        g("v_mov_b32 v%d, 0x3f803f80" % (ONES + r))
    g.wait_vm("prm", "lgkmcnt(0)")
    g.stamp(20)
    k_chains(g, "G")
    unit(2)
    nonce_issue(g, V_NEED)
    g("s_waitcnt lgkmcnt(0)")
    g("s_barrier")
    g.stamp(21)
    k_stage2(g)
    g.stamp(1)

    def frag_reads(it):
        S = SETS[it & 1]
        xs = (it >> 1) % 3
        va = V_XA1 if (it & 1) else V_XA0
        so = (it % 4) * 16384
        xr = ["ds_read_b128 %s, v%d offset:%d" % (vr(S + 4 * mi, 4), va, XBASE + xs * 16384 + mi * 2048) for mi in range(4)]
        wr = []
        for mat in range(2):
            for tt in range(2):
                a = (V_WA0, V_WA1)[tt]
                d = S + 16 + 4 * (2 * mat + tt)
                wr.append("ds_read_b64_tr_b16 %s, v%d offset:%d" % (vr(d, 2), a, so + mat * 8192))
                wr.append("ds_read_b64_tr_b16 %s, v%d offset:%d" % (vr(d + 2, 2), a, so + mat * 8192 + 1024))
        return xr + wr

    def mfmas(it):
        S = SETS[it & 1]
        r = []
        for mi in range(4):
            for c in range(4):
                a = ACC + 16 * mi + 4 * c
                r.append("v_mfma_f32_16x16x32_bf16 %s, %s, %s, %s" % (vr(a, 4), vr(S + 16 + 4 * c, 4), vr(S + 4 * mi, 4), "0" if it == 0 else vr(a, 4)))
        return r

    def stats_loads():
        g("v_and_b32 v%d, 15, v1" % VT)
        g("v_lshlrev_b32 v%d, 4, v%d" % (VT, VT))
        g("s_lshr_b32 s%d, s%d, 2" % (S_T2, S_WAVE))
        g("s_lshl_b32 s%d, s%d, 10" % (S_T2, S_T2))
        g("s_lshl_b32 s%d, s%d, 11" % (S_T3, S_MT))
        g("s_add_u32 s%d, s%d, s%d" % (S_T2, S_T2, S_T3))
        g("s_add_u32 s%d, s%d, %d" % (S_T2, S_T2, WS_STATS))
        for mi in range(4):
            g.vmem("buffer_load_dwordx4 %s, v%d, %s, s%d offen offset:%d sc1" % (vr(STR + 4 * mi, 4), VT, SRDW(S_WS), S_T2, mi * 256), "st")

    def cs_loads():
        g("v_lshrrev_b32 v%d, 4, v1" % VT2)
        g("v_lshlrev_b32 v%d, 4, v%d" % (VT2, VT2))
        g("v_and_b32 v%d, 3, v1" % VT)
        g("v_lshl_add_u32 v%d, v%d, 9, v%d" % (VT2, VT, VT2))
        g("s_and_b32 s%d, s%d, 3" % (S_T2, S_WAVE))
        g("s_lshl_b32 s%d, s%d, 7" % (S_T2, S_T2))
        g("s_lshl_b32 s%d, s%d, 12" % (S_T3, S_FT))
        g("s_add_u32 s%d, s%d, s%d" % (S_T2, S_T2, S_T3))
        g("s_add_u32 s%d, s%d, %d" % (S_T2, S_T2, WS_PCS))
        for mat in range(2):
            for tt in range(2):
                g.vmem("buffer_load_dwordx4 %s, v%d, %s, s%d offen offset:%d sc1" % (vr(CSR + 4 * (2 * mat + tt), 4), VT2, SRDW(S_WS), S_T2, mat * 2048 + tt * 64), "st")

    def pcs_mfma(it):
        S = SETS[it & 1]
        sk, l1 = g.newlabel("PC"), g.newlabel("PC")
        g("s_cmp_lg_u32 s%d, 0" % S_PC)
        g("s_cbranch_scc1 %s" % sk)
        g("s_cmp_ge_u32 s%d, 4" % S_WAVE)
        g("s_cbranch_scc1 %s" % l1)
        for mat in range(2):
            for tt in range(2):
                g("v_mfma_f32_16x16x32_bf16 %s, %s, %s, %s" % (vr(PD + 4 * tt, 4), vr(S + 16 + 4 * (2 * mat + tt), 4), vr(ONES, 4), "0" if it == 0 else vr(PD + 4 * tt, 4)))
            if mat == 0:
                g("s_branch %s" % sk)
                g.label(l1)
        g.label(sk)

    def pcs_store():
        sk = g.newlabel("PS")
        g("s_cmp_lg_u32 s%d, 0" % S_PC)
        g("s_cbranch_scc1 %s" % sk)
        g("s_lshl_b32 s%d, s%d, 1" % (S_T2, S_FT))
        g("s_lshr_b32 s%d, s%d, 2" % (S_T3, S_WAVE))
        g("s_add_u32 s%d, s%d, s%d" % (S_T2, S_T2, S_T3))
        g("s_lshl_b32 s%d, s%d, 2" % (S_T2, S_T2))
        g("s_lshr_b32 s%d, s%d, 2" % (S_T3, S_MT))
        g("s_add_u32 s%d, s%d, s%d" % (S_T2, S_T2, S_T3))
        g("s_lshl_b32 s%d, s%d, 9" % (S_T2, S_T2))
        g("s_and_b32 s%d, s%d, 3" % (S_T3, S_WAVE))
        g("s_lshl_b32 s%d, s%d, 7" % (S_T3, S_T3))
        g("s_add_u32 s%d, s%d, s%d" % (S_T2, S_T2, S_T3))
        g("s_add_u32 s%d, s%d, %d" % (S_T2, S_T2, WS_PCS))
        g("s_mov_b32 s%d, 0x00010001" % S_EX)
        g("s_mov_b32 s%d, 0x00010001" % (S_EX + 1))
        g("s_mov_b64 exec, s[%d:%d]" % (S_EX, S_EX + 1))
        for tt in range(2):
            g("buffer_store_dwordx4 %s, v1, %s, s%d offen offset:%d sc1" % (vr(PD + 4 * tt, 4), SRDW(S_WS), S_T2, 64 * tt))
        g("s_mov_b64 exec, -1")
        g.label(sk)

    S_PC = 86
    g("s_xor_b32 s%d, s%d, s%d" % (S_PC, S_MT, S_WAVE))
    g("s_and_b32 s%d, s%d, 3" % (S_PC, S_PC))
    g.wait_vm("U0", "lgkmcnt(0)")
    g("s_barrier")
    g.stamp(2)
    for r in k_gather() + frag_reads(0):
        g(r)
    unit(3)
    k_zero(g)
    nonce_check(g, V_NEED)
    g("s_waitcnt lgkmcnt(12)")
    for r in k_build():
        g(r)
    for it in range(16):
        if it == 12:
            flag_check(g, V_NEED, 16, "0:flag2", sfa=S_FA2)
            flag_check(g, V_FL, 32)
        if it < 15:
            g.wait_vm("U%d" % (it + 1), "lgkmcnt(0)")
        else:
            g("s_waitcnt lgkmcnt(0)")
        g("s_barrier")
        g.stamp(41 + it)
        mf = mfmas(it)
        fill = [[] for _ in range(16)]
        pre = [[] for _ in range(16)]
        rd = frag_reads(it + 1) if it < 15 else []
        for i, r in enumerate(rd):
            fill[i].append(r)
        dm = unit_ops(it + 4) if it + 4 < 16 else []
        for p, (a_, b_, t_) in zip([7, 9, 11, 13], dm):
            pre[p].append(a_)
            fill[p].append((b_, t_))
        if it < 4:
            fill[0].append(lambda it=it: pcs_mfma(it))
        if it == 3:
            fill[6].append(pcs_store)
        if it == 6:
            fill[1].append(lambda: publish(g, pub_pcs, VT))
        if it == 9:
            fill[15].append(lambda: flag_issue(g, V_NEED, (S_FT, 25), "0:flag2", S_FA2))
        if it == 10:
            fill[0].append(lambda: flag_issue(g, V_FL, (None, 0)))
        if it == 12:
            fill[4].append(lambda: u_load(g))
            fill[8].append(stats_loads)
        if it == 13:
            fill[4].append(cs_loads)
        if it == 14:
            fill[13].append(lambda: u_store(g))
        if it == 15:
            fill[2].append(lambda: w2_setup(g, V_W2D, V_W2A))
            fill[8].append(lambda: w2_dma(g, V_W2D, 0))
            fill[15].append(lambda: w2_dma(g, V_W2D, 1))
        for i, m in enumerate(mf):
            for x in pre[i]:
                g(x)
            g(m)
            for x in fill[i]:
                if callable(x):
                    x()
                elif isinstance(x, tuple):
                    g.vmem(*x)
                else:
                    g(x)
    g.stamp(3)
    def epi(dma2):
        g("s_lshr_b32 s%d, s%d, 2" % (S_T2, S_WAVE))
        g("s_lshl_b32 s%d, s%d, 2" % (S_T2, S_T2))
        g("s_lshl_b32 s%d, s%d, 3" % (S_T3, S_MT))
        g("s_add_u32 s%d, s%d, s%d" % (S_T2, S_T2, S_T3))
        g("s_mul_i32 s%d, s%d, 56" % (S_T2, S_T2))
        g("s_lshl_b32 s%d, s%d, 2" % (S_T3, S_FT))
        g("s_add_u32 s%d, s%d, s%d" % (S_T2, S_T2, S_T3))
        g("s_and_b32 s%d, s%d, 3" % (S_T3, S_WAVE))
        g("s_add_u32 s%d, s%d, s%d" % (S_T2, S_T2, S_T3))
        g("s_lshl_b32 s%d, s%d, 10" % (S_T2, S_T2))
        g("s_add_u32 s%d, s%d, %d" % (S_T2, S_T2, WS_H))
        g("v_lshlrev_b32 v12, 4, v1")
        g.wait_vm("st")
        for qp in ("[1,0,3,2]", "[2,3,0,1]"):
            for k in range(16):
                g("v_add_f32_dpp v%d, v%d, v%d quad_perm:%s row_mask:0xf bank_mask:0xf" % (CSR + k, CSR + k, CSR + k, qp))
        E = 16
        for mi in range(4):
            st = STR + 4 * mi
            HO = 32 + 4 * (mi & 1)
            for tt in range(2):
                ag = ACC + 16 * mi + 4 * tt
                au = ACC + 16 * mi + 4 * (2 + tt)
                c1 = CSR + 4 * tt
                c3 = CSR + 4 * (2 + tt)
                for r in range(4):
                    g("v_fma_f32 v%d, -v%d, v%d, v%d" % (ag + r, st, c1 + r, ag + r))
                for r in range(4):
                    g("v_mul_f32 v%d, v%d, v%d" % (E + r, st + 1, ag + r))
                for r in range(4):
                    g("v_exp_f32 v%d, v%d" % (E + r, E + r))
                for r in range(4):
                    g("v_fma_f32 v%d, -v%d, v%d, v%d" % (au + r, st, c3 + r, au + r))
                for r in range(4):
                    g("v_fma_f32 v%d, v%d, v%d, v%d" % (E + r, E + r, st + 2, st + 2))
                for r in range(4):
                    g("v_rcp_f32 v%d, v%d" % (E + r, E + r))
                for r in range(4):
                    g("v_mul_f32 v%d, v%d, v%d" % (ag + r, ag + r, au + r))
                for r in range(4):
                    g("v_mul_f32 v%d, v%d, v%d" % (ag + r, ag + r, E + r))
                g("v_cvt_pk_bf16_f32 v%d, v%d, v%d" % (HO + 2 * tt, ag, ag + 1))
                g("v_cvt_pk_bf16_f32 v%d, v%d, v%d" % (HO + 2 * tt + 1, ag + 2, ag + 3))
            g.vmem("buffer_store_dwordx4 %s, v12, %s, s%d offen sc1" % (vr(HO, 4), SRDW(S_WS), S_T2), "hst")
            if mi < 3:
                g("s_add_u32 s%d, s%d, %d" % (S_T2, S_T2, 56 * 1024))
            if mi == 1 and dma2:
                w2_dma(g, V_W2D, 2)

    vm_t = list(g.vm)
    g("s_cmp_ge_u32 s%d, 4" % S_WAVE)
    g("s_cbranch_scc1 L_TB")
    epi(True)
    g.stamp(4)
    g.label("L_COMMON")
    conv(g, False)
    g("s_branch L_TJ")
    g.label("L_TB")
    g.vm = list(vm_t)
    conv(g, True)
    g.stamp(4)
    epi(False)
    g("s_branch L_TJ")

    g.label("L_AUX")
    g.vm = list(vm_entry)
    aux(g)
    g.wait_vm_all()
    g("s_branch L_COMMON")

    g.label("L_TJ")
    g.vm = ["w2_0", "hst", "hst"]
    common(g)
    g.label("L_END")
    g("s_endpgm")
    return g


def aux(g):
    S_RB = S_MT
    g("s_and_b32 s%d, s2, 3" % S_T3)
    g("s_lshl_b32 s%d, s%d, 3" % (S_RB, S_T3))
    g("s_and_b32 s%d, s2, 4" % S_T3)
    g("s_add_u32 s%d, s%d, s%d" % (S_RB, S_RB, S_T3))
    g("s_add_u32 s%d, s%d, s%d" % (S_RB, S_RB, S_T1))
    XR, XF, TT, RED, ONES = 16, 48, 112, 144, 152
    g("v_lshlrev_b32 v%d, 4, v1" % VT)
    g("s_lshl_b32 s%d, s%d, 16" % (S_FT, S_RB))
    g("s_lshl_b32 s%d, s%d, 13" % (S_T1, S_WAVE))
    g("s_add_u32 s%d, s%d, s%d" % (S_FT, S_FT, S_T1))
    g("s_add_u32 s%d, s%d, 4096" % (S_T2, S_FT))
    for i in range(8):
        g.vmem("buffer_load_dwordx4 %s, v%d, %s, s%d offen offset:%d" % (vr(XR + 4 * i, 4), VT, SRDW(S_X), S_T2 if i >= 4 else S_FT, (i & 3) * 1024), "x")
    g("v_mov_b32 v%d, 0x3f803f80" % ONES)
    g("v_and_b32 v3, 7, v1")
    g("v_xor_b32 v3, s%d, v3" % S_WAVE)
    g("v_lshlrev_b32 v3, 4, v3")
    g("v_lshl_add_u32 v3, v1, 10, v3")
    g("v_lshrrev_b32 v4, 4, v1")
    g("v_lshlrev_b32 v4, 5, v4")
    g("s_lshr_b32 s%d, s%d, 6" % (S_T0, S_FT))
    g("s_add_u32 s%d, s%d, %d" % (S_T0, S_T0, WS_STATS))
    g("s_mov_b32 s%d, 0x00010001" % S_EX)
    g("s_mov_b32 s%d, 0x00010001" % (S_EX + 1))
    SM = 36
    MEAN, SO, RI = 154, 156, 164
    g.wait_vm("x")
    g.stamp(30)
    nonce_issue(g, 12)
    for i in range(8):
        g("v_dot2_f32_bf16 v%d, v%d, v%d, 0" % (RED + i, XR + 4 * i, ONES))
    for k in range(1, 4):
        for i in range(8):
            g("v_dot2_f32_bf16 v%d, v%d, v%d, v%d" % (RED + i, XR + 4 * i + k, ONES, RED + i))
    for i in range(8):
        for k in range(4):
            g("v_lshlrev_b32 v%d, 16, v%d" % (XF + 8 * i + 2 * k, XR + 4 * i + k))
            g("v_and_b32 v%d, 0xffff0000, v%d" % (XF + 8 * i + 2 * k + 1, XR + 4 * i + k))
    reduce8(g, RED)
    for i in range(2):
        g("v_mul_f32 v%d, 0x3b000000, v%d" % (MEAN + i, RED + i))
    g("s_nop 0")
    for row in range(8):
        g("v_readlane_b32 s%d, v%d, %d" % (SM + 2 * row, MEAN + (row & 1), 16 * (row >> 1)))
    g("s_nop 1")
    g.stamp(31)
    for k in range(4):
        for i in range(8):
            g("v_pk_add_f32 %s, %s, s[%d:%d] op_sel_hi:[1,0] neg_lo:[0,1] neg_hi:[0,1]" % (vr(TT + 2 * i, 2), vr(XF + 8 * i + 2 * k, 2), SM + 2 * i, SM + 2 * i + 1))
        for i in range(8):
            d, a = TT + 2 * i, XR + 2 * i
            if k == 0:
                g("v_pk_mul_f32 %s, %s, %s" % (vr(a, 2), vr(d, 2), vr(d, 2)))
            else:
                g("v_pk_fma_f32 %s, %s, %s, %s" % (vr(a, 2), vr(d, 2), vr(d, 2), vr(a, 2)))
    for i in range(8):
        g("v_add_f32 v%d, v%d, v%d" % (RED + i, XR + 2 * i, XR + 2 * i + 1))
    reduce8(g, RED)
    for i in range(2):
        o = SO + 4 * i
        g("v_mul_f32 v%d, 0x3b000000, v%d" % (RED + i, RED + i))
        rnd_bf16(g, RED + i, RED + i)
        g("v_add_f32 v%d, 0x3727c5ac, v%d" % (RED + i, RED + i))
        rnd_bf16(g, RED + i, RED + i)
        g("v_sqrt_f32 v%d, v%d" % (RED + i, RED + i))
        g("s_nop 0")
        rnd_bf16(g, RED + i, RED + i)
        g("v_rcp_f32 v%d, v%d" % (RI + i, RED + i))
        rnd_bf16(g, o, MEAN + i)
        g("v_mul_f32 v%d, 0x%x, v%d" % (o + 1, NLOG2E, RI + i))
        g("v_mul_f32 v%d, v%d, v%d" % (o + 2, RED + i, RED + i))
        g("v_mov_b32 v%d, v%d" % (o + 3, RED + i))
    g("s_nop 0")
    for row in range(8):
        g("v_readlane_b32 s%d, v%d, %d" % (SM + 2 * row, SO + 4 * (row & 1), 16 * (row >> 1)))
        g("v_readlane_b32 s%d, v%d, %d" % (SM + 2 * row + 1, RI + (row & 1), 16 * (row >> 1)))
    g("s_mov_b64 exec, s[%d:%d]" % (S_EX, S_EX + 1))
    for i in range(2):
        g.vmem("buffer_store_dwordx4 %s, v4, %s, s%d offen offset:%d sc1" % (vr(SO + 4 * i, 4), SRDW(S_WS), S_T0, 16 * i), "s1")
    g("s_mov_b64 exec, -1")
    g.stamp(32)
    for i in range(8):
        for k in range(4):
            d = XF + 8 * i + 2 * k
            g("v_pk_add_f32 %s, %s, s[%d:%d] op_sel_hi:[1,0] neg_lo:[0,1] neg_hi:[0,1]" % (vr(d, 2), vr(d, 2), SM + 2 * i, SM + 2 * i + 1))
        for k in range(4):
            d = XF + 8 * i + 2 * k
            g("v_pk_mul_f32 %s, %s, s[%d:%d] op_sel:[0,1] op_sel_hi:[1,1]" % (vr(d, 2), vr(d, 2), SM + 2 * i, SM + 2 * i + 1))
    for c in range(8):
        for ip in range(4):
            g("v_cvt_pk_bf16_f32 v%d, v%d, v%d" % (TT + 4 * c + ip, XF + 16 * ip + c, XF + 16 * ip + 8 + c))
        g("ds_write_b128 v3, %s offset:%d" % (vr(TT + 4 * c, 4), c * 128))
    g("v_lshlrev_b32 v3, 4, v1")
    g("v_add_u32 v4, s%d, v3" % S_T1)
    for k in range(8):
        g("v_xor_b32 v%d, %d, v3" % (RED + k, 16 * k))
    g("s_mul_i32 s%d, s%d, %d" % (S_T2, S_RB, XP))
    g("s_add_u32 s%d, s%d, s%d" % (S_T2, S_T2, S_T1))
    g("s_add_u32 s%d, s%d, 4096" % (S_T3, S_T2))
    g("s_waitcnt lgkmcnt(0)")
    g.stamp(33)
    g("s_barrier")
    for k in range(8):
        g("ds_read_b128 %s, v4 offset:%d" % (vr(XF + 4 * k, 4), k * 1024))
    for k in range(8):
        g("s_waitcnt lgkmcnt(%d)" % (7 - k))
        g.vmem("buffer_store_dwordx4 %s, v%d, %s, s%d offen offset:%d sc1" % (vr(XF + 4 * k, 4), RED + k, SRDW(S_WS), S_T3 if k >= 4 else S_T2, (k & 3) * 1024), "s1")
    g.stamp(34)
    nonce_check(g, 12)
    k_addr(g)
    g.wait_vm("s1")
    g("s_barrier")
    publish(g, pub_aux, VT)
    g.stamp(4)
    n = OPT["auxpf"]
    g("s_lshr_b32 s%d, s2, 3" % S_T0)
    g("s_lshl_b32 s%d, s%d, 1" % (S_T0, S_T0))
    g("s_and_b32 s%d, s%d, 1" % (S_T1, S_WAVE))
    g("s_add_u32 s%d, s%d, s%d" % (S_T0, S_T0, S_T1))
    g("s_mul_i32 s%d, s%d, 224" % (S_T0, S_T0))
    g("s_lshr_b32 s%d, s%d, 1" % (S_T1, S_WAVE))
    g("s_add_u32 s%d, s%d, s%d" % (S_T0, S_T0, S_T1))
    g("s_lshl_b32 s%d, s%d, 10" % (S_ROT, S_T0))
    g("s_and_b32 s%d, s2, 7" % S_FT)
    g("v_lshlrev_b32 v5, 4, v1")
    PFR = [80]
    def pf_batch():
        g("s_sub_u32 s%d, s%d, 7" % (S_T1, S_FT))
        g("s_cmp_ge_u32 s%d, 7" % S_FT)
        g("s_cselect_b32 s%d, s%d, s%d" % (S_FT, S_T1, S_FT))
        g("s_lshl_b32 s%d, s%d, 15" % (S_T0, S_FT))
        g("s_add_u32 s%d, s%d, s%d" % (S_T0, S_T0, S_ROT))
        for i in range(8):
            g.vmem("buffer_load_dwordx4 %s, v5, %s, s%d offen" % (vr(PFR[0] + 4 * i, 4), SRDW(S_W2), S_T0), "pf")
            g("s_add_u32 s%d, s%d, 4096" % (S_T0, S_T0))
        g("s_add_u32 s%d, s%d, 1" % (S_FT, S_FT))
    nb = [n]
    def pf():
        if nb[0] > 0:
            pf_batch(); nb[0] -= 1
    PFR[0] = 176
    pf()
    k_chains(g, "A")
    g.stamp(35)
    g.wait_vm("pf")
    PFR[0] = 80
    pf()
    g("s_waitcnt lgkmcnt(0)")
    g("s_barrier")
    k_stage2(g)
    g("s_waitcnt lgkmcnt(0)")
    pf()
    g("s_barrier")
    for r in k_gather():
        g(r)
    k_zero(g)
    g("s_waitcnt lgkmcnt(0)")
    for r in k_build():
        g(r)
    g.stamp(1)
    flag_issue(g, 11, (None, 0))
    while nb[0] > 0:
        pf()
    flag_check(g, 11, 32)
    g("s_waitcnt lgkmcnt(0)")
    g("s_barrier")
    u_load(g)
    w2_setup(g, V_W2D, V_W2A)
    for j in range(3):
        w2_dma(g, V_W2D, j)
    u_store(g)
    g("s_waitcnt lgkmcnt(0)")
    g("s_barrier")


BF, CACC, AF = 16, 144, 176


def conv(g, dma2):
    VAA, VBB = 8, 9
    g("v_and_b32 v%d, 15, v1" % VT)
    g("v_lshrrev_b32 v%d, 4, v1" % VT2)
    g("v_lshl_add_u32 v10, v%d, 3, v%d" % (VT2, VT))
    g("s_lshr_b32 s%d, s%d, 2" % (S_T2, S_WAVE))
    g("s_mul_i32 s%d, s%d, 16640" % (S_T3, S_T2))
    g("s_add_u32 s%d, s%d, %d" % (S_T3, S_T3, KC))
    g("s_and_b32 s%d, s%d, 3" % (S_T0, S_WAVE))
    g("s_lshl_b32 s%d, s%d, 5" % (S_T1, S_T0))
    g("s_sub_u32 s%d, %d, s%d" % (S_T1, 2047 + 8 - 32 * 60, S_T1))
    g("v_sub_u32 v10, s%d, v10" % S_T1)
    g("v_and_b32 v11, 3, v10")
    g("v_sub_u32 v10, v10, v11")
    g("v_lshlrev_b32 v10, 1, v10")
    g("v_mul_u32_u24 v11, 4160, v11")
    g("v_add3_u32 v%d, v10, v11, s%d" % (VAA, S_T3))
    g("v_lshlrev_b32 v10, 5, v%d" % VT)
    g("v_lshlrev_b32 v11, 4, v%d" % VT2)
    g("v_sub_u32 v10, v10, v11")
    g("s_mul_i32 s%d, s%d, 4608" % (S_T1, S_T2))
    g("s_lshl_b32 s%d, s%d, 6" % (S_T0, S_T0))
    g("s_sub_u32 s%d, s%d, s%d" % (S_T1, S_T1, S_T0))
    g("s_add_u32 s%d, s%d, %d" % (S_T1, S_T1, UB + 512 - 256 + 16))
    g("v_add_u32 v%d, s%d, v10" % (VBB, S_T1))
    NA = 4
    def rdA(ip):
        d = AF + 4 * (ip % NA)
        return ["ds_read_b64 %s, v%d offset:%d" % (vr(d, 2), VAA, 256 * (15 - ip)),
                "ds_read_b64 %s, v%d offset:%d" % (vr(d + 2, 2), VAA, 256 * (15 - ip) + 8)]
    lq = []
    def lds(s_, tag):
        g(s_); lq.append(tag)
    def lwait(tags):
        last = max([i for i, t in enumerate(lq) if t in tags], default=-1)
        if last < 0:
            return
        n = len(lq) - 1 - last
        g("s_waitcnt lgkmcnt(%d)" % min(n, 15))
        del lq[:last + 1]
        if n > 15:
            del lq[:len(lq) - 15]
    for s_ in rdA(0): lds(s_, "A0")
    for tau in (0, 2, 4, 6, 8, 10, 12, 14):
        lds("ds_read_b128 %s, v%d offset:%d" % (vr(BF + 4 * (tau + 1), 4), VBB, 256 * (tau + 1)), "B%d" % tau)
    for s_ in rdA(1): lds(s_, "A1")
    for tau in (-1, 1, 3, 5, 7, 9, 11, 13):
        lds("ds_read_b128 %s, v%d offset:%d" % (vr(BF + 4 * (tau + 1), 4), VBB, 256 * (tau + 1)), "B%d" % tau)
    for s_ in rdA(2): lds(s_, "A2")
    for ip in range(16):
        first = True
        for j in range(ip >> 1, 8):
            tau = 2 * j - ip
            lwait(["A%d" % ip, "B%d" % tau])
            a = CACC + 4 * j
            g("v_mfma_f32_16x16x32_bf16 %s, %s, %s, %s" % (vr(a, 4), vr(AF + 4 * (ip % NA), 4), vr(BF + 4 * (tau + 1), 4), "0" if ip == 0 else vr(a, 4)))
            if first and ip + 3 < 16:
                for s_ in rdA(ip + 3): lds(s_, "A%d" % (ip + 3))
            first = False
        if ip == 6 and dma2:
            w2_dma(g, V_W2D, 2)


def common(g):
    g.stamp(5)
    g.wait_vm("w2_0")
    for p in range(3):
        w2_rd(g, p, wait=False)
    g("v_and_b32 v%d, 15, v1" % VT)
    g("v_lshrrev_b32 v%d, 4, v1" % VT2)
    g("v_lshl_add_u32 v%d, v%d, 2, v%d" % (VT, VT2, VT))
    g("v_and_b32 v%d, 15, v%d" % (VT, VT))
    g("v_lshl_add_u32 v%d, v%d, 4, v%d" % (VT, VT2, VT))
    g("v_lshl_add_u32 v%d, v%d, 4, s%d" % (VT, VT, S_M + 1))
    g("s_lshl_b32 s%d, s%d, 12" % (S_KST, S_WAVE))
    g("s_add_u32 s%d, s%d, %d" % (S_KST, S_KST, KC))
    g("s_sub_u32 s%d, s%d, s%d" % (S_T0, S_KST, S_M + 1))
    for c in range(4):
        g("v_add_u32 v%d, s%d, v%d" % (V_W2K + c, S_T0, V_W2A + c))
    g("s_waitcnt lgkmcnt(0)")
    w2_dma(g, V_W2D, 3)
    for j in range(8):
        g("ds_write_b128 v%d, %s offset:%d" % (VT, vr(CACC + 4 * j, 4), j * 1024))
    g("v_lshrrev_b32 v%d, 2, v1" % VT)
    g("v_and_b32 v%d, 3, v1" % VT2)
    g("v_lshl_add_u32 v%d, v%d, 2, v%d" % (VT, VT2, VT))
    g("v_and_b32 v%d, 15, v%d" % (VT, VT))
    g("v_lshl_add_u32 v%d, v%d, 4, v%d" % (VT, VT2, VT))
    g("v_lshl_add_u32 v%d, v%d, 4, s%d" % (VT, VT, S_WK))
    g("v_add_u32 v%d, %d, v%d" % (VT2, 4 * W2P, VT))
    g("v_lshlrev_b32 v12, 3, v0")
    g("v_add_u32 v12, %d, v12" % (UB + 512))
    g.wait_vm("hst", "lgkmcnt(0)")
    g.stamp(6)
    g("s_barrier")
    g.stamp(7)
    P = 80
    for ch in range(2):
        for q in range(4):
            g("ds_read_b128 %s, v%d offset:%d" % (vr(P + 16 * ch + 4 * q, 4), (VT, VT2)[ch], q * W2P))
    U = 112
    g("ds_read_b64 %s, v12" % vr(U, 2))
    g("ds_read_b64 %s, v12 offset:4608" % vr(U + 2, 2))
    sk = g.newlabel("PH")
    g("s_cmp_lt_u32 s2, 32")
    g("s_cbranch_scc1 %s" % sk)
    publish(g, pub_h, 16)
    g.label(sk)
    w2_dma(g, V_W2D, 4)
    g("s_lshl_b32 s%d, s%d, 16" % (S_T0, S_DSK))
    g("s_and_b32 s%d, s%d, 0xffff0000" % (S_T1, S_DSK))
    g("s_waitcnt lgkmcnt(0)")
    UF = 116
    for ch in range(2):
        b = P + 16 * ch
        for r in range(4):
            g("v_add_f32 v%d, v%d, v%d" % (b + r, b + r, b + 4 + r))
            g("v_add_f32 v%d, v%d, v%d" % (b + 8 + r, b + 8 + r, b + 12 + r))
        for r in range(4):
            g("v_add_f32 v%d, v%d, v%d" % (b + r, b + r, b + 8 + r))
        for k in range(2):
            g("v_lshlrev_b32 v%d, 16, v%d" % (UF + 2 * k, U + 2 * ch + k))
            g("v_and_b32 v%d, 0xffff0000, v%d" % (UF + 2 * k + 1, U + 2 * ch + k))
        for r in range(4):
            g("v_mul_f32 v%d, s%d, v%d" % (UF + r, (S_T0, S_T1)[ch], UF + r))
        for r in range(4):
            g("v_cvt_pk_bf16_f32 v%d, v%d, v%d" % (b + 4 + r, b + r, UF + r))
        for r in range(4):
            g("v_lshlrev_b32 v%d, 16, v%d" % (b + r, b + 4 + r))
            g("v_and_b32 v%d, 0xffff0000, v%d" % (b + 4 + r, b + 4 + r))
        for r in range(4):
            g("v_add_f32 v%d, v%d, v%d" % (b + r, b + r, b + 4 + r))
    AOR = 120
    for r in range(4):
        g("v_cvt_pk_bf16_f32 v%d, v%d, v%d" % (AOR + r, P + r, P + 16 + r))
    g("v_lshlrev_b32 v%d, 4, v0" % VT)
    g("s_mul_i32 s%d, s2, %d" % (S_T0, AOP))
    g("s_add_u32 s%d, s%d, %d" % (S_T0, S_T0, WS_AO))
    g.vmem("buffer_store_dwordx4 %s, v%d, %s, s%d offen sc1" % (vr(AOR, 4), VT, SRDW(S_WS), S_T0), "ao")
    g.stamp(8)
    VFL = 124
    g("s_lshr_b32 s%d, s%d, 1" % (S_T0, S_RT))
    flag_issue(g, VFL, (S_T0, 1))
    w2_rd(g, 3)
    HF = 16
    g("s_mul_i32 s%d, s%d, %d" % (S_M + 4, S_RT, 4 * 56))
    g("s_mul_i32 s%d, s%d, 7" % (S_M + 5, S_WAVE))
    g("s_add_u32 s%d, s%d, s%d" % (S_M + 4, S_M + 4, S_M + 5))
    g("s_lshl_b32 s%d, s%d, 10" % (S_M + 4, S_M + 4))
    g("s_add_u32 s%d, s%d, %d" % (S_M + 4, S_M + 4, WS_H))
    SMI = 36
    for mi in range(4):
        g("s_add_u32 s%d, s%d, %d" % (SMI + mi, S_NT, mi))
        g("s_and_b32 s%d, s%d, 3" % (SMI + mi, SMI + mi))
        g("s_mul_i32 s%d, s%d, %d" % (SMI + mi, SMI + mi, 56 * 1024))
        g("s_add_u32 s%d, s%d, s%d" % (SMI + mi, SMI + mi, S_M + 4))
    g("v_lshlrev_b32 v%d, 4, v1" % VT)
    def hload(mi):
        for j in range(7):
            g("s_add_u32 s%d, s%d, s%d" % (S_M + 5, SMI + mi, S_J + j))
            g.vmem("buffer_load_dwordx4 %s, v%d, %s, s%d offen sc1" % (vr(HF + 28 * mi + 4 * j, 4), VT, SRDW(S_WS), S_M + 5), "h%d_%d" % (mi, j))
    g("s_waitcnt lgkmcnt(0)")
    w2_dma(g, V_W2D, 5)
    w2_rd(g, 4)
    g("v_lshrrev_b32 v%d, 3, v1" % VT2)
    g("v_lshlrev_b32 v%d, 10, v%d" % (VT2, VT2))
    g("v_and_b32 v12, 7, v1")
    g("v_lshl_add_u32 v12, v12, 4, v%d" % VT2)
    g("s_lshl_b32 s%d, s%d, 16" % (S_M + 3, S_RT))
    g("s_lshl_b32 s%d, s%d, 13" % (S_T1, S_WAVE))
    g("s_add_u32 s%d, s%d, s%d" % (S_M + 3, S_M + 3, S_T1))
    g("s_lshl_b32 s%d, s%d, 7" % (S_T1, S_NT))
    g("s_add_u32 s%d, s%d, s%d" % (S_M + 3, S_M + 3, S_T1))
    g("s_waitcnt lgkmcnt(0)")
    w2_dma(g, V_W2D, 6)
    flag_check(g, VFL, 14)
    g.wait_vm("ao")
    g("s_barrier")
    g.stamp(9)
    hload(0)
    publish(g, pub_ao, VT2)
    hload(1)
    w2_rd(g, 5)
    w2_rd(g, 6)
    RA0, RA1 = 3, VT2
    g("v_and_b32 v125, 15, v1")
    g("v_lshrrev_b32 v126, 4, v1")
    g("v_lshrrev_b32 v%d, 5, v1" % RA0)
    g("v_lshl_add_u32 v%d, v%d, 2, v125" % (RA0, RA0))
    g("v_add_u32 v%d, 8, v%d" % (RA1, RA0))
    g("v_and_b32 v%d, 15, v%d" % (RA0, RA0))
    g("v_and_b32 v%d, 15, v%d" % (RA1, RA1))
    g("v_lshl_add_u32 v%d, v126, 4, v%d" % (RA0, RA0))
    g("v_lshl_add_u32 v%d, v126, 4, v%d" % (RA1, RA1))
    g("v_lshl_add_u32 v%d, v%d, 4, s%d" % (RA0, RA0, S_M + 1))
    g("v_lshl_add_u32 v%d, v%d, 4, s%d" % (RA1, RA1, S_M + 1))
    hload(2)
    g("s_waitcnt lgkmcnt(0)")
    accs = [128, 16, 44, 72]
    def redw(mi):
        if mi == 3:
            g("s_sub_u32 s%d, s%d, s%d" % (S_T0, S_KST, S_M + 1))
            g("v_add_u32 v%d, s%d, v%d" % (RA0, S_T0, RA0))
            g("v_add_u32 v%d, s%d, v%d" % (RA1, S_T0, RA1))
        for c in range(4):
            g("ds_write_b128 v%d, %s offset:%d" % ((RA0, RA1)[c & 1], vr(accs[mi] + 4 * c, 4), (mi % 3) * 4096 + c * 1024))
    XT, AOT = 32, 36
    VFL = 40
    AOG = [128, 132, 136, 140, 16, 20, 24, 28]
    AOLB = UB
    def ao_body():
        g("v_lshrrev_b32 v4, 4, v1")
        g("v_and_b32 v5, 15, v1")
        g("v_mul_u32_u24 v6, %d, v4" % AOP)
        g("v_lshl_add_u32 v6, v5, 4, v6")
        g("s_mul_i32 s%d, s%d, %d" % (S_T0, S_NT, 32 * AOP))
        g("s_lshl_b32 s%d, s%d, 8" % (S_T1, S_RT))
        g("s_add_u32 s%d, s%d, s%d" % (S_T0, S_T0, S_T1))
        g("s_add_u32 s%d, s%d, %d" % (S_T0, S_T0, WS_AO))
        for k in range(8):
            g.vmem("buffer_load_dwordx4 %s, v6, %s, s%d offen sc1" % (vr(AOG[k], 4), SRDW(S_WS), S_T0), "0:aot")
            if k < 7:
                g("s_add_u32 s%d, s%d, %d" % (S_T0, S_T0, 4 * AOP))
        g("v_mul_u32_u24 v6, 272, v4")
        g("v_lshl_add_u32 v6, v5, 4, v6")
        g("v_add_u32 v6, %d, v6" % AOLB)
    for mi in range(4):
        a0 = accs[mi]
        for j in range(7):
            g.wait_vm("h%d_%d" % (mi, j))
            for c in range(4):
                a = a0 + 4 * c
                g("v_mfma_f32_16x16x32_bf16 %s, %s, %s, %s" % (vr(a, 4), vr(W2F + 16 * j + 4 * c, 4), vr(HF + 28 * mi + 4 * j, 4), "0" if j == 0 else vr(a, 4)))
            if mi == 1 and j == 1:
                flag_issue(g, VFL, (S_NT, 17))
                hload(3)
                g.vmem("buffer_load_dwordx4 %s, v12, %s, s%d offen" % (vr(XT, 4), SRDW(S_X), S_M + 3), "xt")
            if j == 2 and mi > 0:
                redw(mi - 1)
        if mi == 2:
            g("s_waitcnt lgkmcnt(0)")
            flag_check(g, VFL, 32, body=ao_body)
    g.stamp(10)
    g("s_lshr_b32 s%d, s%d, 1" % (S_T0, S_WAVE))
    g("s_sub_u32 s%d, s%d, s%d" % (S_T0, S_T0, S_NT))
    g("s_and_b32 s%d, s%d, 3" % (S_T0, S_T0))
    g("s_lshl_b32 s%d, s%d, 12" % (S_T1, S_T0))
    g("s_mov_b32 s%d, %d" % (S_T2, W2P))
    g("s_cmp_eq_u32 s%d, 3" % S_T0)
    g("s_cmov_b32 s%d, %d" % (S_T1, KC))
    g("s_cmov_b32 s%d, 4096" % S_T2)
    g("v_lshrrev_b32 v7, 3, v1")
    g("s_and_b32 s%d, s%d, 1" % (S_T0, S_WAVE))
    g("s_lshl_b32 s%d, s%d, 3" % (S_T0, S_T0))
    g("v_add_u32 v8, s%d, v7" % S_T0)
    g("v_and_b32 v9, 3, v1")
    g("v_lshl_add_u32 v8, v9, 2, v8")
    g("v_and_b32 v8, 15, v8")
    g("v_and_b32 v9, 1, v1")
    g("v_lshl_add_u32 v8, v9, 5, v8")
    g("v_lshlrev_b32 v8, 4, v8")
    g("v_bfe_u32 v9, v1, 1, 2")
    g("v_lshl_add_u32 v8, v9, 10, v8")
    RD = 60
    g("v_add_u32 v%d, s%d, v8" % (RD, S_T1))
    redw(3)
    for w in range(1, 8):
        g("v_add_u32 v%d, s%d, v%d" % (RD + w, S_T2, RD + w - 1))
    g("v_and_b32 v9, 7, v1")
    g("v_mul_u32_u24 v11, 1088, v9")
    g("v_lshl_add_u32 v11, v7, 2, v11")
    g("s_lshl_b32 s%d, s%d, 5" % (S_T0, S_WAVE))
    g("s_add_u32 s%d, s%d, %d" % (S_T0, S_T0, AOLB))
    g("v_add_u32 v11, s%d, v11" % S_T0)
    g.wait_vm("xt")
    sk = w0(g)
    g("s_waitcnt vmcnt(0)")
    for k in range(8):
        g("ds_write_b128 v6, %s offset:%d" % (vr(AOG[k], 4), 4 * 272 * k))
    g.label(sk)
    g("s_waitcnt lgkmcnt(0)")
    g("s_barrier")
    g.stamp(11)
    R = 144
    for w in range(8):
        for hh in range(2):
            g("ds_read_b128 %s, v%d offset:%d" % (vr(R + 8 * w + 4 * hh, 4), RD + w, hh * 256))
    for j in range(4):
        g("ds_read_b32 v%d, v11 offset:%d" % (AOT + j, 272 * j))
    T = 88
    for k in range(4):
        g("v_lshlrev_b32 v%d, 16, v%d" % (T + 2 * k, XT + k))
        g("v_and_b32 v%d, 0xffff0000, v%d" % (T + 2 * k + 1, XT + k))
    g("s_waitcnt lgkmcnt(0)")
    for step in (32, 16, 8):
        for b in range(0, step, 8):
            for r in range(8):
                g("v_add_f32 v%d, v%d, v%d" % (R + b + r, R + b + r, R + b + step + r))
    for k in range(4):
        g("v_lshlrev_b32 v%d, 16, v%d" % (T + 8 + 2 * k, AOT + k))
        g("v_and_b32 v%d, 0xffff0000, v%d" % (T + 8 + 2 * k + 1, AOT + k))
    for r in range(8):
        g("v_add_f32 v%d, v%d, v%d" % (T + r, T + r, T + 8 + r))
    for r in range(8):
        g("v_cvt_pk_bf16_f32 v%d, v%d, v%d" % (T + 8 + r, T + r, R + r))
    for r in range(8):
        g("v_lshlrev_b32 v%d, 16, v%d" % (T + r, T + 8 + r))
        g("v_and_b32 v%d, 0xffff0000, v%d" % (T + 8 + r, T + 8 + r))
    for r in range(8):
        g("v_add_f32 v%d, v%d, v%d" % (T + r, T + r, T + 8 + r))
    for k in range(4):
        g("v_cvt_pk_bf16_f32 v%d, v%d, v%d" % (R + k, T + 2 * k, T + 2 * k + 1))
    g("buffer_store_dwordx4 %s, v12, %s, s%d offen" % (vr(R, 4), SRDW(S_OUT), S_M + 3))
    if OPT["dbgtime"]:
        sk = w0(g)
        g("s_and_b32 s%d, s2, 63" % S_T0)
        g("s_cmp_lg_u32 s%d, 40" % S_T0)
        g("s_cbranch_scc1 %s" % sk)
        g("s_memtime s[94:95]")
        g("s_memrealtime s[96:97]")
        g("s_waitcnt lgkmcnt(0)")
        g("s_sub_u32 s94, s94, s98")
        g("v_mov_b32 v20, s94")
        g("v_mov_b32 v21, s100")
        g("v_mov_b32 v22, s96")
        g("s_lshr_b32 s%d, s2, 6" % S_T0)
        g("s_mul_i32 s%d, s%d, 12" % (S_T0, S_T0))
        g("s_add_u32 s%d, s%d, 4" % (S_T0, S_T0))
        g("s_mov_b64 exec, 1")
        g("buffer_store_dwordx3 v[20:22], off, %s, s%d" % (SRDW(S_DBG), S_T0))
        g.label(sk)
    if g.ts:
        g.stamp(12)
        g.stamp(13)
        g("s_memrealtime s[98:99]")
        g("s_waitcnt lgkmcnt(0)")
        g("v_writelane_b32 v%d, s98, 14" % g.VTS)
        g("s_lshl_b32 s%d, s2, 11" % S_T0)
        g("s_lshl_b32 s%d, s%d, 8" % (S_T1, S_WAVE))
        g("s_add_u32 s%d, s%d, s%d" % (S_T0, S_T0, S_T1))
        g("s_add_u32 s%d, s%d, %d" % (S_T0, S_T0, WS_TS))
        g("buffer_store_dword v%d, v2, %s, s%d offen" % (g.VTS, SRDW(S_WS), S_T0))


HEADER = open("parallel_sum__ssm_conv_s4d__glu_gated_swiglu__prompt.s.ref").read().split("; Override launch")[0]


def emit(ts=False):
    g = gen(ts)
    body = "\n".join(g.L)
    return HEADER + """; @launch grid=(256,1,1) block=(512,1,1) lds=163840
.amdgcn_target "amdgcn-amd-amdhsa--gfx950"
.text
.globl %s
.p2align 8
.type %s,@function
%s:
%s
.fill 3072, 4, 0xBF800000
.section .rodata,"a"
.p2align 6
.amdhsa_kernel %s
  .amdhsa_next_free_vgpr 256
  .amdhsa_next_free_sgpr 102
  .amdhsa_accum_offset 256
  .amdhsa_group_segment_fixed_size 0
  .amdhsa_kernarg_size 112
  .amdhsa_user_sgpr_count 2
  .amdhsa_user_sgpr_kernarg_segment_ptr 1
  .amdhsa_system_sgpr_workgroup_id_x 1
.end_amdhsa_kernel
""" % (KNAME, KNAME, KNAME, body, KNAME)


if __name__ == "__main__":
    ts = "--ts" in sys.argv
    for a in sys.argv[1:]:
        if a.startswith("--") and "=" in a:
            k, v = a[2:].split("=")
            OPT[k] = int(v)
    out = [a for a in sys.argv[1:] if not a.startswith("--")]
    path = out[0] if out else "k.s"
    open(path, "w").write(emit(ts))
    print("wrote", path)
```

```python
import sys, struct

KNAME = "parallel_sum__ssm_conv_s4d__glu_gated_swiglu__prompt_kernel"

WS_XNT = 0
XP = 65536 + 256
WS_STATS = 3 << 20
WS_FLG = WS_STATS + 65536
FP = 384
WS_PCS = WS_STATS + 131072
WS_H = 4 << 20
WS_AO = 12 << 20
AOP = 8192 + 128
WS_TS = 15 << 20
WS_SIZE = 16 << 20

KV_PITCH = 3072
KV_BIAS = 0x3F7F
KV_ZERO = 0x4500 - KV_BIAS + 1
KV_DUMP = KV_ZERO + 1
LOG2E, NLOG2E, INV2PI = 0x3FB8AA3B, 0xBFB8AA3B, 0x3E22F983

XBASE, WBASE = 0, 49152
KC = 114688
UB = KC + 33280
KVT = UB + 9216
SCL = KVT
NWL = KVT + 6144
TP = 272
TUNIT = 57 * TP
PART = 65536
SLOT = {"s0": 0, "s1": 32768, "s2": 65536, "k": KC}

OPT = dict(auxpf=2, dbgtime=0, ntx=3, h0=10, fa=22, aprio=1, cprio=0)


class Gen:
    def __init__(self, ts=False):
        self.L, self.vm, self.ts, self.lbl = [], [], ts, 0

    def __call__(self, s):
        self.L.append("    " + s)

    def label(self, l):
        self.L.append(l + ":")

    def newlabel(self, p="L"):
        self.lbl += 1
        return "%s_%d" % (p, self.lbl)

    def vmem(self, s, tag):
        self(s)
        self.vm.append(tag)

    def wait_vm(self, tags, extra=""):
        if isinstance(tags, str):
            tags = [tags]
        last = -1
        for i, t in enumerate(self.vm):
            if t in tags:
                last = i
        if last < 0:
            if extra:
                self("s_waitcnt " + extra)
            return
        w0 = any(t.startswith("0:") for t in tags)
        n = len([t for t in self.vm[last + 1:] if w0 or not t.startswith("0:")])
        assert n <= 63, n
        self("s_waitcnt vmcnt(%d) %s" % (n, extra))
        if w0:
            self.vm = [t for i, t in enumerate(self.vm) if i > last or not t.startswith("0:")]
        else:
            self.vm = self.vm[last + 1:]

    def wait_vm_all(self, extra=""):
        self("s_waitcnt vmcnt(0) %s" % extra)
        self.vm = []

    def stamp(self, idx):
        if not self.ts:
            return
        self("s_memtime s[98:99]")
        self("s_waitcnt lgkmcnt(0)")
        self("v_writelane_b32 v15, s98, %d" % idx)

    def emit(self, lst):
        for x in lst:
            if callable(x):
                x()
            elif isinstance(x, tuple):
                self.vmem(*x)
            else:
                self(x)


def vr(a, n=1):
    return "v%d" % a if n == 1 else "v[%d:%d]" % (a, a + n - 1)


def fimm(k):
    if k == 0:
        return "0"
    if k in (1, 2, 4):
        return "%d.0" % k
    return "0x%08x" % struct.unpack("<I", struct.pack("<f", float(k)))[0]


S_X, S_W1, S_W3, S_W2, S_OUT, S_DBG, S_WS = 4, 8, 12, 16, 20, 24, 28
S_WAVE, S_MT, S_FT, S_ROT = 32, 33, 34, 35
S_WOFF, S_XOFF = 36, 44
S_AK = 52
S_T0, S_T1, S_T2, S_T3 = 53, 54, 55, 56
S_RT, S_NT, S_LDT = 57, 58, 59
S_EX, S_CNT, S_DSK = 60, 62, 63
P_LAR, P_AIM, P_CR, P_CI, P_LDT, P_DSK = 66, 68, 70, 72, 74, 76
S_J, S_W2G, S_STG, S_HB, S_OUTO, S_HST = 64, 71, 72, 73, 77, 78
S_OB = 82
S_KH, S_KL, S_FA2, S_NONCE, S_FA = 84, 85, 87, 90, 91
S_M = 92
VT, VT2 = 13, 14
LEAD = 4
SRDW = lambda s: "s[%d:%d]" % (s, s + 3)
PRM = 240
W2F, HF, ACC0 = 128, 16, 240
V_W2D, V_W2A, V_CR, V_CU = 244, 245, 249, 250


def srd(g, d, p, nbytes):
    g("s_mov_b32 s%d, s%d" % (d, p))
    g("s_mov_b32 s%d, s%d" % (d + 1, p + 1))
    g("s_mov_b32 s%d, 0x%x" % (d + 2, nbytes))
    g("s_mov_b32 s%d, 0x00020000" % (d + 3))


def lead(g):
    sk = g.newlabel("W0")
    g("s_cmp_lg_u32 s%d, %d" % (S_WAVE, LEAD))
    g("s_cbranch_scc1 %s" % sk)
    return sk


def nonce_write(g):
    sk = g.newlabel("NW")
    g("s_or_b32 s%d, s2, s%d" % (S_CNT, S_WAVE))
    g("s_cmp_lg_u32 s%d, 0" % S_CNT)
    g("s_cbranch_scc1 %s" % sk)
    g("s_memrealtime s[96:97]")
    g("s_waitcnt lgkmcnt(0)")
    g("s_or_b32 s%d, s96, 1" % S_CNT)
    g("v_mov_b32 v%d, s%d" % (VT2, S_CNT))
    g("s_mov_b64 exec, 1")
    g("buffer_store_dword v%d, v2, %s, 0 offen sc1" % (VT2, SRDW(S_DBG)))
    g("s_mov_b64 exec, -1")
    g.label(sk)


def nonce_issue(g, vf):
    sk = lead(g)
    g.vmem("buffer_load_dword v%d, off, %s, 0 sc1" % (vf, SRDW(S_DBG)), "0:nonce")
    g.label(sk)


def nonce_check(g, vf):
    sk = lead(g)
    lp, ok = g.newlabel("NP"), g.newlabel("NK")
    g.wait_vm("0:nonce")
    g("s_mov_b32 s%d, 0" % S_CNT)
    g.label(lp)
    g("v_readfirstlane_b32 s%d, v%d" % (S_NONCE, vf))
    g("s_add_u32 s%d, s%d, 1" % (S_CNT, S_CNT))
    g("s_nop 2")
    g("s_cmp_lg_u32 s%d, 0" % S_NONCE)
    g("s_cbranch_scc1 %s" % ok)
    g("s_cmp_ge_u32 s%d, 0x4000" % S_CNT)
    g("s_cbranch_scc1 %s" % ok)
    g("s_sleep 8")
    g("buffer_load_dword v%d, off, %s, 0 sc1" % (vf, SRDW(S_DBG)))
    g("s_waitcnt vmcnt(0)")
    g("s_branch %s" % lp)
    g.label(ok)
    g.label(sk)


def flag_addr(g, sfa, line):
    sg, c = line
    if sg is None:
        g("s_mov_b32 s%d, %d" % (sfa, WS_FLG + c * FP))
    else:
        g("s_mul_i32 s%d, s%d, %d" % (sfa, sg, FP))
        g("s_add_u32 s%d, s%d, %d" % (sfa, sfa, WS_FLG + c * FP))


def flag_issue(g, vf, line, tag="0:flag", sfa=S_FA):
    sk = lead(g) if tag.startswith("0:") else None
    flag_addr(g, sfa, line)
    g.vmem("buffer_load_dword v%d, v2, %s, s%d offen sc1" % (vf, SRDW(S_WS), sfa), tag)
    if sk:
        g.label(sk)


def flag_check(g, vf, count, tag="0:flag", sfa=S_FA):
    lp = g.newlabel("POLL")
    done = lead(g) if tag.startswith("0:") else g.newlabel("POLLD")
    g.wait_vm(tag)
    g("s_mov_b32 s%d, 0" % S_CNT)
    g.label(lp)
    g("v_cmp_ne_u32 vcc, s%d, v%d" % (S_NONCE, vf))
    g("s_add_u32 s%d, s%d, 1" % (S_CNT, S_CNT))
    g("s_and_b32 s%d, vcc_lo, 0x%x" % (S_EX, (1 << count) - 1))
    g("s_cbranch_scc0 %s" % done)
    g("s_cmp_ge_u32 s%d, 0x4000" % S_CNT)
    g("s_cbranch_scc1 %s" % done)
    g("s_sleep 3")
    g("buffer_load_dword v%d, v2, %s, s%d offen sc1" % (vf, SRDW(S_WS), sfa))
    g("s_waitcnt vmcnt(0)")
    g("s_branch %s" % lp)
    g.label(done)


def publish(g, line, slot, vtmp):
    sk = lead(g)
    flag_addr(g, S_CNT, line)
    slot()
    g("s_add_u32 s%d, s%d, s%d" % (S_CNT, S_CNT, S_EX))
    g("v_mov_b32 v%d, s%d" % (vtmp, S_NONCE))
    g("s_mov_b64 exec, 1")
    g("buffer_store_dword v%d, off, %s, s%d sc1" % (vtmp, SRDW(S_WS), S_CNT))
    g("s_mov_b64 exec, -1")
    g.label(sk)


def rnd_bf16(g, d, s):
    g("v_cvt_pk_bf16_f32 v%d, v%d, v%d" % (d, s, s))
    g("v_lshlrev_b32 v%d, 16, v%d" % (d, d))


def cmul1(d, a, b):
    return "v_pk_mul_f32 %s, %s, %s op_sel:[0,0] op_sel_hi:[0,1]" % (vr(d, 2), vr(a, 2), vr(b, 2))


def cmul2(d, a, b):
    return "v_pk_fma_f32 %s, %s, %s, %s op_sel:[1,1,0] op_sel_hi:[1,0,1] neg_lo:[0,1,0]" % (vr(d, 2), vr(a, 2), vr(b, 2), vr(d, 2))


ROWS = {}
for _g in range(4):
    for _r in range(4):
        ROWS[(0, 4 * _g + _r)] = 4 * (_g & 1) + 128 * (_g >> 1) + _r
        ROWS[(1, 4 * _g + _r)] = (256 + 128 * (_g & 1) + 2 * _r) if _g < 2 else (512 + 4 * (_g & 1) + 128 * _r)
        ROWS[(2, 4 * _g + _r)] = 1024 + 512 * _g + 128 * _r
POS2ROW = {p: 16 + 16 * t + m for (t, m), p in ROWS.items() if p <= 2048}
UNITS = [KC, KC + TUNIT, XBASE + 2 * 16384, WBASE + 3 * 16384]
K_WR = 12
K_R0, K_R1, K_OA, K_IX, K_CP, K_ZE, K_DA = 200, 201, 202, 210, 221, 222, 224
K_AA = 235
K_FB, K_FA = 16, 48


def k_wr(g):
    g("s_and_b32 s%d, s%d, 3" % (S_T0, S_WAVE))
    g("s_mov_b32 s%d, %d" % (S_T1, UNITS[0]))
    for u in range(1, 4):
        g("s_cmp_eq_u32 s%d, %d" % (S_T0, u))
        g("s_cmov_b32 s%d, %d" % (S_T1, UNITS[u]))
    g("v_add_u32 v%d, s%d, v2" % (K_WR, S_T1))
    g("s_and_b32 s%d, s%d, 1" % (S_T1, S_T0))
    g("s_lshl_b32 s%d, s%d, 4" % (S_T1, S_T1))
    g("s_sub_u32 s%d, 16, s%d" % (S_KH, S_T1))
    g("s_lshr_b32 s%d, s%d, 1" % (S_T1, S_T0))
    g("s_lshl_b32 s%d, s%d, 4" % (S_T1, S_T1))
    g("s_sub_u32 s%d, 16, s%d" % (S_KL, S_T1))


def k_chains(g, part):
    Q = 16
    LAR, AIM, CR, CI = Q, Q + 1, Q + 2, Q + 3
    DT, ER, TU = Q + 4, Q + 5, Q + 6
    TA, TB = Q, Q + 1
    g("s_lshl_b32 s%d, s%d, s%d" % (S_T2, S_LDT, S_KL))
    g("s_and_b32 s%d, s%d, 0xffff0000" % (S_T2, S_T2))
    for k in range(4):
        g("v_lshlrev_b32 v%d, s%d, v%d" % (Q + k, S_KH, PRM + k))
    for k in range(4):
        g("v_and_b32 v%d, 0xffff0000, v%d" % (Q + k, Q + k))
    g("v_mov_b32 v%d, 0x%x" % (DT, LOG2E))
    g("v_mul_f32 v%d, s%d, v%d" % (DT, S_T2, DT))
    g("v_mul_f32 v%d, 0x%x, v%d" % (ER, LOG2E, LAR))
    g("v_exp_f32 v%d, v%d" % (DT, DT))
    g("v_exp_f32 v%d, v%d" % (ER, ER))
    g("s_nop 0")
    rnd_bf16(g, DT, DT)
    rnd_bf16(g, ER, ER)
    g("v_mul_f32 v%d, v%d, v%d" % (ER, ER, DT))
    g("v_mul_f32 v%d, v%d, v%d" % (TU, AIM, DT))
    g("v_mul_f32 v%d, 0x%x, v%d" % (ER, NLOG2E, ER))
    g("v_mul_f32 v%d, 0x%x, v%d" % (TU, INV2PI, TU))
    E = {}
    nxt = [Q + 8]
    def al(n):
        E[n] = nxt[0]; nxt[0] += 2
        return E[n]
    def directs(lst):
        tm = [al("t%d" % i) for i in range(len(lst))]
        ds = [al(p) for p, _ in lst]
        for (p, c), t in zip(lst, tm):
            g("v_mul_f32 v%d, %s, v%d" % (t, fimm(p), ER))
            g("v_mul_f32 v%d, %s, v%d" % (t + 1, fimm(p), TU))
        for t in tm:
            g("v_exp_f32 v%d, v%d" % (t, t))
            g("v_fract_f32 v%d, v%d" % (t + 1, t + 1))
        for t, d in zip(tm, ds):
            g("v_cos_f32 v%d, v%d" % (d, t + 1))
            g("v_sin_f32 v%d, v%d" % (d + 1, t + 1))
        g("s_nop 0")
        for (p, c), t, d in zip(lst, tm, ds):
            g("v_mul_f32 v%d, v%d, v%d" % (d, d, t))
            g("v_mul_f32 v%d, %sv%d, v%d" % (d + 1, "-" if c else "", d + 1, t))
    def run(chains, tmp0):
        streams = []
        ti = [0]
        for ci, c in enumerate(chains):
            s = []
            for op in c:
                if op[0] == "mul":
                    s += [cmul1(*op[1:]), cmul2(*op[1:])]
                else:
                    t = tmp0 + 2 * ci + (ti[0] & 1)
                    ti[0] += 1
                    s.append("v_cvt_pk_bf16_f32 v%d, v%d, v%d" % (t, op[2], op[2] + 1))
                    s.append("ds_write_b32 v%d, v%d offset:%d" % (K_WR, t, op[1] * TP))
            streams.append(s)
        while any(streams):
            for s in streams:
                if s:
                    g(s.pop(0))
    if part == 0:
        GA, GB, GC, GD = al("ga"), al("gb"), al("gc"), al("gd")
        g("v_add_f32 v%d, v%d, v%d" % (DT, DT, DT))
        g("v_mul_f32 v%d, v%d, v%d" % (GA, CR, DT))
        g("v_mul_f32 v%d, -v%d, v%d" % (GA + 1, CI, DT))
        directs([(8, True), (1, False), (128, False), (64, True)])
        for p in range(2, 8):
            al(p)
        PA, PB = al("pa"), al("pb")
        T0 = nxt[0]
        c1, cur, nx = [], GA, GB
        c2 = [("mul", GC, GA, E[64])]
        for b in range(8):
            c1.append(("put", b, cur))
            if b < 7:
                c1.append(("mul", nx, cur, E[8])); cur, nx = nx, cur
        cur, nx = GC, GD
        for b in range(8, 16):
            c2.append(("put", b, cur))
            if b < 15:
                c2.append(("mul", nx, cur, E[8])); cur, nx = nx, cur
        c3 = [("put", POS2ROW[1], E[1]), ("put", POS2ROW[128], E[128])]
        for p in range(2, 8):
            c3 += [("mul", E[p], E[p - 1], E[1]), ("put", POS2ROW[p], E[p])]
        g("v_mov_b32 v%d, 0x00003f80" % TA)
        g("ds_write_b32 v%d, v%d offset:%d" % (K_WR, TA, POS2ROW[0] * TP))
        run([c2, c1, c3], T0)
        ca, cb = [], []
        for p in range(1, 8):
            (ca if p & 1 else cb).extend([("mul", PA if p & 1 else PB, E[p], E[128]), ("put", POS2ROW[128 + p], PA if p & 1 else PB)])
        run([ca, cb], T0)
    else:
        directs([(2, False), (128, False), (1024, False)])
        al(4); al(6)
        for h in list(range(2, 8)) + list(range(9, 17)):
            al(128 * h)
        PA, PB = al("pa"), al("pb")
        T0 = nxt[0]
        c1 = []
        for h in range(2, 8):
            c1 += [("mul", E[128 * h], E[128 * (h - 1)], E[128]), ("put", POS2ROW[128 * h], E[128 * h])]
        c2 = [("put", POS2ROW[1024], E[1024])]
        for h in range(9, 17):
            c2 += [("mul", E[128 * h], E[128 * (h - 1)], E[128]), ("put", POS2ROW[128 * h], E[128 * h])]
        c3 = [("mul", E[4], E[2], E[2]), ("mul", E[6], E[4], E[2])]
        run([c1, c2, c3], T0)
        prods = [p for p in sorted(POS2ROW) if p >= 256 and (p & 127)]
        ca, cb = [], []
        for i, p in enumerate(prods):
            d = (PA, PB)[i & 1]
            (ca, cb)[i & 1].extend([("mul", d, E[p & 127], E[p & ~127]), ("put", POS2ROW[p], d)])
        run([ca, cb], T0)
    assert nxt[0] + 8 <= 112


def k_raddr(g):
    g("v_and_b32 v%d, 15, v1" % VT)
    g("v_lshrrev_b32 v%d, 4, v1" % VT2)
    g("v_mul_u32_u24 v%d, %d, v%d" % (K_R0, TP, VT))
    g("v_lshl_add_u32 v%d, v%d, 4, v%d" % (K_R0, VT2, K_R0))
    g("s_bitcmp1_b32 s%d, 1" % S_WAVE)
    g("s_mov_b32 s%d, %d" % (S_T0, UNITS[0]))
    g("s_cmov_b32 s%d, %d" % (S_T0, UNITS[2]))
    g("s_mov_b32 s%d, %d" % (S_T1, UNITS[1]))
    g("s_cmov_b32 s%d, %d" % (S_T1, UNITS[3]))
    g("v_add_u32 v%d, s%d, v%d" % (K_R1, S_T1, K_R0))
    g("v_add_u32 v%d, s%d, v%d" % (K_R0, S_T0, K_R0))
    g("s_and_b32 s%d, s%d, 1" % (S_T0, S_WAVE))
    g("s_mul_i32 s%d, s%d, %d" % (S_T0, S_T0, 32 * TP))
    g("v_add_u32 v%d, s%d, v%d" % (K_AA, S_T0, K_R0))
    g("v_add_u32 v%d, s%d, v%d" % (K_AA + 1, S_T0, K_R1))


def k_reads():
    r = []
    for hf in range(2):
        for ks in range(4):
            r.append("ds_read_b128 %s, v%d offset:%d" % (vr(K_FB + 16 * hf + 4 * ks, 4), (K_R0, K_R1)[hf], 64 * ks))
            for t in range(2):
                r.append("ds_read_b128 %s, v%d offset:%d" % (vr(K_FA + 32 * t + 16 * hf + 4 * ks, 4), K_AA + hf, (16 + 16 * t) * TP + 64 * ks))
    return r


def k_mfmas():
    r = []
    for i in range(8):
        for t in range(2):
            d = K_DA + 4 * t
            r.append("v_mfma_f32_16x16x32_bf16 %s, %s, %s, %s" % (vr(d, 4), vr(K_FA + 32 * t + 4 * i, 4), vr(K_FB + 4 * i, 4), "0" if i == 0 else vr(d, 4)))
    return r


def k_oaddr(g):
    tabs = [(0, 256, 1024, 4096), (128, 512, 2048, 4096), (4, 128, 512, 0), (4, 4, 512, 0), (1, 2, 128, 0), (1, 128, 128, 0)]
    SB = 92
    g("v_and_b32 v%d, 15, v1" % VT)
    g("v_bfe_u32 v%d, v1, 4, 1" % VT2)
    g("s_bfe_u32 s%d, s%d, 0x10001" % (S_T2, S_WAVE))
    g("s_mul_i32 s%d, s%d, %d" % (S_T1, S_T2, KV_PITCH))
    g("s_add_u32 s%d, s%d, %d" % (S_T1, S_T1, KVT - 2 * KV_BIAS))
    g("v_mov_b32 v198, %d" % (KV_BIAS + KV_DUMP))
    g("s_add_u32 s%d, s%d, %d" % (S_T0, S_T1, 2 * (KV_BIAS + KV_ZERO)))
    g("v_mov_b32 v%d, s%d" % (K_ZE, S_T0))
    for t in range(2):
        g("s_bitcmp1_b32 s%d, 0" % S_WAVE)
        for i, tb in enumerate(tabs):
            g("s_mov_b32 s%d, %d" % (SB + i, tb[t]))
            g("s_cmov_b32 s%d, %d" % (SB + i, tb[2 + t]))
        g("v_cmp_le_u32 vcc, 32, v1")
        for i in range(3):
            g("v_mov_b32 v%d, s%d" % (192 + i, SB + 2 * i))
            g("v_mov_b32 v%d, s%d" % (195 + i, SB + 2 * i + 1))
        for i in range(3):
            g("v_cndmask_b32 v%d, v%d, v%d, vcc" % (192 + i, 192 + i, 195 + i))
        g("v_mad_u32_u24 v192, v%d, v193, v192" % VT2)
        g("v_lshl_add_u32 v192, v%d, 3, v192" % VT)
        for r in range(4):
            o = K_OA + 4 * t + r
            g("v_cvt_f32_u32 v%d, v192" % o)
            g("v_cmp_lt_u32 vcc, 2048, v192")
            g("v_lshrrev_b32 v%d, 16, v%d" % (o, o))
            g("v_max_u32 v%d, %d, v%d" % (o, KV_BIAS, o))
            g("v_cndmask_b32 v%d, v%d, v198, vcc" % (o, o))
            g("v_lshl_add_u32 v%d, v%d, 1, s%d" % (o, o, S_T1))
            if r < 3:
                g("v_add_u32 v192, v192, v194")


def k_table():
    r = ["v_mov_b32 v%d, 0" % VT, "ds_write_b16 v%d, v%d" % (K_ZE, VT)]
    for k in range(8):
        r.append("v_cvt_pk_bf16_f32 v%d, v%d, v%d" % (K_DA + k, K_DA + k, K_DA + k))
    for k in range(8):
        r.append("ds_write_b16 v%d, v%d" % (K_OA + k, K_DA + k))
    return r


def k_idx():
    r = ["v_and_b32 v%d, 255, v0" % K_CP,
         "v_lshlrev_b32 v192, 3, v%d" % K_CP,
         "v_sub_u32 v192, 2047, v192",
         "v_cvt_f32_i32 v192, v192",
         "v_mov_b32 v193, %d" % (KV_BIAS + KV_ZERO),
         "s_mov_b32 s%d, %d" % (S_KH, KVT - 2 * KV_BIAS),
         "s_mov_b32 s%d, %d" % (S_KL, KV_BIAS),
         "v_lshlrev_b32 v%d, 4, v%d" % (K_CP, K_CP),
         "v_add_u32 v%d, %d, v%d" % (K_CP, KC, K_CP)]
    for k in range(0, 12, 2):
        r.append("v_subrev_f32 v194, %s, v192" % fimm(k))
        r.append("v_subrev_f32 v195, %s, v192" % fimm(k + 1))
        r.append("v_cvt_pk_bf16_f32 v194, v194, v195")
        r.append("v_and_b32 v%d, 0xffff, v194" % (K_IX + k))
        if k < 10:
            r.append("v_lshrrev_b32 v%d, 16, v194" % (K_IX + k + 1))
    for k in range(11):
        r.append("v_med3_u32 v%d, v%d, s%d, v193" % (K_IX + k, K_IX + k, S_KL))
        r.append("v_lshl_add_u32 v%d, v%d, 1, s%d" % (K_IX + k, K_IX + k, S_KH))
    return r


def k_gather(ch):
    return ["ds_read_u16 v%d, v%d offset:%d" % (16 + 12 * ch + k, K_IX + k, KV_PITCH * ch) for k in range(11)]


def k_build(ch):
    D, O = 16 + 12 * ch, 40 + 16 * ch
    r = []
    for sft in range(4):
        for k in range(4):
            r.append("v_lshl_or_b32 v%d, v%d, 16, v%d" % (O + 4 * sft + k, D + sft + 2 * k + 1, D + sft + 2 * k))
        r.append("ds_write_b128 v%d, %s offset:%d" % (K_CP, vr(O + 4 * sft, 4), 4160 * sft + 16640 * ch))
    return r


def k_zero(g):
    z6, z7 = g.newlabel("Z"), g.newlabel("Z")
    g("s_cmp_lt_u32 s%d, 6" % S_WAVE)
    g("s_cbranch_scc1 %s" % z7)
    for r in range(4):
        g("v_mov_b32 v%d, 0" % (192 + r))
    g("v_lshrrev_b32 v%d, 5, v1" % VT)
    g("v_lshlrev_b32 v%d, 12, v%d" % (VT, VT))
    g("v_lshl_add_u32 v%d, v1, 4, v%d" % (VT, VT))
    g("v_add_u32 v%d, %d, v%d" % (VT, UB, VT))
    g("s_cmp_eq_u32 s%d, 6" % S_WAVE)
    g("s_cbranch_scc1 %s" % z6)
    g("v_bfe_u32 v%d, v1, 1, 3" % VT)
    g("v_mul_u32_u24 v%d, 4160, v%d" % (VT, VT))
    g("v_and_b32 v%d, 1, v1" % VT2)
    g("v_lshl_add_u32 v%d, v%d, 4, v%d" % (VT, VT2, VT))
    g("v_add_u32 v%d, %d, v%d" % (VT, KC + 4096, VT))
    g.label(z6)
    g("ds_write_b128 v%d, v[192:195]" % VT)
    g.label(z7)


def tail_consts():
    r = []
    A = r.append
    A("s_mul_i32 s%d, s%d, %d" % (S_W2G, S_WAVE, 224 * 1024))
    A("s_lshl_b32 s%d, s%d, 7" % (S_T0, S_NT))
    A("s_add_u32 s%d, s%d, s%d" % (S_W2G, S_W2G, S_T0))
    A("s_lshl_b32 s%d, s%d, 12" % (S_STG, S_WAVE))
    A("s_lshl_b32 s%d, s%d, 16" % (S_OUTO, S_RT))
    A("s_add_u32 s%d, s%d, s%d" % (S_OUTO, S_OUTO, S_T0))
    A("s_lshl_b32 s%d, s%d, 13" % (S_T1, S_WAVE))
    A("s_add_u32 s%d, s%d, s%d" % (S_OUTO, S_OUTO, S_T1))
    A("s_lshr_b32 s%d, s2, 2" % S_T0)
    A("s_and_b32 s%d, s%d, 6" % (S_T0, S_T0))
    A("s_and_b32 s%d, s2, 7" % S_T1)
    A("s_add_u32 s%d, s%d, s%d" % (S_T0, S_T0, S_T1))
    for j in range(7):
        if j:
            A("s_add_u32 s%d, s%d, 1" % (S_T0, S_T0))
        A("s_sub_u32 s%d, s%d, 7" % (S_T1, S_T0))
        A("s_cmp_ge_u32 s%d, 7" % S_T0)
        A("s_cselect_b32 s%d, s%d, s%d" % (S_T0, S_T1, S_T0))
        A("s_lshl_b32 s%d, s%d, 10" % (S_J + j, S_T0))
    A("s_mul_i32 s%d, s%d, %d" % (S_T0, S_RT, 4 * 56))
    A("s_mul_i32 s%d, s%d, 7" % (S_T1, S_WAVE))
    A("s_add_u32 s%d, s%d, s%d" % (S_T0, S_T0, S_T1))
    A("s_lshl_b32 s%d, s%d, 10" % (S_T0, S_T0))
    A("s_add_u32 s%d, s%d, %d" % (S_T0, S_T0, WS_H))
    for mi in range(4):
        A("s_add_u32 s%d, s%d, %d" % (S_HB + mi, S_NT, mi))
        A("s_and_b32 s%d, s%d, 3" % (S_HB + mi, S_HB + mi))
        A("s_mul_i32 s%d, s%d, %d" % (S_HB + mi, S_HB + mi, 56 * 1024))
        A("s_add_u32 s%d, s%d, s%d" % (S_HB + mi, S_HB + mi, S_T0))
    A("v_lshrrev_b32 v%d, 4, v1" % VT)
    A("v_lshlrev_b32 v%d, 1, v%d" % (VT, VT))
    A("v_xor_b32 v%d, v%d, v1" % (VT, VT))
    A("v_and_b32 v%d, 7, v%d" % (VT, VT))
    A("v_lshrrev_b32 v%d, 3, v1" % VT2)
    A("v_lshlrev_b32 v%d, 10, v%d" % (V_W2D, VT2))
    A("v_lshl_add_u32 v%d, v%d, 4, v%d" % (V_W2D, VT, V_W2D))
    A("v_and_b32 v%d, 3, v%d" % (VT2, VT2))
    A("v_lshlrev_b32 v%d, 5, v%d" % (VT2, VT2))
    A("v_lshrrev_b32 v%d, 2, v1" % VT)
    A("v_lshl_add_u32 v%d, v%d, 7, v%d" % (VT2, VT, VT2))
    A("v_and_b32 v%d, 3, v1" % V_CR)
    A("v_lshl_add_u32 v%d, v%d, 3, v%d" % (VT2, V_CR, VT2))
    A("v_add_u32 v%d, s%d, v%d" % (V_W2A, S_STG, VT2))
    for c in range(1, 4):
        A("v_xor_b32 v%d, %d, v%d" % (V_W2A + c, 32 * c, V_W2A))
    A("v_lshl_add_u32 v%d, v%d, 2, v%d" % (VT, V_CR, VT))
    A("v_and_b32 v%d, 15, v%d" % (VT, VT))
    A("v_lshl_add_u32 v%d, v%d, 4, v%d" % (VT, V_CR, VT))
    A("s_lshl_b32 s%d, s%d, 10" % (S_T0, S_WAVE))
    A("s_add_u32 s%d, s%d, %d" % (S_T0, S_T0, PART))
    A("v_lshl_add_u32 v%d, v%d, 4, s%d" % (V_CR, VT, S_T0))
    A("v_lshlrev_b32 v%d, 3, v0" % V_CU)
    A("v_add_u32 v%d, %d, v%d" % (V_CU, UB + 512, V_CU))
    return r


WLOC = ["s0", "s1", "k", "s0", "s1", "k", "s2"]


def w2_dma(g, pos, other=False):
    d = -4 if other else 0
    g("s_lshl_b32 s%d, s%d, 5" % (S_M + 2, S_J + pos))
    g("s_add_u32 s%d, s%d, s%d" % (S_M + 2, S_M + 2, S_W2G))
    if other:
        g("s_sub_u32 s%d, s%d, %d" % (S_M + 2, S_M + 2, 4 * 224 * 1024))
    for q in range(4):
        off = SLOT[WLOC[pos]] + d * 4096 + q * 1024
        g("s_add_u32 m0, s%d, %d" % (S_STG, off) if off >= 0 else "s_sub_u32 m0, s%d, %d" % (S_STG, -off))
        g("s_add_u32 s%d, s%d, %d" % (S_M + 2, S_M + 2, 8192 if q else 0))
        g.vmem("buffer_load_dwordx4 v%d, %s, s%d offen lds" % (V_W2D, SRDW(S_W2), S_M + 2), "w2_%d" % pos)


V_W2H = 4


def w2_rd(g, pos, wait=True):
    if wait:
        g.wait_vm("w2_%d" % pos)
    off = SLOT[WLOC[pos]]
    va = V_W2A
    if off >= 65536:
        va, off = V_W2H, off - 65536
    for c in range(4):
        d = W2F + 16 * pos + 4 * c
        g("ds_read_b64_tr_b16 %s, v%d offset:%d" % (vr(d, 2), va + c, off))
        g("ds_read_b64_tr_b16 %s, v%d offset:%d" % (vr(d + 2, 2), va + c, off + 2048))


def reduce8(g, p):
    g("s_nop 1")
    for i in range(4):
        g("v_permlane32_swap_b32 v%d, v%d" % (p + i, p + i + 4))
    g("s_nop 1")
    for i in range(4):
        g("v_add_f32 v%d, v%d, v%d" % (p + i, p + i, p + i + 4))
    g("s_nop 1")
    for i in range(2):
        g("v_permlane16_swap_b32 v%d, v%d" % (p + i, p + i + 2))
    g("s_nop 1")
    for i in range(2):
        g("v_add_f32 v%d, v%d, v%d" % (p + i, p + i, p + i + 2))
    for rot in (8, 4, 2, 1):
        g("s_nop 1")
        for i in range(2):
            g("v_add_f32_dpp v%d, v%d, v%d row_ror:%d row_mask:0xf bank_mask:0xf" % (p + i, p + i, p + i, rot))


UREG = 72


def u_load(g):
    g("v_bfe_u32 v%d, v0, 4, 4" % VT)
    g("v_mul_u32_u24 v%d, %d, v%d" % (VT, XP, VT))
    g("v_and_b32 v%d, 15, v0" % VT2)
    g("v_lshl_add_u32 v%d, v%d, 4, v%d" % (VT, VT2, VT))
    g("s_lshl_b32 s%d, s2, 8" % S_T1)
    g("s_add_u32 s%d, s%d, %d" % (S_T2, S_T1, 16 * XP))
    g.vmem("buffer_load_dwordx4 %s, v%d, %s, s%d offen sc1" % (vr(UREG, 4), VT, SRDW(S_WS), S_T1), "u")
    g.vmem("buffer_load_dwordx4 %s, v%d, %s, s%d offen sc1" % (vr(UREG + 4, 4), VT, SRDW(S_WS), S_T2), "u")


def u_store(g):
    g("v_bfe_u32 v%d, v0, 4, 4" % VT)
    g("v_lshlrev_b32 v%d, 7, v%d" % (VT, VT))
    g("v_and_b32 v%d, 7, v0" % VT2)
    g("v_lshl_add_u32 v%d, v%d, 4, v%d" % (VT, VT2, VT))
    g("v_bfe_u32 v%d, v0, 3, 1" % VT2)
    g("v_mul_u32_u24 v%d, 4608, v%d" % (VT2, VT2))
    g("v_add_u32 v%d, v%d, v%d" % (VT, VT, VT2))
    g("v_add_u32 v%d, %d, v%d" % (VT, UB + 512, VT))
    g.wait_vm("u")
    g("ds_write_b128 v%d, %s" % (VT, vr(UREG, 4)))
    g("ds_write_b128 v%d, %s offset:2048" % (VT, vr(UREG + 4, 4)))


VAA, VBB, VPW = 232, 233, 234


def conv_addr(g):
    g("v_and_b32 v%d, 15, v1" % VT)
    g("v_lshrrev_b32 v%d, 4, v1" % VT2)
    g("v_lshl_add_u32 v192, v%d, 3, v%d" % (VT2, VT))
    g("s_bfe_u32 s%d, s%d, 0x10001" % (S_T2, S_WAVE))
    g("s_mul_i32 s%d, s%d, 16640" % (S_T3, S_T2))
    g("s_add_u32 s%d, s%d, %d" % (S_T3, S_T3, KC))
    g("s_and_b32 s%d, s%d, 1" % (S_T0, S_WAVE))
    g("s_lshl_b32 s%d, s%d, 5" % (S_T1, S_T0))
    g("s_sub_u32 s%d, %d, s%d" % (S_T1, 2047 + 8 - 32 * 62, S_T1))
    g("v_sub_u32 v192, s%d, v192" % S_T1)
    g("v_and_b32 v193, 3, v192")
    g("v_sub_u32 v192, v192, v193")
    g("v_lshlrev_b32 v192, 1, v192")
    g("v_mul_u32_u24 v193, 4160, v193")
    g("v_add3_u32 v%d, v192, v193, s%d" % (VAA, S_T3))
    g("v_lshlrev_b32 v192, 5, v%d" % VT)
    g("v_lshlrev_b32 v193, 4, v%d" % VT2)
    g("v_sub_u32 v192, v192, v193")
    g("s_mul_i32 s%d, s%d, 4608" % (S_T1, S_T2))
    g("s_lshl_b32 s%d, s%d, 6" % (S_T0, S_T0))
    g("s_sub_u32 s%d, s%d, s%d" % (S_T1, S_T1, S_T0))
    g("s_add_u32 s%d, s%d, %d" % (S_T1, S_T1, UB + 512 - 384 + 16))
    g("v_add_u32 v%d, s%d, v192" % (VBB, S_T1))
    g("v_lshl_add_u32 v%d, v%d, 2, v%d" % (VT, VT2, VT))
    g("v_and_b32 v%d, 15, v%d" % (VT, VT))
    g("v_lshl_add_u32 v%d, v%d, 4, v%d" % (VT, VT2, VT))
    g("s_lshl_b32 s%d, s%d, 3" % (S_T0, S_AK))
    g("s_add_u32 s%d, s%d, %d" % (S_T0, S_T0, PART))
    g("v_lshl_add_u32 v%d, v%d, 4, s%d" % (VPW, VT, S_T0))


def conv(g):
    BF, CACC, AF, NA = 16, 144, 176, 4
    def rdA(ip):
        d = AF + 4 * (ip % NA)
        return ["ds_read_b64 %s, v%d offset:%d" % (vr(d, 2), VAA, 128 * (31 - ip)),
                "ds_read_b64 %s, v%d offset:%d" % (vr(d + 2, 2), VAA, 128 * (31 - ip) + 8)]
    def rdB(tau):
        return "ds_read_b128 %s, v%d offset:%d" % (vr(BF + 4 * (tau + 3), 4), VBB, 128 * (tau + 3))
    lq = []
    def lds(s_, tag):
        g(s_); lq.append(tag)
    def lwait(tags):
        last = max([i for i, t in enumerate(lq) if t in tags], default=-1)
        if last < 0:
            return
        n = len(lq) - 1 - last
        g("s_waitcnt lgkmcnt(%d)" % min(n, 15))
        del lq[:last + 1]
        if n > 15:
            del lq[:len(lq) - 15]
    for s_ in rdA(0): lds(s_, "A0")
    for j in range(8):
        lds(rdB(4 * j), "B%d" % (4 * j))
    for k in (1, 2):
        for s_ in rdA(k): lds(s_, "A%d" % k)
    dmas = [(0, True), (0, False), (1, True), (1, False)]
    for ip in range(32):
        first = True
        for j in range(ip >> 2, 8):
            tau = 4 * j - ip
            lwait(["A%d" % ip, "B%d" % tau])
            a = CACC + 4 * j
            g("v_mfma_f32_16x16x32_bf16 %s, %s, %s, %s" % (vr(a, 4), vr(AF + 4 * (ip % NA), 4), vr(BF + 4 * (tau + 3), 4), "0" if ip == 0 else vr(a, 4)))
            if ip < 3:
                lds(rdB(4 * j - ip - 1), "B%d" % (4 * j - ip - 1))
            if first and ip + 3 < 32:
                for s_ in rdA(ip + 3): lds(s_, "A%d" % (ip + 3))
            first = False
        if ip in (1, 3, 5, 7):
            w2_dma(g, *dmas.pop(0))
    g("s_nop 7")
    for j in range(8):
        g("ds_write_b128 v%d, %s offset:%d" % (VPW, vr(CACC + 4 * j, 4), j * 1024))


def cap(fn):
    t = Gen(False)
    fn(t)
    return [l.strip() for l in t.L]


def gen(ts=False):
    g = Gen(ts)
    g("s_cmp_ge_u32 s2, 256")
    g("s_cbranch_scc1 L_END")
    if OPT["dbgtime"]:
        g("s_memtime s[98:99]")
        g("s_memrealtime s[100:101]")
    g("s_load_dwordx16 s[64:79], s[0:1], 0")
    g("s_load_dwordx8 s[80:87], s[0:1], 64")
    g("s_load_dwordx4 s[88:91], s[0:1], 96")
    g("s_getpc_b64 s[%d:%d]" % (S_M, S_M + 1))
    g("s_lshr_b32 s%d, s2, 3" % S_T1)
    g("s_and_b32 s%d, s%d, 3" % (S_T2, S_T1))
    g("s_and_b32 s%d, s%d, 7" % (S_T0, S_T1))
    g("s_min_u32 s%d, s%d, 4" % (S_T0, S_T0))
    g("s_lshl_b32 s%d, s%d, 13" % (S_T0, S_T0))
    g("v_lshlrev_b32 v3, 4, v0")
    g("v_add_u32 v3, s%d, v3" % S_T0)
    g.vmem("global_load_dwordx4 v[252:255], v3, s[%d:%d]" % (S_M, S_M + 1), "code")
    g("v_and_b32 v1, 63, v0")
    g("v_lshrrev_b32 v3, 6, v0")
    g("v_lshlrev_b32 v2, 2, v1")
    g("v_readfirstlane_b32 s%d, v3" % S_WAVE)
    if ts:
        g("v_mov_b32 v15, 0")
    g("s_and_b32 s%d, s2, 7" % S_T0)
    g("s_and_b32 s%d, s2, 3" % S_RT)
    g("s_lshl_b32 s%d, s%d, 3" % (S_RT, S_RT))
    g("s_and_b32 s%d, s2, 4" % S_T3)
    g("s_add_u32 s%d, s%d, s%d" % (S_RT, S_RT, S_T3))
    g("s_add_u32 s%d, s%d, s%d" % (S_RT, S_RT, S_T2))
    g("s_lshr_b32 s%d, s2, 5" % S_NT)
    g("s_xor_b32 s%d, s%d, %d" % (S_NT, S_NT, OPT["ntx"]))
    g("s_and_b32 s%d, s%d, 3" % (S_AK, S_WAVE))
    g("s_lshl_b32 s%d, s%d, 10" % (S_AK, S_AK))
    g("s_bfe_u32 s%d, s%d, 0x10001" % (S_T3, S_WAVE))
    g("s_lshl_b32 s%d, s%d, 8" % (S_T3, S_T3))
    g("s_lshl_b32 s%d, s2, 9" % S_CNT)
    g("s_add_u32 s%d, s%d, s%d" % (S_T3, S_T3, S_CNT))
    g("v_add_u32 v%d, s%d, v2" % (VT, S_T3))
    g("s_lshl_b32 s%d, s2, 2" % S_CNT)
    g("s_sub_u32 s%d, s%d, 4" % (S_FT, S_T1))
    g("s_lshr_b32 s%d, s%d, 2" % (S_T3, S_FT))
    g("s_and_b32 s%d, s%d, 3" % (S_MT, S_T0))
    g("s_lshl_b32 s%d, s%d, 1" % (S_ROT, S_MT))
    g("s_lshl_b32 s%d, s%d, 2" % (S_MT, S_MT))
    g("s_add_u32 s%d, s%d, s%d" % (S_MT, S_MT, S_T2))
    g("s_lshr_b32 s%d, s%d, 2" % (S_FT, S_T0))
    g("s_mul_i32 s%d, s%d, 7" % (S_FT, S_FT))
    g("s_add_u32 s%d, s%d, s%d" % (S_FT, S_FT, S_T3))
    g("s_and_b32 s%d, s2, 4" % S_T3)
    g("s_add_u32 s%d, s%d, s%d" % (S_ROT, S_ROT, S_T3))
    g("s_waitcnt lgkmcnt(0)")
    for k, p in enumerate((P_LAR, P_AIM, P_CR, P_CI)):
        g.vmem("global_load_dword v%d, v%d, s[%d:%d]" % (PRM + k, VT, p, p + 1), "prm")
    g("s_load_dword s%d, s[%d:%d], s%d" % (S_LDT, P_LDT, P_LDT + 1, S_CNT))
    g("s_load_dword s%d, s[%d:%d], s%d" % (S_DSK, P_DSK, P_DSK + 1, S_CNT))
    srd(g, S_X, 64, 2097152)
    srd(g, S_W1, 80, 1835008)
    srd(g, S_W3, 82, 1835008)
    srd(g, S_W2, 84, 1835008)
    srd(g, S_OUT, 86, 2097152)
    srd(g, S_DBG, 88, 256)
    srd(g, S_WS, 90, WS_SIZE)
    nonce_write(g)
    g.stamp(0)
    g("s_cmp_lt_u32 s2, 32")
    g("s_cbranch_scc1 L_AUX")
    vm_entry = list(g.vm)
    g("s_cmp_ge_u32 s%d, 4" % S_WAVE)
    g("s_cbranch_scc1 L_A")

    V_XA0, V_XA1, V_WA = 3, 4, 5
    SETS, ACC = [16, 64], 112
    g("v_and_b32 v%d, 15, v1" % VT)
    g("v_lshrrev_b32 v%d, 4, v1" % VT2)
    g("v_lshrrev_b32 v%d, 1, v%d" % (V_XA0, VT))
    g("v_xor_b32 v%d, v%d, v%d" % (V_XA0, V_XA0, VT2))
    g("v_lshlrev_b32 v%d, 4, v%d" % (V_XA0, V_XA0))
    g("v_lshl_add_u32 v%d, v%d, 7, v%d" % (V_XA0, VT, V_XA0))
    g("s_lshr_b32 s%d, s%d, 1" % (S_T2, S_WAVE))
    g("s_lshl_b32 s%d, s%d, 13" % (S_T3, S_T2))
    g("v_add_u32 v%d, s%d, v%d" % (V_XA0, S_T3, V_XA0))
    g("v_xor_b32 v%d, 64, v%d" % (V_XA1, V_XA0))
    g("s_lshl_b32 s%d, s%d, 10" % (S_T3, S_T2))
    g("s_add_u32 s%d, s%d, %d" % (S_T3, S_T3, SCL))
    g("v_lshl_add_u32 v9, v%d, 4, s%d" % (VT, S_T3))
    g("s_and_b32 s%d, s%d, 1" % (S_T0, S_WAVE))
    g("s_lshl_b32 s%d, s%d, 8" % (S_T3, S_T0))
    g("s_add_u32 s%d, s%d, %d" % (S_T3, S_T3, SCL + 2048))
    g("v_lshl_add_u32 v10, v%d, 4, s%d" % (VT2, S_T3))
    g("v_lshrrev_b32 v%d, 2, v%d" % (VT, VT))
    g("v_and_b32 v%d, 1, v%d" % (V_WA, VT2))
    g("v_lshl_or_b32 v%d, v%d, 2, v%d" % (V_WA, V_WA, VT))
    g("s_lshl_b32 s%d, s%d, 2" % (S_T3, S_T0))
    g("v_xor_b32 v%d, s%d, v%d" % (V_WA, S_T3, V_WA))
    g("v_lshlrev_b32 v%d, 5, v%d" % (V_WA, V_WA))
    g("v_lshl_add_u32 v%d, v%d, 3, v%d" % (VT, VT2, VT))
    g("v_lshl_add_u32 v%d, v%d, 8, v%d" % (V_WA, VT, V_WA))
    g("v_and_b32 v%d, 3, v1" % VT)
    g("v_lshl_add_u32 v%d, v%d, 3, v%d" % (V_WA, VT, V_WA))
    g("v_add_u32 v%d, %d, v%d" % (V_WA, WBASE, V_WA))
    for tt in range(1, 4):
        g("v_xor_b32 v%d, %d, v%d" % (V_WA + tt, 32 * tt, V_WA))
    g("s_lshl_b32 s%d, s%d, 2" % (S_HST, S_T2))
    g("s_lshl_b32 s%d, s%d, 3" % (S_T3, S_MT))
    g("s_add_u32 s%d, s%d, s%d" % (S_HST, S_HST, S_T3))
    g("s_mul_i32 s%d, s%d, 56" % (S_HST, S_HST))
    g("s_lshl_b32 s%d, s%d, 2" % (S_T3, S_FT))
    g("s_add_u32 s%d, s%d, s%d" % (S_HST, S_HST, S_T3))
    g("s_lshl_b32 s%d, s%d, 1" % (S_T3, S_T0))
    g("s_add_u32 s%d, s%d, s%d" % (S_HST, S_HST, S_T3))
    g("s_lshl_b32 s%d, s%d, 10" % (S_HST, S_HST))
    g("s_add_u32 s%d, s%d, %d" % (S_HST, S_HST, WS_H))
    g("v_lshlrev_b32 v11, 4, v1")
    k_wr(g)
    g.emit(tail_consts())
    g.wait_vm("prm", "lgkmcnt(0)")
    g.stamp(20)
    k_chains(g, 0)
    g("s_waitcnt lgkmcnt(0)")
    g.stamp(1)
    g("s_barrier")
    g.stamp(2)

    def frag_reads(it):
        S = SETS[it & 1]
        xs = (it >> 1) % 3
        va = V_XA1 if (it & 1) else V_XA0
        so = (it % 4) * 16384
        xr = ["ds_read_b128 %s, v%d offset:%d" % (vr(S + 4 * mi, 4), va, XBASE + xs * 16384 + mi * 2048) for mi in range(4)]
        wr = []
        for mat in range(2):
            for tt in range(4):
                d = S + 16 + 4 * (4 * mat + tt)
                wr.append("ds_read_b64_tr_b16 %s, v%d offset:%d" % (vr(d, 2), V_WA + tt, so + mat * 8192))
                wr.append("ds_read_b64_tr_b16 %s, v%d offset:%d" % (vr(d + 2, 2), V_WA + tt, so + mat * 8192 + 1024))
        return xr + wr

    STR, CSR = 16, 32
    def sc_reads():
        r = ["ds_read_b128 %s, v9 offset:%d" % (vr(STR + 4 * mi, 4), mi * 256) for mi in range(4)]
        r += ["ds_read_b128 %s, v10 offset:%d" % (vr(CSR + 4 * c, 4), (c >> 2) * 512 + (c & 3) * 64) for c in range(8)]
        return r

    g.emit(frag_reads(0))
    for it in range(16):
        g("s_waitcnt lgkmcnt(0)")
        g("s_barrier")
        if it in (0, 8, 12, 15):
            g.stamp(41 + it)
        S = SETS[it & 1]
        rd = frag_reads(it + 1) if it < 15 else sc_reads()
        n = 0
        for mi in range(4):
            for c in range(8):
                a = ACC + 32 * mi + 4 * c
                g("v_mfma_f32_16x16x32_bf16 %s, %s, %s, %s" % (vr(a, 4), vr(S + 16 + 4 * c, 4), vr(S + 4 * mi, 4), "0" if it == 0 else vr(a, 4)))
                if n < len(rd):
                    g(rd[n])
                n += 1
    g.stamp(3)
    g("s_waitcnt lgkmcnt(0)")
    E, HO = 64, 80
    for mi in range(4):
        st = STR + 4 * mi
        for kp in range(2):
            ho = HO + 4 * kp
            for t2 in range(2):
                tt = 2 * kp + t2
                ag, au = ACC + 32 * mi + 4 * tt, ACC + 32 * mi + 4 * (4 + tt)
                c1, c3 = CSR + 4 * tt, CSR + 4 * (4 + tt)
                e = E + 4 * t2
                for r in range(4):
                    g("v_fma_f32 v%d, -v%d, v%d, v%d" % (ag + r, st, c1 + r, ag + r))
                for r in range(4):
                    g("v_mul_f32 v%d, v%d, v%d" % (e + r, st + 1, ag + r))
                for r in range(4):
                    g("v_exp_f32 v%d, v%d" % (e + r, e + r))
                for r in range(4):
                    g("v_fma_f32 v%d, -v%d, v%d, v%d" % (au + r, st, c3 + r, au + r))
                for r in range(4):
                    g("v_fma_f32 v%d, v%d, v%d, v%d" % (e + r, e + r, st + 2, st + 2))
                for r in range(4):
                    g("v_rcp_f32 v%d, v%d" % (e + r, e + r))
                for r in range(4):
                    g("v_mul_f32 v%d, v%d, v%d" % (ag + r, ag + r, au + r))
                for r in range(4):
                    g("v_mul_f32 v%d, v%d, v%d" % (ag + r, ag + r, e + r))
                g("v_cvt_pk_bf16_f32 v%d, v%d, v%d" % (ho + 2 * t2, ag, ag + 1))
                g("v_cvt_pk_bf16_f32 v%d, v%d, v%d" % (ho + 2 * t2 + 1, ag + 2, ag + 3))
            g.vmem("buffer_store_dwordx4 %s, v11, %s, s%d offen offset:%d sc1" % (vr(ho, 4), SRDW(S_WS), S_HST, 1024 * kp), "hst")
        if mi < 3:
            g("s_add_u32 s%d, s%d, %d" % (S_HST, S_HST, 56 * 1024))
    g.stamp(4)
    g("s_branch L_J")

    g.label("L_A")
    g.vm = list(vm_entry)
    V_WD, V_XD = 3, 7
    V_FL, V_F2, V_PA = 8, 9, 10
    g("s_lshl_b32 s%d, s%d, 8" % (S_OB, S_FT))
    g("s_lshl_b32 s%d, s%d, 17" % (S_OB + 1, S_MT))
    def offs_l(i):
        return ["s_add_u32 s%d, s%d, %d" % (S_XOFF + i, S_ROT, i),
                "s_and_b32 s%d, s%d, 7" % (S_XOFF + i, S_XOFF + i),
                "s_mul_i32 s%d, s%d, %d" % (S_WOFF + i, S_XOFF + i, 64 * 3584),
                "s_add_u32 s%d, s%d, s%d" % (S_WOFF + i, S_WOFF + i, S_OB),
                "s_lshl_b32 s%d, s%d, 7" % (S_XOFF + i, S_XOFF + i),
                "s_add_u32 s%d, s%d, s%d" % (S_XOFF + i, S_XOFF + i, S_OB + 1)]
    g.emit(offs_l(0))
    g("v_lshrrev_b32 v%d, 4, v1" % VT)
    g("s_bfe_u32 s%d, s%d, 0x10001" % (S_T2, S_WAVE))
    g("s_lshl_b32 s%d, s%d, 2" % (S_T2, S_T2))
    g("v_or_b32 v%d, s%d, v%d" % (VT2, S_T2, VT))
    g("v_lshlrev_b32 v%d, 1, v%d" % (VT2, VT2))
    g("v_and_b32 v%d, 15, v1" % V_WD)
    g("v_xor_b32 v%d, v%d, v%d" % (V_WD, V_WD, VT2))
    g("v_lshlrev_b32 v%d, 4, v%d" % (V_WD, V_WD))
    g("v_bfe_u32 v%d, v0, 4, 4" % VT)
    g("v_mul_u32_u24 v%d, 3584, v%d" % (VT2, VT))
    g("v_add_u32 v%d, v%d, v%d" % (V_WD, V_WD, VT2))
    for k in range(1, 4):
        g("v_add_u32 v%d, %d, v%d" % (V_WD + k, 16 * k * 3584, V_WD))
    g("v_xor_b32 v%d, v%d, v1" % (VT, VT))
    g("v_and_b32 v%d, 7, v%d" % (VT, VT))
    g("v_bfe_u32 v%d, v0, 3, 5" % VT2)
    g("v_lshlrev_b32 v%d, 10, v%d" % (VT2, VT2))
    g("v_lshl_add_u32 v%d, v%d, 4, v%d" % (V_XD, VT, VT2))

    def xdma(st, bs, tag):
        for b in bs:
            g("s_add_u32 m0, s%d, %d" % (S_AK, XBASE + (st % 3) * 16384 + b * 4096))
            g("s_add_u32 s%d, s%d, %d" % (S_T3, S_XOFF + st, b * 32768))
            g.vmem("buffer_load_dwordx4 v%d, %s, s%d offen lds" % (V_XD, SRDW(S_X), S_T3), tag)

    def unit(k):
        st, h = k >> 1, k & 1
        if h == 0:
            xdma(st, range(4) if k <= 4 else (2, 3), "U%d" % k)
        for mat in range(2):
            for half in range(2):
                g("s_add_u32 m0, s%d, %d" % (S_AK, WBASE + (k % 4) * 16384 + mat * 8192 + half * 4096))
                g("s_nop 0")
                g.vmem("buffer_load_dwordx4 v%d, %s, s%d offen lds" % (V_WD + 2 * h + half, SRDW((S_W1, S_W3)[mat]), S_WOFF + st), "U%d" % k)
        if h == 1 and 5 <= k < 15:
            xdma(st + 1, (0, 1), "U%d" % (k + 1))

    unit(0); unit(1)
    g.emit(offs_l(1))
    k_wr(g)
    k_raddr(g)
    g("v_bfe_u32 v%d, v1, 2, 2" % VT)
    g("v_lshrrev_b32 v%d, 4, v1" % VT2)
    g("v_and_b32 v%d, 1, v%d" % (V_PA, VT2))
    g("v_lshl_or_b32 v%d, v%d, 2, v%d" % (V_PA, V_PA, VT))
    g("s_and_b32 s%d, s%d, 3" % (S_T3, S_MT))
    g("s_lshl_b32 s%d, s%d, 1" % (S_T3, S_T3))
    g("v_xor_b32 v%d, s%d, v%d" % (V_PA, S_T3, V_PA))
    g("v_lshlrev_b32 v%d, 5, v%d" % (V_PA, V_PA))
    g("v_lshl_add_u32 v%d, v%d, 3, v%d" % (VT, VT2, VT))
    g("v_lshl_add_u32 v%d, v%d, 8, v%d" % (V_PA, VT, V_PA))
    g("v_and_b32 v%d, 3, v1" % VT)
    g("v_lshl_add_u32 v%d, v%d, 3, v%d" % (V_PA, VT, V_PA))
    g("s_bfe_u32 s%d, s%d, 0x10001" % (S_T2, S_WAVE))
    g("s_lshl_b32 s%d, s%d, 13" % (S_T2, S_T2))
    g("s_add_u32 s%d, s%d, %d" % (S_T2, S_T2, WBASE))
    g("v_add_u32 v%d, s%d, v%d" % (V_PA, S_T2, V_PA))
    g("s_and_b32 s%d, s%d, 1" % (S_T2, S_WAVE))
    g("s_lshl_b32 s%d, s%d, 5" % (S_T2, S_T2))
    g("v_xor_b32 v%d, s%d, v%d" % (V_PA, S_T2, V_PA))
    k_oaddr(g)
    ONES, PF, PD = 112, 116, 124
    for r in range(4):
        g("v_mov_b32 v%d, 0x3f803f80" % (ONES + r))
    g.wait_vm("prm", "lgkmcnt(0)")
    g.stamp(20)
    k_chains(g, 1)
    unit(2)
    nonce_issue(g, V_F2)
    g.wait_vm("U0", "lgkmcnt(0)")
    g.stamp(1)
    g("s_barrier")
    g.stamp(2)
    def pcs_rd(k):
        d = PF + 4 * (k & 1)
        return ["ds_read_b64_tr_b16 %s, v%d offset:%d" % (vr(d, 2), V_PA, (k % 4) * 16384),
                "ds_read_b64_tr_b16 %s, v%d offset:%d" % (vr(d + 2, 2), V_PA, (k % 4) * 16384 + 1024)]
    def pcs_mf(k):
        return ["v_mfma_f32_16x16x32_bf16 %s, %s, %s, %s" % (vr(PD, 4), vr(PF + 4 * (k & 1), 4), vr(ONES, 4), "0" if k == 0 else vr(PD, 4))]
    def pcs_store():
        g("s_lshl_b32 s%d, s%d, 2" % (S_T2, S_FT))
        g("s_lshr_b32 s%d, s%d, 2" % (S_T3, S_MT))
        g("s_add_u32 s%d, s%d, s%d" % (S_T2, S_T2, S_T3))
        g("s_lshl_b32 s%d, s%d, 10" % (S_T2, S_T2))
        g("s_bfe_u32 s%d, s%d, 0x10001" % (S_T3, S_WAVE))
        g("s_lshl_b32 s%d, s%d, 9" % (S_T3, S_T3))
        g("s_add_u32 s%d, s%d, s%d" % (S_T2, S_T2, S_T3))
        g("s_and_b32 s%d, s%d, 3" % (S_T3, S_MT))
        g("s_lshl_b32 s%d, s%d, 7" % (S_T3, S_T3))
        g("s_add_u32 s%d, s%d, s%d" % (S_T2, S_T2, S_T3))
        g("s_and_b32 s%d, s%d, 1" % (S_T3, S_WAVE))
        g("s_lshl_b32 s%d, s%d, 6" % (S_T3, S_T3))
        g("s_add_u32 s%d, s%d, s%d" % (S_T2, S_T2, S_T3))
        g("s_add_u32 s%d, s%d, %d" % (S_T2, S_T2, WS_PCS))
        g("s_mov_b32 s%d, 0x00010001" % S_EX)
        g("s_mov_b32 s%d, 0x00010001" % (S_EX + 1))
        g("s_mov_b64 exec, s[%d:%d]" % (S_EX, S_EX + 1))
        g.vmem("buffer_store_dwordx4 %s, v1, %s, s%d offen sc1" % (vr(PD, 4), SRDW(S_WS), S_T2), "pst")
        g("s_mov_b64 exec, -1")
    SCR = 80
    def sc_load():
        g("v_lshlrev_b32 v%d, 4, v1" % V_PA)
        sk, s2 = g.newlabel("SC"), g.newlabel("SC")
        g("s_cmp_ge_u32 s%d, 6" % S_WAVE)
        g("s_cbranch_scc1 %s" % sk)
        g("s_lshl_b32 s%d, s%d, 11" % (S_T2, S_MT))
        g("s_add_u32 s%d, s%d, s%d" % (S_T2, S_T2, S_AK))
        g("s_add_u32 s%d, s%d, %d" % (S_T2, S_T2, WS_STATS))
        g("buffer_load_dwordx4 %s, v%d, %s, s%d offen sc1" % (vr(SCR, 4), V_PA, SRDW(S_WS), S_T2))
        g("s_branch %s" % s2)
        g.label(sk)
        g("s_lshl_b32 s%d, s%d, 12" % (S_T2, S_FT))
        g("s_add_u32 s%d, s%d, %d" % (S_T2, S_T2, WS_PCS))
        for k in range(4):
            g("buffer_load_dwordx4 %s, v%d, %s, s%d offen offset:%d sc1" % (vr(SCR + 4 * k, 4), V_PA, SRDW(S_WS), S_T2, 1024 * k))
        g.label(s2)
    def sc_store():
        sk = g.newlabel("SC")
        g("s_cmp_lt_u32 s%d, 6" % S_WAVE)
        g("s_cbranch_scc1 %s" % sk)
        for r in range(4):
            g("v_add_f32 v%d, v%d, v%d" % (SCR + r, SCR + r, SCR + 4 + r))
            g("v_add_f32 v%d, v%d, v%d" % (SCR + 8 + r, SCR + 8 + r, SCR + 12 + r))
        for r in range(4):
            g("v_add_f32 v%d, v%d, v%d" % (SCR + r, SCR + r, SCR + 8 + r))
        g.label(sk)
        g("s_min_u32 s%d, s%d, 2048" % (S_T2, S_AK))
        g("s_add_u32 s%d, s%d, %d" % (S_T2, S_T2, SCL))
        g("v_add_u32 v%d, s%d, v%d" % (V_PA, S_T2, V_PA))
        g("ds_write_b128 v%d, %s" % (V_PA, vr(SCR, 4)))
    if OPT["aprio"]:
        g("s_setprio %d" % OPT["aprio"])
    g.emit(k_reads() + pcs_rd(0) + offs_l(2))
    tc = tail_consts()
    ki, ca = k_idx(), cap(conv_addr)
    work = {
        0: [lambda: unit(3), lambda: unit(4)] + pcs_rd(1) + k_mfmas() + pcs_mf(0) + offs_l(3),
        1: [lambda: unit(5)] + pcs_rd(2) + pcs_mf(1) + k_table(),
        2: [lambda: unit(6)] + pcs_rd(3) + pcs_mf(2) + offs_l(4) + ki[:19],
        3: pcs_mf(3) + ki[19:38] + [pcs_store, lambda: unit(7)],
        4: [lambda: unit(8)] + offs_l(5) + ki[38:] + [lambda: nonce_check(g, V_F2)],
        5: [lambda: unit(9)] + k_gather(0) + [lambda: k_zero(g)],
        6: [lambda: unit(10), lambda: publish(g, (S_FT, 25), lambda: g("s_lshl_b32 s%d, s%d, 2" % (S_EX, S_MT)), VT)] + offs_l(6) + k_gather(1),
        7: [lambda: unit(11)] + tc[:46],
        8: [lambda: unit(12)] + offs_l(7) + tc[46:67],
        9: [lambda: unit(13)] + tc[67:],
        10: [lambda: unit(14), lambda: flag_issue(g, V_F2, (S_FT, 25), "0:flag2", S_FA2), lambda: flag_issue(g, V_FL, (None, 0))] + ca,
        11: [lambda: unit(15), lambda: flag_check(g, V_F2, 16, "0:flag2", S_FA2), lambda: flag_check(g, V_FL, 32)],
        12: [sc_load, lambda: u_load(g)] + k_build(0),
        13: k_build(1),
        14: [lambda: u_store(g), sc_store],
    }
    for it in range(16):
        if it < 15:
            g.wait_vm("U%d" % (it + 1), "lgkmcnt(0)")
        else:
            g("s_waitcnt lgkmcnt(0)")
        g("s_barrier")
        if it in (0, 8, 12, 15):
            g.stamp(41 + it)
        if it < 15:
            wk = work[it]
            if OPT.get("drop") and it < 11:
                pref = {1: ("ds_write",), 2: ("ds_write", "ds_read_u16"), 3: ("ds_write", "ds_read_u16", "v_"), 4: ("v_l", "v_s", "v_c", "v_a", "v_me")}[OPT["drop"]]
                wk = [x for x in wk if not (isinstance(x, str) and x.startswith(pref))]
            g.emit(wk)
    g("s_setprio %d" % OPT["cprio"])
    g.label("L_ACONV")
    g.vm = []
    g.stamp(3)
    conv(g)
    g.stamp(4)
    g("s_branch L_J")

    g.label("L_AUX")
    g.vm = list(vm_entry)
    aux(g)

    g.label("L_J")
    common(g)
    g.label("L_END")
    g("s_endpgm")
    return g


def aux(g):
    S_RB = S_MT
    g("s_and_b32 s%d, s2, 3" % S_T3)
    g("s_lshl_b32 s%d, s%d, 3" % (S_RB, S_T3))
    g("s_and_b32 s%d, s2, 4" % S_T3)
    g("s_add_u32 s%d, s%d, s%d" % (S_RB, S_RB, S_T3))
    g("s_add_u32 s%d, s%d, s%d" % (S_RB, S_RB, S_T1))
    XR, XF, TT, RED, ONES = 16, 48, 112, 144, 152
    g("v_lshlrev_b32 v%d, 4, v1" % VT)
    g("s_lshl_b32 s%d, s%d, 16" % (S_FT, S_RB))
    g("s_lshl_b32 s%d, s%d, 13" % (S_ROT, S_WAVE))
    g("s_add_u32 s%d, s%d, s%d" % (S_FT, S_FT, S_ROT))
    g("s_add_u32 s%d, s%d, 4096" % (S_T2, S_FT))
    for i in range(8):
        g.vmem("buffer_load_dwordx4 %s, v%d, %s, s%d offen offset:%d" % (vr(XR + 4 * i, 4), VT, SRDW(S_X), S_T2 if i >= 4 else S_FT, (i & 3) * 1024), "x")
    g.emit(tail_consts())
    k_wr(g)
    g("v_mov_b32 v%d, 0x3f803f80" % ONES)
    g("v_and_b32 v3, 7, v1")
    g("v_xor_b32 v3, s%d, v3" % S_WAVE)
    g("v_lshlrev_b32 v3, 4, v3")
    g("v_lshl_add_u32 v3, v1, 10, v3")
    g("v_lshrrev_b32 v4, 4, v1")
    g("v_lshlrev_b32 v4, 5, v4")
    g("s_lshr_b32 s%d, s%d, 6" % (S_T0, S_FT))
    g("s_add_u32 s%d, s%d, %d" % (S_T0, S_T0, WS_STATS))
    g("s_mov_b32 s%d, 0x00010001" % S_EX)
    g("s_mov_b32 s%d, 0x00010001" % (S_EX + 1))
    SM = 36
    MEAN, SO, RI = 154, 156, 164
    g.wait_vm("x")
    g.stamp(30)
    nonce_issue(g, 9)
    for i in range(8):
        g("v_dot2_f32_bf16 v%d, v%d, v%d, 0" % (RED + i, XR + 4 * i, ONES))
    for k in range(1, 4):
        for i in range(8):
            g("v_dot2_f32_bf16 v%d, v%d, v%d, v%d" % (RED + i, XR + 4 * i + k, ONES, RED + i))
    for i in range(8):
        for k in range(4):
            g("v_lshlrev_b32 v%d, 16, v%d" % (XF + 8 * i + 2 * k, XR + 4 * i + k))
            g("v_and_b32 v%d, 0xffff0000, v%d" % (XF + 8 * i + 2 * k + 1, XR + 4 * i + k))
    reduce8(g, RED)
    for i in range(2):
        g("v_mul_f32 v%d, 0x3b000000, v%d" % (MEAN + i, RED + i))
    g("s_nop 0")
    for row in range(8):
        g("v_readlane_b32 s%d, v%d, %d" % (SM + 2 * row, MEAN + (row & 1), 16 * (row >> 1)))
    g("s_nop 1")
    for k in range(4):
        for i in range(8):
            g("v_pk_add_f32 %s, %s, s[%d:%d] op_sel_hi:[1,0] neg_lo:[0,1] neg_hi:[0,1]" % (vr(TT + 2 * i, 2), vr(XF + 8 * i + 2 * k, 2), SM + 2 * i, SM + 2 * i + 1))
        for i in range(8):
            d, a = TT + 2 * i, XR + 2 * i
            if k == 0:
                g("v_pk_mul_f32 %s, %s, %s" % (vr(a, 2), vr(d, 2), vr(d, 2)))
            else:
                g("v_pk_fma_f32 %s, %s, %s, %s" % (vr(a, 2), vr(d, 2), vr(d, 2), vr(a, 2)))
    for i in range(8):
        g("v_add_f32 v%d, v%d, v%d" % (RED + i, XR + 2 * i, XR + 2 * i + 1))
    reduce8(g, RED)
    for i in range(2):
        o = SO + 4 * i
        g("v_mul_f32 v%d, 0x3b000000, v%d" % (RED + i, RED + i))
        rnd_bf16(g, RED + i, RED + i)
        g("v_add_f32 v%d, 0x3727c5ac, v%d" % (RED + i, RED + i))
        rnd_bf16(g, RED + i, RED + i)
        g("v_sqrt_f32 v%d, v%d" % (RED + i, RED + i))
        g("s_nop 0")
        rnd_bf16(g, RED + i, RED + i)
        g("v_rcp_f32 v%d, v%d" % (RI + i, RED + i))
        rnd_bf16(g, o, MEAN + i)
        g("v_mul_f32 v%d, 0x%x, v%d" % (o + 1, NLOG2E, RI + i))
        g("v_mul_f32 v%d, v%d, v%d" % (o + 2, RED + i, RED + i))
        g("v_mov_b32 v%d, v%d" % (o + 3, RED + i))
    g("s_nop 0")
    for row in range(8):
        g("v_readlane_b32 s%d, v%d, %d" % (SM + 2 * row, SO + 4 * (row & 1), 16 * (row >> 1)))
        g("v_readlane_b32 s%d, v%d, %d" % (SM + 2 * row + 1, RI + (row & 1), 16 * (row >> 1)))
    g("s_mov_b64 exec, s[%d:%d]" % (S_EX, S_EX + 1))
    for i in range(2):
        g.vmem("buffer_store_dwordx4 %s, v4, %s, s%d offen offset:%d sc1" % (vr(SO + 4 * i, 4), SRDW(S_WS), S_T0, 16 * i), "s1")
    g("s_mov_b64 exec, -1")
    for i in range(8):
        for k in range(4):
            d = XF + 8 * i + 2 * k
            g("v_pk_add_f32 %s, %s, s[%d:%d] op_sel_hi:[1,0] neg_lo:[0,1] neg_hi:[0,1]" % (vr(d, 2), vr(d, 2), SM + 2 * i, SM + 2 * i + 1))
        for k in range(4):
            d = XF + 8 * i + 2 * k
            g("v_pk_mul_f32 %s, %s, s[%d:%d] op_sel:[0,1] op_sel_hi:[1,1]" % (vr(d, 2), vr(d, 2), SM + 2 * i, SM + 2 * i + 1))
    for c in range(8):
        for ip in range(4):
            g("v_cvt_pk_bf16_f32 v%d, v%d, v%d" % (TT + 4 * c + ip, XF + 16 * ip + c, XF + 16 * ip + 8 + c))
        g("ds_write_b128 v3, %s offset:%d" % (vr(TT + 4 * c, 4), c * 128))
    g("v_lshlrev_b32 v3, 4, v1")
    g("v_add_u32 v4, s%d, v3" % S_ROT)
    for k in range(8):
        g("v_xor_b32 v%d, %d, v3" % (RED + k, 16 * k))
    g("s_mul_i32 s%d, s%d, %d" % (S_T2, S_RB, XP))
    g("s_add_u32 s%d, s%d, s%d" % (S_T2, S_T2, S_ROT))
    g("s_add_u32 s%d, s%d, 4096" % (S_T3, S_T2))
    g("s_waitcnt lgkmcnt(0)")
    g.stamp(33)
    g("s_barrier")
    XS = 160
    for k in range(8):
        g("ds_read_b128 %s, v4 offset:%d" % (vr(XS + 4 * k, 4), k * 1024))
    for k in range(8):
        g("s_waitcnt lgkmcnt(%d)" % (7 - k))
        g.vmem("buffer_store_dwordx4 %s, v%d, %s, s%d offen offset:%d sc1" % (vr(XS + 4 * k, 4), RED + k, SRDW(S_WS), S_T3 if k >= 4 else S_T2, (k & 3) * 1024), "s1")
    g.stamp(34)
    nonce_check(g, 9)
    g.wait_vm("s1")
    g("s_barrier")
    publish(g, (None, 0), lambda: g("s_lshl_b32 s%d, s2, 2" % S_EX), VT)
    g.stamp(31)
    g("s_cmp_ge_u32 s%d, 4" % S_WAVE)
    g("s_cbranch_scc1 L_AXB")
    k_chains(g, 0)
    g("s_branch L_AXC")
    g.label("L_AXB")
    k_chains(g, 1)
    k_raddr(g)
    g.label("L_AXC")
    g("s_waitcnt lgkmcnt(0)")
    g("s_barrier")
    g.stamp(35)
    g("s_cmp_ge_u32 s%d, 4" % S_WAVE)
    g("s_cbranch_scc1 L_AXH")
    g("s_lshr_b32 s%d, s2, 3" % S_T0)
    g("s_lshl_b32 s%d, s%d, 1" % (S_T0, S_T0))
    g("s_and_b32 s%d, s%d, 1" % (S_T1, S_WAVE))
    g("s_add_u32 s%d, s%d, s%d" % (S_T0, S_T0, S_T1))
    g("s_mul_i32 s%d, s%d, 224" % (S_T0, S_T0))
    g("s_lshr_b32 s%d, s%d, 1" % (S_T1, S_WAVE))
    g("s_add_u32 s%d, s%d, s%d" % (S_T0, S_T0, S_T1))
    g("s_lshl_b32 s%d, s%d, 10" % (S_ROT, S_T0))
    g("s_and_b32 s%d, s2, 7" % S_FT)
    g("v_lshlrev_b32 v5, 4, v1")
    nb = OPT["auxpf"]
    def pf():
        g("s_sub_u32 s%d, s%d, 7" % (S_T1, S_FT))
        g("s_cmp_ge_u32 s%d, 7" % S_FT)
        g("s_cselect_b32 s%d, s%d, s%d" % (S_FT, S_T1, S_FT))
        g("s_lshl_b32 s%d, s%d, 15" % (S_T0, S_FT))
        g("s_add_u32 s%d, s%d, s%d" % (S_T0, S_T0, S_ROT))
        for i in range(16):
            g("buffer_load_dwordx4 %s, v5, %s, s%d offen offset:%d" % (vr(16 + 4 * i, 4), SRDW(S_W2), S_T0, 2048 * (i & 1)))
            if i & 1:
                g("s_add_u32 s%d, s%d, 4096" % (S_T0, S_T0))
        g("s_add_u32 s%d, s%d, 1" % (S_FT, S_FT))
    per = [nb // 3 + (1 if i < nb % 3 else 0) for i in range(3)]
    for i in range(3):
        for _ in range(per[i]):
            pf()
        g("s_barrier")
    g("s_waitcnt vmcnt(0)")
    g("s_branch L_J")
    g.label("L_AXH")
    g.vm = []
    g.emit(k_reads())
    flag_issue(g, 8, (None, 0))
    g("s_waitcnt lgkmcnt(0)")
    g.emit(k_mfmas())
    k_oaddr(g)
    g.emit(k_table() + k_idx())
    g("s_waitcnt lgkmcnt(0)")
    g("s_barrier")
    g.emit(k_gather(0) + k_gather(1))
    k_zero(g)
    conv_addr(g)
    g("s_waitcnt lgkmcnt(0)")
    g.emit(k_build(0) + k_build(1))
    flag_check(g, 8, 32)
    g("s_barrier")
    u_load(g)
    u_store(g)
    g("s_waitcnt lgkmcnt(0)")
    g("s_barrier")
    g.stamp(1)
    g("s_branch L_ACONV")


def common(g):
    g("s_setprio 0")
    g.wait_vm_all("lgkmcnt(0)")
    g.stamp(5)
    g("s_barrier")
    g.stamp(6)
    P, U = 80, 96
    for a in range(4):
        g("ds_read_b128 %s, v%d offset:%d" % (vr(P + 4 * a, 4), V_CR, a * 8192))
    g("ds_read_b64 %s, v%d" % (vr(U, 2), V_CU))
    g("ds_read_b64 %s, v%d offset:4608" % (vr(U + 2, 2), V_CU))
    w2_rd(g, 0, False)
    w2_rd(g, 1, False)
    sk = g.newlabel("PH")
    g("s_cmp_lt_u32 s2, 32")
    g("s_cbranch_scc1 %s" % sk)
    publish(g, (S_MT, 1), lambda: g("s_lshl_b32 s%d, s%d, 2" % (S_EX, S_FT)), VT2)
    g.label(sk)
    w2_dma(g, 2)
    for c in range(4):
        g("v_add_u32 v%d, 0x10000, v%d" % (V_W2H + c, V_W2A + c))
    g("s_lshl_b32 s%d, s%d, 16" % (S_T0, S_DSK))
    g("s_and_b32 s%d, s%d, 0xffff0000" % (S_T1, S_DSK))
    g("s_waitcnt lgkmcnt(15)")
    UF = 100
    for ch in range(2):
        b = P + 8 * ch
        for r in range(4):
            g("v_add_f32 v%d, v%d, v%d" % (b + r, b + r, b + 4 + r))
        for k in range(2):
            g("v_lshlrev_b32 v%d, 16, v%d" % (UF + 2 * k, U + 2 * ch + k))
            g("v_and_b32 v%d, 0xffff0000, v%d" % (UF + 2 * k + 1, U + 2 * ch + k))
        for r in range(4):
            g("v_mul_f32 v%d, s%d, v%d" % (UF + r, (S_T0, S_T1)[ch], UF + r))
        for r in range(4):
            g("v_cvt_pk_bf16_f32 v%d, v%d, v%d" % (b + 4 + r, b + r, UF + r))
        for r in range(4):
            g("v_lshlrev_b32 v%d, 16, v%d" % (b + r, b + 4 + r))
            g("v_and_b32 v%d, 0xffff0000, v%d" % (b + 4 + r, b + 4 + r))
        for r in range(4):
            g("v_add_f32 v%d, v%d, v%d" % (b + r, b + r, b + 4 + r))
    AOR = 104
    for r in range(4):
        g("v_cvt_pk_bf16_f32 v%d, v%d, v%d" % (AOR + r, P + r, P + 8 + r))
    g("v_lshlrev_b32 v%d, 4, v0" % VT)
    g("s_mul_i32 s%d, s2, %d" % (S_T0, AOP))
    g("s_add_u32 s%d, s%d, %d" % (S_T0, S_T0, WS_AO))
    g.vmem("buffer_store_dwordx4 %s, v%d, %s, s%d offen sc1" % (vr(AOR, 4), VT, SRDW(S_WS), S_T0), "ao")
    g("s_waitcnt lgkmcnt(0)")
    w2_dma(g, 3)
    w2_dma(g, 4)
    g.stamp(7)
    w2_rd(g, 2)
    VFL = 8
    g("s_lshr_b32 s%d, s%d, 1" % (S_T0, S_RT))
    flag_issue(g, VFL, (S_T0, 1))
    RA0, RA1, VO, VH = 9, 10, 12, 11
    g("v_lshlrev_b32 v%d, 4, v1" % VH)
    g("v_lshrrev_b32 v%d, 3, v1" % VT2)
    g("v_lshlrev_b32 v%d, 10, v%d" % (VT2, VT2))
    g("v_and_b32 v%d, 7, v1" % VO)
    g("v_lshl_add_u32 v%d, v%d, 4, v%d" % (VO, VO, VT2))
    g("v_and_b32 v%d, 15, v1" % VT)
    g("v_lshrrev_b32 v%d, 4, v1" % VT2)
    g("v_lshrrev_b32 v%d, 5, v1" % RA0)
    g("v_lshl_add_u32 v%d, v%d, 2, v%d" % (RA0, RA0, VT))
    g("v_add_u32 v%d, 8, v%d" % (RA1, RA0))
    g("v_and_b32 v%d, 15, v%d" % (RA0, RA0))
    g("v_and_b32 v%d, 15, v%d" % (RA1, RA1))
    g("v_lshl_add_u32 v%d, v%d, 4, v%d" % (RA0, VT2, RA0))
    g("v_lshl_add_u32 v%d, v%d, 4, v%d" % (RA1, VT2, RA1))
    g("v_lshl_add_u32 v%d, v%d, 4, s%d" % (RA0, RA0, S_STG))
    g("v_lshl_add_u32 v%d, v%d, 4, s%d" % (RA1, RA1, S_STG))
    g("s_waitcnt lgkmcnt(0)")
    w2_dma(g, 5)
    w2_rd(g, 3)
    w2_rd(g, 4)
    flag_check(g, VFL, 14)
    g.stamp(8)
    g("s_barrier")
    g.stamp(9)
    w2_dma(g, 6)
    hn = [0]
    def hl(n=1):
        for _ in range(n):
            if hn[0] >= 28:
                return
            mi, j = divmod(hn[0], 7)
            hn[0] += 1
            g("s_add_u32 s%d, s%d, s%d" % (S_M + 5, S_HB + mi, S_J + j))
            g.vmem("buffer_load_dwordx4 %s, v%d, %s, s%d offen sc1" % (vr(HF + 28 * mi + 4 * j, 4), VH, SRDW(S_WS), S_M + 5), "h%d_%d" % (mi, j))
    hl(4)
    def slot_ao():
        g("s_and_b32 s%d, s2, 31" % S_EX)
        g("s_lshl_b32 s%d, s%d, 2" % (S_EX, S_EX))
    g("s_lshr_b32 s%d, s2, 5" % S_T0)
    publish(g, (S_T0, 17), slot_ao, VT)
    hl(OPT["h0"] - 4)
    w2_rd(g, 5)
    w2_rd(g, 6)
    g("s_waitcnt lgkmcnt(0)")
    accs = [ACC0, 16, 44, 72]
    ROFF = [0, 32768, 65536, KC]
    def redw(mi):
        if mi == 2:
            g("v_add_u32 v%d, 0x10000, v%d" % (RA0, RA0))
            g("v_add_u32 v%d, 0x10000, v%d" % (RA1, RA1))
        off = ROFF[mi] - (65536 if mi >= 2 else 0)
        for c in range(4):
            g("ds_write_b128 v%d, %s offset:%d" % ((RA0, RA1)[c & 1], vr(accs[mi] + 4 * c, 4), off + c * 1024))
    XT, AOT = 32, 36
    AOLB = UB
    AOG = [240, 244, 248, 252, 16, 20, 24, 28]
    def ao_load():
        sk = lead(g)
        g("v_lshrrev_b32 v4, 4, v1")
        g("v_and_b32 v5, 15, v1")
        g("v_mul_u32_u24 v6, %d, v4" % AOP)
        g("v_lshl_add_u32 v6, v5, 4, v6")
        g("s_mul_i32 s%d, s%d, %d" % (S_T0, S_NT, 32 * AOP))
        g("s_lshl_b32 s%d, s%d, 8" % (S_T1, S_RT))
        g("s_add_u32 s%d, s%d, s%d" % (S_T0, S_T0, S_T1))
        g("s_add_u32 s%d, s%d, %d" % (S_T0, S_T0, WS_AO))
        g("s_waitcnt lgkmcnt(0)")
        for k in range(8):
            g.vmem("buffer_load_dwordx4 %s, v6, %s, s%d offen sc1" % (vr(AOG[k], 4), SRDW(S_WS), S_T0), "0:aot")
            if k < 7:
                g("s_add_u32 s%d, s%d, %d" % (S_T0, S_T0, 4 * AOP))
        g("v_mul_u32_u24 v6, 272, v4")
        g("v_lshl_add_u32 v6, v5, 4, v6")
        g("v_add_u32 v6, %d, v6" % AOLB)
        g.label(sk)
        g("s_lshr_b32 s%d, s%d, 1" % (S_T0, S_WAVE))
        g("s_sub_u32 s%d, s%d, s%d" % (S_T0, S_T0, S_NT))
        g("s_and_b32 s%d, s%d, 3" % (S_T0, S_T0))
        g("s_lshl_b32 s%d, s%d, 15" % (S_T1, S_T0))
        g("s_cmp_eq_u32 s%d, 3" % S_T0)
        g("s_cmov_b32 s%d, %d" % (S_T1, KC))
        g("v_lshrrev_b32 v7, 3, v1")
        g("s_and_b32 s%d, s%d, 1" % (S_T0, S_WAVE))
        g("s_lshl_b32 s%d, s%d, 3" % (S_T0, S_T0))
        g("v_add_u32 v3, s%d, v7" % S_T0)
        g("v_and_b32 v4, 3, v1")
        g("v_lshl_add_u32 v3, v4, 2, v3")
        g("v_and_b32 v3, 15, v3")
        g("v_and_b32 v4, 1, v1")
        g("v_lshl_add_u32 v3, v4, 5, v3")
        g("v_lshlrev_b32 v3, 4, v3")
        g("v_bfe_u32 v4, v1, 1, 2")
        g("v_lshl_add_u32 v3, v4, 10, v3")
        g("v_add_u32 v3, s%d, v3" % S_T1)
        g("v_and_b32 v4, 7, v1")
        g("v_mul_u32_u24 v5, 1088, v4")
        g("v_lshl_add_u32 v5, v7, 2, v5")
        g("s_lshl_b32 s%d, s%d, 5" % (S_T0, S_WAVE))
        g("s_add_u32 s%d, s%d, %d" % (S_T0, S_T0, AOLB))
        g("v_add_u32 v5, s%d, v5" % S_T0)
    fdone = False
    for mi in range(4):
        a0 = accs[mi]
        for j in range(7):
            g.wait_vm("h%d_%d" % (mi, j))
            for c in range(4):
                a = a0 + 4 * c
                g("v_mfma_f32_16x16x32_bf16 %s, %s, %s, %s" % (vr(a, 4), vr(W2F + 16 * j + 4 * c, 4), vr(HF + 28 * mi + 4 * j, 4), "0" if j == 0 else vr(a, 4)))
            if hn[0] == OPT["fa"] and not fdone:
                assert mi >= 1
                flag_issue(g, VFL, (S_NT, 17))
                g.vmem("buffer_load_dwordx4 %s, v%d, %s, s%d offen" % (vr(XT, 4), VO, SRDW(S_X), S_OUTO), "xt")
                fdone = True
            hl(1)
            if 7 * mi + j == OPT["fa"] - 1:
                assert 7 * mi + j > 16
                flag_check(g, VFL, 32)
                ao_load()
            if j == 2 and mi > 0:
                redw(mi - 1)
    g.stamp(10)
    g.wait_vm("xt")
    g("s_nop 6")
    redw(3)
    sk = lead(g)
    g("s_waitcnt vmcnt(0)")
    for k in range(8):
        g("ds_write_b128 v6, %s offset:%d" % (vr(AOG[k], 4), 4 * 272 * k))
    g.label(sk)
    T = 88
    for k in range(4):
        g("v_lshlrev_b32 v%d, 16, v%d" % (T + 2 * k, XT + k))
        g("v_and_b32 v%d, 0xffff0000, v%d" % (T + 2 * k + 1, XT + k))
    g("s_waitcnt lgkmcnt(0)")
    g("s_barrier")
    g.stamp(11)
    R = 128
    for j in range(4):
        g("ds_read_b32 v%d, v5 offset:%d" % (AOT + j, 272 * j))
    for w in range(8):
        for hh in range(2):
            g("ds_read_b128 %s, v3 offset:%d" % (vr(R + 8 * w + 4 * hh, 4), w * 4096 + hh * 256))
    g("s_waitcnt lgkmcnt(15)")
    for k in range(4):
        g("v_lshlrev_b32 v%d, 16, v%d" % (T + 8 + 2 * k, AOT + k))
        g("v_and_b32 v%d, 0xffff0000, v%d" % (T + 8 + 2 * k + 1, AOT + k))
    for r in range(8):
        g("v_add_f32 v%d, v%d, v%d" % (T + r, T + r, T + 8 + r))
    for w in range(1, 8):
        g("s_waitcnt lgkmcnt(%d)" % (14 - 2 * w))
        for r in range(0, 8, 2):
            g("v_pk_add_f32 %s, %s, %s" % (vr(R + r, 2), vr(R + r, 2), vr(R + 8 * w + r, 2)))
    for r in range(8):
        g("v_cvt_pk_bf16_f32 v%d, v%d, v%d" % (T + 8 + r, T + r, R + r))
    for r in range(8):
        g("v_lshlrev_b32 v%d, 16, v%d" % (T + r, T + 8 + r))
        g("v_and_b32 v%d, 0xffff0000, v%d" % (T + 8 + r, T + 8 + r))
    for r in range(8):
        g("v_add_f32 v%d, v%d, v%d" % (T + r, T + r, T + 8 + r))
    for k in range(4):
        g("v_cvt_pk_bf16_f32 v%d, v%d, v%d" % (R + k, T + 2 * k, T + 2 * k + 1))
    g("buffer_store_dwordx4 %s, v%d, %s, s%d offen" % (vr(R, 4), VO, SRDW(S_OUT), S_OUTO))
    if OPT["dbgtime"]:
        sk = lead(g)
        g("s_and_b32 s%d, s2, 63" % S_T0)
        g("s_cmp_lg_u32 s%d, 40" % S_T0)
        g("s_cbranch_scc1 %s" % sk)
        g("s_memtime s[94:95]")
        g("s_memrealtime s[96:97]")
        g("s_waitcnt lgkmcnt(0)")
        g("s_sub_u32 s94, s94, s98")
        g("v_mov_b32 v20, s94")
        g("v_mov_b32 v21, s100")
        g("v_mov_b32 v22, s96")
        g("s_lshr_b32 s%d, s2, 6" % S_T0)
        g("s_mul_i32 s%d, s%d, 12" % (S_T0, S_T0))
        g("s_add_u32 s%d, s%d, 4" % (S_T0, S_T0))
        g("s_mov_b64 exec, 1")
        g("buffer_store_dwordx3 v[20:22], off, %s, s%d" % (SRDW(S_DBG), S_T0))
        g.label(sk)
    if g.ts:
        g.stamp(12)
        g.stamp(13)
        g("s_memrealtime s[98:99]")
        g("s_waitcnt lgkmcnt(0)")
        g("v_writelane_b32 v15, s98, 14")
        g("s_lshl_b32 s%d, s2, 11" % S_T0)
        g("s_lshl_b32 s%d, s%d, 8" % (S_T1, S_WAVE))
        g("s_add_u32 s%d, s%d, s%d" % (S_T0, S_T0, S_T1))
        g("s_add_u32 s%d, s%d, %d" % (S_T0, S_T0, WS_TS))
        g("buffer_store_dword v15, v2, %s, s%d offen" % (SRDW(S_WS), S_T0))


HEADER = open("parallel_sum__ssm_conv_s4d__glu_gated_swiglu__prompt.s.ref").read().split("; Override launch")[0]


def emit(ts=False):
    g = gen(ts)
    body = "\n".join(g.L)
    return HEADER + """; @launch grid=(256,1,1) block=(512,1,1) lds=163840
.amdgcn_target "amdgcn-amd-amdhsa--gfx950"
.text
.globl %s
.p2align 8
.type %s,@function
%s:
%s
.fill 3072, 4, 0xBF800000
.section .rodata,"a"
.p2align 6
.amdhsa_kernel %s
  .amdhsa_next_free_vgpr 256
  .amdhsa_next_free_sgpr 102
  .amdhsa_accum_offset 256
  .amdhsa_group_segment_fixed_size 0
  .amdhsa_kernarg_size 112
  .amdhsa_user_sgpr_count 2
  .amdhsa_user_sgpr_kernarg_segment_ptr 1
  .amdhsa_system_sgpr_workgroup_id_x 1
.end_amdhsa_kernel
""" % (KNAME, KNAME, KNAME, body, KNAME)


if __name__ == "__main__":
    ts = "--ts" in sys.argv
    for a in sys.argv[1:]:
        if a.startswith("--") and "=" in a:
            k, v = a[2:].split("=")
            OPT[k] = int(v)
    out = [a for a in sys.argv[1:] if not a.startswith("--")]
    path = out[0] if out else "k5.s"
    open(path, "w").write(emit(ts))
    print("wrote", path)
```

```python
import sys, struct

KNAME = "parallel_sum__ssm_conv_s4d__glu_gated_swiglu__prompt_kernel"

WS_XNT = 0
XP = 65536 + 256
WS_STATS = 3 << 20
WS_FLG = WS_STATS + 262144
FP = 4096 + 128
WS_PCS = WS_STATS + 131072
WS_H = 4 << 20
WS_AO = 12 << 20
AOP = 8192 + 128
WS_TS = 15 << 20
WS_SIZE = 16 << 20

KV_PITCH = 3072
KV_BIAS = 0x3F7F
KV_ZERO = 0x4500 - KV_BIAS + 1
KV_DUMP = KV_ZERO + 1
LOG2E, NLOG2E, INV2PI = 0x3FB8AA3B, 0xBFB8AA3B, 0x3E22F983

XBASE, WBASE = 0, 49152
KC = 114688
UB = KC + 33280
KVT = UB + 9216
SCL = KVT
NWL = KVT + 6144
TP = 272
TUNIT = 57 * TP
PART = 65536
SLOT = {"s0": 0, "s1": 32768, "s2": 65536, "k": KC}

OPT = dict(auxpf=3, dbgtime=0, ntx=3, h0=8, fa=20, aprio=1, cprio=0, early=1)


class Gen:
    def __init__(self, ts=False):
        self.L, self.vm, self.ts, self.lbl, self.lead = [], [], ts, 0, 4

    def __call__(self, s):
        self.L.append("    " + s)

    def label(self, l):
        self.L.append(l + ":")

    def newlabel(self, p="L"):
        self.lbl += 1
        return "%s_%d" % (p, self.lbl)

    def vmem(self, s, tag):
        self(s)
        self.vm.append(tag)

    def wait_vm(self, tags, extra=""):
        if isinstance(tags, str):
            tags = [tags]
        last = -1
        for i, t in enumerate(self.vm):
            if t in tags:
                last = i
        if last < 0:
            if extra:
                self("s_waitcnt " + extra)
            return
        w0 = any(t.startswith("0:") for t in tags)
        n = len([t for t in self.vm[last + 1:] if w0 or not t.startswith("0:")])
        assert n <= 63, n
        self("s_waitcnt vmcnt(%d) %s" % (n, extra))
        if w0:
            self.vm = [t for i, t in enumerate(self.vm) if i > last or not t.startswith("0:")]
        else:
            self.vm = self.vm[last + 1:]

    def wait_vm_all(self, extra=""):
        self("s_waitcnt vmcnt(0) %s" % extra)
        self.vm = []

    def stamp(self, idx):
        if not self.ts:
            return
        self("%s s[98:99]" % ("s_memrealtime" if OPT.get("rts") else "s_memtime"))
        self("s_waitcnt lgkmcnt(0)")
        self("v_writelane_b32 v15, s98, %d" % idx)

    def emit(self, lst):
        for x in lst:
            if callable(x):
                x()
            elif isinstance(x, tuple):
                self.vmem(*x)
            else:
                self(x)


def vr(a, n=1):
    return "v%d" % a if n == 1 else "v[%d:%d]" % (a, a + n - 1)


def fimm(k):
    if k == 0:
        return "0"
    if k in (1, 2, 4):
        return "%d.0" % k
    return "0x%08x" % struct.unpack("<I", struct.pack("<f", float(k)))[0]


S_X, S_W1, S_W3, S_W2, S_OUT, S_DBG, S_WS = 4, 8, 12, 16, 20, 24, 28
S_WAVE, S_MT, S_FT, S_ROT = 32, 33, 34, 35
S_WOFF, S_XOFF = 36, 44
S_AK = 52
S_T0, S_T1, S_T2, S_T3 = 53, 54, 55, 56
S_RT, S_NT, S_LDT = 57, 58, 59
S_EX, S_CNT, S_DSK = 60, 62, 63
P_LAR, P_AIM, P_CR, P_CI, P_LDT, P_DSK = 66, 68, 70, 72, 74, 76
S_J, S_W2G, S_STG, S_HB, S_OUTO, S_HST = 64, 71, 72, 73, 77, 78
S_OB = 82
S_KH, S_KL, S_FA2, S_NONCE, S_FA = 84, 85, 87, 90, 91
S_M = 92
VT, VT2 = 13, 14
LEAD = 4
SRDW = lambda s: "s[%d:%d]" % (s, s + 3)
PRM = 240
W2F, HF, ACC0 = 128, 16, 240
V_W2D, V_W2A, V_CR, V_CU = 244, 245, 249, 250


def srd(g, d, p, nbytes):
    g("s_mov_b32 s%d, s%d" % (d, p))
    g("s_mov_b32 s%d, s%d" % (d + 1, p + 1))
    g("s_mov_b32 s%d, 0x%x" % (d + 2, nbytes))
    g("s_mov_b32 s%d, 0x00020000" % (d + 3))


def lead(g):
    sk = g.newlabel("W0")
    g("s_cmp_lg_u32 s%d, %d" % (S_WAVE, g.lead))
    g("s_cbranch_scc1 %s" % sk)
    return sk


def nonce_write(g):
    sk = g.newlabel("NW")
    g("s_or_b32 s%d, s2, s%d" % (S_CNT, S_WAVE))
    g("s_cmp_lg_u32 s%d, 0" % S_CNT)
    g("s_cbranch_scc1 %s" % sk)
    g("s_memrealtime s[96:97]")
    g("s_waitcnt lgkmcnt(0)")
    g("s_or_b32 s%d, s96, 1" % S_CNT)
    g("v_mov_b32 v%d, s%d" % (VT2, S_CNT))
    g("s_mov_b64 exec, 1")
    g("buffer_store_dword v%d, v2, %s, 0 offen sc1" % (VT2, SRDW(S_DBG)))
    g("s_mov_b64 exec, -1")
    g.label(sk)


def nonce_issue(g, vf):
    sk = lead(g)
    g.vmem("buffer_load_dword v%d, off, %s, 0 sc1" % (vf, SRDW(S_DBG)), "0:nonce")
    g.label(sk)


def nonce_check(g, vf):
    sk = lead(g)
    lp, ok = g.newlabel("NP"), g.newlabel("NK")
    g.wait_vm("0:nonce")
    g("s_mov_b32 s%d, 0" % S_CNT)
    g.label(lp)
    g("v_readfirstlane_b32 s%d, v%d" % (S_NONCE, vf))
    g("s_add_u32 s%d, s%d, 1" % (S_CNT, S_CNT))
    g("s_nop 2")
    g("s_cmp_lg_u32 s%d, 0" % S_NONCE)
    g("s_cbranch_scc1 %s" % ok)
    g("s_cmp_ge_u32 s%d, 0x4000" % S_CNT)
    g("s_cbranch_scc1 %s" % ok)
    g("s_sleep 8")
    g("buffer_load_dword v%d, off, %s, 0 sc1" % (vf, SRDW(S_DBG)))
    g("s_waitcnt vmcnt(0)")
    g("s_branch %s" % lp)
    g.label(ok)
    g.label(sk)


def nonce_lds(g):
    sk = lead(g)
    g("v_mov_b32 v%d, %d" % (VT, NWL))
    g("v_mov_b32 v%d, s%d" % (VT2, S_NONCE))
    g("ds_write_b32 v%d, v%d" % (VT, VT2))
    g.label(sk)


def flag_addr(g, sfa, line):
    sg, c = line
    if sg is None:
        g("s_mov_b32 s%d, %d" % (sfa, WS_FLG + c * FP))
    else:
        g("s_mul_i32 s%d, s%d, %d" % (sfa, sg, FP))
        g("s_add_u32 s%d, s%d, %d" % (sfa, sfa, WS_FLG + c * FP))


def flag_load(g, vf, sfa, count):
    g("v_lshlrev_b32 v%d, 7, v1" % vf)
    g("s_mov_b64 exec, 0x%x" % ((1 << count) - 1))
    r = "buffer_load_dword v%d, v%d, %s, s%d offen sc1" % (vf, vf, SRDW(S_WS), sfa)
    return r


def flag_issue(g, vf, line, count, tag="0:flag", sfa=S_FA):
    sk = lead(g)
    flag_addr(g, sfa, line)
    g.vmem(flag_load(g, vf, sfa, count), tag)
    g("s_mov_b64 exec, -1")
    g.label(sk)


def flag_check(g, vf, count, tag="0:flag", sfa=S_FA):
    lp = g.newlabel("POLL")
    done = lead(g)
    g.wait_vm(tag)
    g("s_mov_b32 s%d, 0" % S_CNT)
    g.label(lp)
    g("v_cmp_ne_u32 vcc, s%d, v%d" % (S_NONCE, vf))
    g("s_add_u32 s%d, s%d, 1" % (S_CNT, S_CNT))
    g("s_and_b32 s%d, vcc_lo, 0x%x" % (S_EX, (1 << count) - 1))
    g("s_cbranch_scc0 %s" % done)
    g("s_cmp_ge_u32 s%d, 0x4000" % S_CNT)
    g("s_cbranch_scc1 %s" % done)
    g("s_sleep 2")
    g(flag_load(g, vf, sfa, count))
    g("s_mov_b64 exec, -1")
    g("s_waitcnt vmcnt(0)")
    g("s_branch %s" % lp)
    g.label(done)


def publish(g, line, slot, vtmp):
    sk = lead(g)
    flag_addr(g, S_CNT, line)
    slot()
    g("s_add_u32 s%d, s%d, s%d" % (S_CNT, S_CNT, S_EX))
    g("v_mov_b32 v%d, s%d" % (vtmp, S_NONCE))
    g("s_mov_b64 exec, 1")
    g("buffer_store_dword v%d, off, %s, s%d sc1" % (vtmp, SRDW(S_WS), S_CNT))
    g("s_mov_b64 exec, -1")
    g.label(sk)


def rnd_bf16(g, d, s):
    g("v_cvt_pk_bf16_f32 v%d, v%d, v%d" % (d, s, s))
    g("v_lshlrev_b32 v%d, 16, v%d" % (d, d))


def cmul1(d, a, b):
    return "v_pk_mul_f32 %s, %s, %s op_sel:[0,0] op_sel_hi:[0,1]" % (vr(d, 2), vr(a, 2), vr(b, 2))


def cmul2(d, a, b):
    return "v_pk_fma_f32 %s, %s, %s, %s op_sel:[1,1,0] op_sel_hi:[1,0,1] neg_lo:[0,1,0]" % (vr(d, 2), vr(a, 2), vr(b, 2), vr(d, 2))


ROWS = {}
for _g in range(4):
    for _r in range(4):
        ROWS[(0, 4 * _g + _r)] = 4 * (_g & 1) + 128 * (_g >> 1) + _r
        ROWS[(1, 4 * _g + _r)] = (256 + 128 * (_g & 1) + 2 * _r) if _g < 2 else (512 + 4 * (_g & 1) + 128 * _r)
        ROWS[(2, 4 * _g + _r)] = 1024 + 512 * _g + 128 * _r
POS2ROW = {p: 16 + 16 * t + m for (t, m), p in ROWS.items() if p <= 2048}
UNITS = [KC, KC + TUNIT, XBASE + 2 * 16384, KC + 2 * TUNIT]
K_WR = 12
K_R0, K_R1, K_OA, K_IX, K_CP, K_ZE, K_DA = 198, 199, 200, 208, 219, 222, 224
K_AA = 235
K_FB, K_FA = 16, 48


def k_wr(g):
    g("s_and_b32 s%d, s%d, 3" % (S_T0, S_WAVE))
    g("s_mov_b32 s%d, %d" % (S_T1, UNITS[0]))
    for u in range(1, 4):
        g("s_cmp_eq_u32 s%d, %d" % (S_T0, u))
        g("s_cmov_b32 s%d, %d" % (S_T1, UNITS[u]))
    g("v_add_u32 v%d, s%d, v2" % (K_WR, S_T1))
    g("s_and_b32 s%d, s%d, 1" % (S_T1, S_T0))
    g("s_lshl_b32 s%d, s%d, 4" % (S_T1, S_T1))
    g("s_sub_u32 s%d, 16, s%d" % (S_KH, S_T1))
    g("s_lshr_b32 s%d, s%d, 1" % (S_T1, S_T0))
    g("s_lshl_b32 s%d, s%d, 4" % (S_T1, S_T1))
    g("s_sub_u32 s%d, 16, s%d" % (S_KL, S_T1))


def k_chains(g, part, mid=None):
    Q = 16
    LAR, AIM, CR, CI = Q, Q + 1, Q + 2, Q + 3
    DT, ER, TU = Q + 4, Q + 5, Q + 6
    TA, TB = Q, Q + 1
    g("s_lshl_b32 s%d, s%d, s%d" % (S_T2, S_LDT, S_KL))
    g("s_and_b32 s%d, s%d, 0xffff0000" % (S_T2, S_T2))
    for k in range(4):
        g("v_lshlrev_b32 v%d, s%d, v%d" % (Q + k, S_KH, PRM + k))
    for k in range(4):
        g("v_and_b32 v%d, 0xffff0000, v%d" % (Q + k, Q + k))
    g("v_mov_b32 v%d, 0x%x" % (DT, LOG2E))
    g("v_mul_f32 v%d, s%d, v%d" % (DT, S_T2, DT))
    g("v_mul_f32 v%d, 0x%x, v%d" % (ER, LOG2E, LAR))
    g("v_exp_f32 v%d, v%d" % (DT, DT))
    g("v_exp_f32 v%d, v%d" % (ER, ER))
    g("s_nop 0")
    rnd_bf16(g, DT, DT)
    rnd_bf16(g, ER, ER)
    g("v_mul_f32 v%d, v%d, v%d" % (ER, ER, DT))
    g("v_mul_f32 v%d, v%d, v%d" % (TU, AIM, DT))
    g("v_mul_f32 v%d, 0x%x, v%d" % (ER, NLOG2E, ER))
    g("v_mul_f32 v%d, 0x%x, v%d" % (TU, INV2PI, TU))
    E = {}
    nxt = [Q + 8]
    def al(n):
        E[n] = nxt[0]; nxt[0] += 2
        return E[n]
    def directs(lst):
        tm = [al("t%d" % i) for i in range(len(lst))]
        ds = [al(p) for p, _ in lst]
        for (p, c), t in zip(lst, tm):
            g("v_mul_f32 v%d, %s, v%d" % (t, fimm(p), ER))
            g("v_mul_f32 v%d, %s, v%d" % (t + 1, fimm(p), TU))
        for t in tm:
            g("v_exp_f32 v%d, v%d" % (t, t))
            g("v_fract_f32 v%d, v%d" % (t + 1, t + 1))
        for t, d in zip(tm, ds):
            g("v_cos_f32 v%d, v%d" % (d, t + 1))
            g("v_sin_f32 v%d, v%d" % (d + 1, t + 1))
        g("s_nop 0")
        for (p, c), t, d in zip(lst, tm, ds):
            g("v_mul_f32 v%d, v%d, v%d" % (d, d, t))
            g("v_mul_f32 v%d, %sv%d, v%d" % (d + 1, "-" if c else "", d + 1, t))
    def run(chains, tmp0):
        streams = []
        ti = [0]
        for ci, c in enumerate(chains):
            s = []
            for op in c:
                if op[0] == "mul":
                    s += [cmul1(*op[1:]), cmul2(*op[1:])]
                else:
                    t = tmp0 + 2 * ci + (ti[0] & 1)
                    ti[0] += 1
                    s.append("v_cvt_pk_bf16_f32 v%d, v%d, v%d" % (t, op[2], op[2] + 1))
                    s.append("ds_write_b32 v%d, v%d offset:%d" % (K_WR, t, op[1] * TP))
            streams.append(s)
        while any(streams):
            for s in streams:
                if s:
                    g(s.pop(0))
    if part == 0:
        GA, GB, GC, GD = al("ga"), al("gb"), al("gc"), al("gd")
        g("v_add_f32 v%d, v%d, v%d" % (DT, DT, DT))
        g("v_mul_f32 v%d, v%d, v%d" % (GA, CR, DT))
        g("v_mul_f32 v%d, -v%d, v%d" % (GA + 1, CI, DT))
        directs([(8, True), (1, False), (128, False), (64, True)])
        for p in range(2, 8):
            al(p)
        PA, PB = al("pa"), al("pb")
        T0 = nxt[0]
        c1, cur, nx = [], GA, GB
        c2 = [("mul", GC, GA, E[64])]
        for b in range(8):
            c1.append(("put", b, cur))
            if b < 7:
                c1.append(("mul", nx, cur, E[8])); cur, nx = nx, cur
        cur, nx = GC, GD
        for b in range(8, 16):
            c2.append(("put", b, cur))
            if b < 15:
                c2.append(("mul", nx, cur, E[8])); cur, nx = nx, cur
        c3 = [("put", POS2ROW[1], E[1]), ("put", POS2ROW[128], E[128])]
        for p in range(2, 8):
            c3 += [("mul", E[p], E[p - 1], E[1]), ("put", POS2ROW[p], E[p])]
        g("v_mov_b32 v%d, 0x00003f80" % TA)
        g("ds_write_b32 v%d, v%d offset:%d" % (K_WR, TA, POS2ROW[0] * TP))
        run([c2, c1, c3], T0)
        ca, cb = [], []
        for p in range(1, 8):
            (ca if p & 1 else cb).extend([("mul", PA if p & 1 else PB, E[p], E[128]), ("put", POS2ROW[128 + p], PA if p & 1 else PB)])
        run([ca, cb], T0)
    else:
        directs([(2, False), (128, False), (1024, False)])
        al(4); al(6)
        for h in list(range(2, 8)) + list(range(9, 17)):
            al(128 * h)
        PA, PB = al("pa"), al("pb")
        T0 = nxt[0]
        c1 = []
        for h in range(2, 8):
            c1 += [("mul", E[128 * h], E[128 * (h - 1)], E[128]), ("put", POS2ROW[128 * h], E[128 * h])]
        c2 = [("put", POS2ROW[1024], E[1024])]
        for h in range(9, 17):
            c2 += [("mul", E[128 * h], E[128 * (h - 1)], E[128]), ("put", POS2ROW[128 * h], E[128 * h])]
        c3 = [("mul", E[4], E[2], E[2]), ("mul", E[6], E[4], E[2])]
        if mid:
            mid()
        run([c1, c2, c3], T0)
        prods = [p for p in sorted(POS2ROW) if p >= 256 and (p & 127)]
        ca, cb = [], []
        for i, p in enumerate(prods):
            d = (PA, PB)[i & 1]
            (ca, cb)[i & 1].extend([("mul", d, E[p & 127], E[p & ~127]), ("put", POS2ROW[p], d)])
        run([ca, cb], T0)
    assert nxt[0] + 8 <= 112


def k_raddr(g):
    g("v_and_b32 v%d, 15, v1" % VT)
    g("v_lshrrev_b32 v%d, 4, v1" % VT2)
    g("v_mul_u32_u24 v%d, %d, v%d" % (K_R0, TP, VT))
    g("v_lshl_add_u32 v%d, v%d, 4, v%d" % (K_R0, VT2, K_R0))
    g("s_bitcmp1_b32 s%d, 1" % S_WAVE)
    g("s_mov_b32 s%d, %d" % (S_T0, UNITS[0]))
    g("s_cmov_b32 s%d, %d" % (S_T0, UNITS[2]))
    g("s_mov_b32 s%d, %d" % (S_T1, UNITS[1]))
    g("s_cmov_b32 s%d, %d" % (S_T1, UNITS[3]))
    g("v_add_u32 v%d, s%d, v%d" % (K_R1, S_T1, K_R0))
    g("v_add_u32 v%d, s%d, v%d" % (K_R0, S_T0, K_R0))
    g("s_and_b32 s%d, s%d, 1" % (S_T0, S_WAVE))
    g("s_mul_i32 s%d, s%d, %d" % (S_T0, S_T0, 32 * TP))
    g("v_add_u32 v%d, s%d, v%d" % (K_AA, S_T0, K_R0))
    g("v_add_u32 v%d, s%d, v%d" % (K_AA + 1, S_T0, K_R1))


def k_reads():
    r = []
    for hf in range(2):
        for ks in range(4):
            r.append("ds_read_b128 %s, v%d offset:%d" % (vr(K_FB + 16 * hf + 4 * ks, 4), (K_R0, K_R1)[hf], 64 * ks))
            for t in range(2):
                r.append("ds_read_b128 %s, v%d offset:%d" % (vr(K_FA + 32 * t + 16 * hf + 4 * ks, 4), K_AA + hf, (16 + 16 * t) * TP + 64 * ks))
    return r


def k_mfmas():
    r = []
    for i in range(8):
        for t in range(2):
            d = K_DA + 4 * t
            r.append("v_mfma_f32_16x16x32_bf16 %s, %s, %s, %s" % (vr(d, 4), vr(K_FA + 32 * t + 4 * i, 4), vr(K_FB + 4 * i, 4), "0" if i == 0 else vr(d, 4)))
    return r


def k_oaddr(g):
    tabs = [(0, 256, 1024, 4096), (128, 512, 2048, 4096), (4, 128, 512, 0), (4, 4, 512, 0), (1, 2, 128, 0), (1, 128, 128, 0)]
    SB = 92
    g("v_and_b32 v%d, 15, v1" % VT)
    g("v_bfe_u32 v%d, v1, 4, 1" % VT2)
    g("s_bfe_u32 s%d, s%d, 0x10001" % (S_T2, S_WAVE))
    g("s_mul_i32 s%d, s%d, %d" % (S_T1, S_T2, KV_PITCH))
    g("s_add_u32 s%d, s%d, %d" % (S_T1, S_T1, KVT - 2 * KV_BIAS))
    g("v_mov_b32 v198, %d" % (KV_BIAS + KV_DUMP))
    g("s_add_u32 s%d, s%d, %d" % (S_T0, S_T1, 2 * (KV_BIAS + KV_ZERO)))
    g("v_mov_b32 v%d, s%d" % (K_ZE, S_T0))
    for t in range(2):
        g("s_bitcmp1_b32 s%d, 0" % S_WAVE)
        for i, tb in enumerate(tabs):
            g("s_mov_b32 s%d, %d" % (SB + i, tb[t]))
            g("s_cmov_b32 s%d, %d" % (SB + i, tb[2 + t]))
        g("v_cmp_le_u32 vcc, 32, v1")
        for i in range(3):
            g("v_mov_b32 v%d, s%d" % (192 + i, SB + 2 * i))
            g("v_mov_b32 v%d, s%d" % (195 + i, SB + 2 * i + 1))
        for i in range(3):
            g("v_cndmask_b32 v%d, v%d, v%d, vcc" % (192 + i, 192 + i, 195 + i))
        g("v_mad_u32_u24 v192, v%d, v193, v192" % VT2)
        g("v_lshl_add_u32 v192, v%d, 3, v192" % VT)
        for r in range(4):
            o = K_OA + 4 * t + r
            g("v_cvt_f32_u32 v%d, v192" % o)
            g("v_cmp_lt_u32 vcc, 2048, v192")
            g("v_lshrrev_b32 v%d, 16, v%d" % (o, o))
            g("v_max_u32 v%d, %d, v%d" % (o, KV_BIAS, o))
            g("v_cndmask_b32 v%d, v%d, v198, vcc" % (o, o))
            g("v_lshl_add_u32 v%d, v%d, 1, s%d" % (o, o, S_T1))
            if r < 3:
                g("v_add_u32 v192, v192, v194")


def bf16bits(x):
    u = struct.unpack("<I", struct.pack("<f", float(x)))[0]
    return ((u + 0x7FFF + ((u >> 16) & 1)) >> 16) & 0xFFFF


def kidx(l):
    return min(max(bf16bits(l), KV_BIAS), KV_BIAS + KV_ZERO) - KV_BIAS


def tables():
    T = [[0] * 4 for _ in range(5 * 256)]
    for th in range(256):
        a, lane = th >> 6, th & 63
        ch, p = a >> 1, a & 1
        b, gg = lane & 15, lane >> 4
        for t in range(2):
            for r in range(4):
                tile = 2 * p + t
                pos = ROWS[(tile, 4 * gg + r)] + 8 * b if tile < 3 else 99999
                idx = kidx(pos) if pos <= 2048 else KV_DUMP
                T[t * 256 + th][r] = KVT + ch * KV_PITCH + 2 * idx
        v = [KVT + 2 * kidx(2047 - 8 * th - k) for k in range(11)] + [KC + 16 * th]
        for k in range(12):
            T[(2 + k // 4) * 256 + th][k % 4] = v[k]
    return [x for row in T for x in row]


def k_tload(g):
    g("s_getpc_b64 s[%d:%d]" % (S_M, S_M + 1))
    lbl = g.newlabel("PC")
    g.label(lbl)
    g("s_add_u32 s%d, s%d, L_TAB-%s" % (S_M, S_M, lbl))
    g("s_addc_u32 s%d, s%d, 0" % (S_M + 1, S_M + 1))
    g("v_and_b32 v%d, 255, v0" % VT)
    g("v_lshlrev_b32 v%d, 4, v%d" % (VT, VT))
    for k in range(5):
        g.vmem("global_load_dwordx4 %s, v%d, s[%d:%d]" % (vr(K_OA + 4 * k, 4), VT, S_M, S_M + 1), "tab")
        if k < 4:
            g("v_add_u32 v%d, 4096, v%d" % (VT, VT))
    g("s_bfe_u32 s%d, s%d, 0x10001" % (S_T2, S_WAVE))
    g("s_mul_i32 s%d, s%d, %d" % (S_T2, S_T2, KV_PITCH))
    g("s_add_u32 s%d, s%d, %d" % (S_T2, S_T2, KVT + 2 * KV_ZERO))
    g("v_mov_b32 v%d, s%d" % (K_ZE, S_T2))


def k_table():
    r = ["v_mov_b32 v%d, 0" % VT, "ds_write_b16 v%d, v%d" % (K_ZE, VT)]
    for k in range(8):
        r.append("v_cvt_pk_bf16_f32 v%d, v%d, v%d" % (K_DA + k, K_DA + k, K_DA + k))
    for k in range(8):
        r.append("ds_write_b16 v%d, v%d" % (K_OA + k, K_DA + k))
    return r


def k_idx():
    r = ["v_and_b32 v%d, 255, v0" % K_CP,
         "v_lshlrev_b32 v192, 3, v%d" % K_CP,
         "v_sub_u32 v192, 2047, v192",
         "v_cvt_f32_i32 v192, v192",
         "v_mov_b32 v193, %d" % (KV_BIAS + KV_ZERO),
         "s_mov_b32 s%d, %d" % (S_KH, KVT - 2 * KV_BIAS),
         "s_mov_b32 s%d, %d" % (S_KL, KV_BIAS),
         "v_lshlrev_b32 v%d, 4, v%d" % (K_CP, K_CP),
         "v_add_u32 v%d, %d, v%d" % (K_CP, KC, K_CP)]
    for k in range(0, 12, 2):
        r.append("v_subrev_f32 v194, %s, v192" % fimm(k))
        r.append("v_subrev_f32 v195, %s, v192" % fimm(k + 1))
        r.append("v_cvt_pk_bf16_f32 v194, v194, v195")
        r.append("v_and_b32 v%d, 0xffff, v194" % (K_IX + k))
        if k < 10:
            r.append("v_lshrrev_b32 v%d, 16, v194" % (K_IX + k + 1))
    for k in range(11):
        r.append("v_med3_u32 v%d, v%d, s%d, v193" % (K_IX + k, K_IX + k, S_KL))
        r.append("v_lshl_add_u32 v%d, v%d, 1, s%d" % (K_IX + k, K_IX + k, S_KH))
    return r


def k_gather(ch):
    return ["ds_read_u16 v%d, v%d offset:%d" % (16 + 12 * ch + k, K_IX + k, KV_PITCH * ch) for k in range(11)]


def k_build(ch):
    D, O = 16 + 12 * ch, 40 + 16 * ch
    r = []
    for sft in range(4):
        for k in range(4):
            r.append("v_lshl_or_b32 v%d, v%d, 16, v%d" % (O + 4 * sft + k, D + sft + 2 * k + 1, D + sft + 2 * k))
        r.append("ds_write_b128 v%d, %s offset:%d" % (K_CP, vr(O + 4 * sft, 4), 4160 * sft + 16640 * ch))
    return r


def k_zero(g):
    z6, z7 = g.newlabel("Z"), g.newlabel("Z")
    g("s_cmp_lt_u32 s%d, 6" % S_WAVE)
    g("s_cbranch_scc1 %s" % z7)
    for r in range(4):
        g("v_mov_b32 v%d, 0" % (192 + r))
    g("v_lshrrev_b32 v%d, 5, v1" % VT)
    g("v_lshlrev_b32 v%d, 12, v%d" % (VT, VT))
    g("v_lshl_add_u32 v%d, v1, 4, v%d" % (VT, VT))
    g("v_add_u32 v%d, %d, v%d" % (VT, UB, VT))
    g("s_cmp_eq_u32 s%d, 6" % S_WAVE)
    g("s_cbranch_scc1 %s" % z6)
    g("v_bfe_u32 v%d, v1, 1, 3" % VT)
    g("v_mul_u32_u24 v%d, 4160, v%d" % (VT, VT))
    g("v_and_b32 v%d, 1, v1" % VT2)
    g("v_lshl_add_u32 v%d, v%d, 4, v%d" % (VT, VT2, VT))
    g("v_add_u32 v%d, %d, v%d" % (VT, KC + 4096, VT))
    g.label(z6)
    g("ds_write_b128 v%d, v[192:195]" % VT)
    g.label(z7)


def tail_consts():
    r = []
    A = r.append
    A("s_mul_i32 s%d, s%d, %d" % (S_W2G, S_WAVE, 224 * 1024))
    A("s_lshl_b32 s%d, s%d, 7" % (S_T0, S_NT))
    A("s_add_u32 s%d, s%d, s%d" % (S_W2G, S_W2G, S_T0))
    A("s_lshl_b32 s%d, s%d, 12" % (S_STG, S_WAVE))
    A("s_lshl_b32 s%d, s%d, 16" % (S_OUTO, S_RT))
    A("s_add_u32 s%d, s%d, s%d" % (S_OUTO, S_OUTO, S_T0))
    A("s_lshl_b32 s%d, s%d, 13" % (S_T1, S_WAVE))
    A("s_add_u32 s%d, s%d, s%d" % (S_OUTO, S_OUTO, S_T1))
    A("s_lshr_b32 s%d, s2, 2" % S_T0)
    A("s_and_b32 s%d, s%d, 6" % (S_T0, S_T0))
    A("s_and_b32 s%d, s2, 7" % S_T1)
    A("s_add_u32 s%d, s%d, s%d" % (S_T0, S_T0, S_T1))
    for j in range(7):
        if j:
            A("s_add_u32 s%d, s%d, 1" % (S_T0, S_T0))
        A("s_sub_u32 s%d, s%d, 7" % (S_T1, S_T0))
        A("s_cmp_ge_u32 s%d, 7" % S_T0)
        A("s_cselect_b32 s%d, s%d, s%d" % (S_T0, S_T1, S_T0))
        A("s_lshl_b32 s%d, s%d, 10" % (S_J + j, S_T0))
    A("s_mul_i32 s%d, s%d, %d" % (S_T0, S_RT, 4 * 56))
    A("s_mul_i32 s%d, s%d, 7" % (S_T1, S_WAVE))
    A("s_add_u32 s%d, s%d, s%d" % (S_T0, S_T0, S_T1))
    A("s_lshl_b32 s%d, s%d, 10" % (S_T0, S_T0))
    A("s_add_u32 s%d, s%d, %d" % (S_T0, S_T0, WS_H))
    for mi in range(4):
        A("s_add_u32 s%d, s%d, %d" % (S_HB + mi, S_NT, mi))
        A("s_and_b32 s%d, s%d, 3" % (S_HB + mi, S_HB + mi))
        A("s_mul_i32 s%d, s%d, %d" % (S_HB + mi, S_HB + mi, 56 * 1024))
        A("s_add_u32 s%d, s%d, s%d" % (S_HB + mi, S_HB + mi, S_T0))
    A("v_lshrrev_b32 v%d, 4, v1" % VT)
    A("v_lshlrev_b32 v%d, 1, v%d" % (VT, VT))
    A("v_xor_b32 v%d, v%d, v1" % (VT, VT))
    A("v_and_b32 v%d, 7, v%d" % (VT, VT))
    A("v_lshrrev_b32 v%d, 3, v1" % VT2)
    A("v_lshlrev_b32 v%d, 10, v%d" % (V_W2D, VT2))
    A("v_lshl_add_u32 v%d, v%d, 4, v%d" % (V_W2D, VT, V_W2D))
    A("v_and_b32 v%d, 3, v%d" % (VT2, VT2))
    A("v_lshlrev_b32 v%d, 5, v%d" % (VT2, VT2))
    A("v_lshrrev_b32 v%d, 2, v1" % VT)
    A("v_lshl_add_u32 v%d, v%d, 7, v%d" % (VT2, VT, VT2))
    A("v_and_b32 v%d, 3, v1" % V_CR)
    A("v_lshl_add_u32 v%d, v%d, 3, v%d" % (VT2, V_CR, VT2))
    A("v_add_u32 v%d, s%d, v%d" % (V_W2A, S_STG, VT2))
    for c in range(1, 4):
        A("v_xor_b32 v%d, %d, v%d" % (V_W2A + c, 32 * c, V_W2A))
    A("v_lshl_add_u32 v%d, v%d, 2, v%d" % (VT, V_CR, VT))
    A("v_and_b32 v%d, 15, v%d" % (VT, VT))
    A("v_lshl_add_u32 v%d, v%d, 4, v%d" % (VT, V_CR, VT))
    A("s_lshl_b32 s%d, s%d, 10" % (S_T0, S_WAVE))
    A("s_add_u32 s%d, s%d, %d" % (S_T0, S_T0, PART))
    A("v_lshl_add_u32 v%d, v%d, 4, s%d" % (V_CR, VT, S_T0))
    A("v_lshlrev_b32 v%d, 3, v0" % V_CU)
    A("v_add_u32 v%d, %d, v%d" % (V_CU, UB + 512, V_CU))
    return r


WLOC = ["s0", "s1", "k", "s0", "s1", "k", "s2"]


def w2_dma(g, pos, other=False):
    d = -4 if other else 0
    g("s_lshl_b32 s%d, s%d, 5" % (S_M + 2, S_J + pos))
    g("s_add_u32 s%d, s%d, s%d" % (S_M + 2, S_M + 2, S_W2G))
    if other:
        g("s_sub_u32 s%d, s%d, %d" % (S_M + 2, S_M + 2, 4 * 224 * 1024))
    for q in range(4):
        off = SLOT[WLOC[pos]] + d * 4096 + q * 1024
        g("s_add_u32 m0, s%d, %d" % (S_STG, off) if off >= 0 else "s_sub_u32 m0, s%d, %d" % (S_STG, -off))
        g("s_add_u32 s%d, s%d, %d" % (S_M + 2, S_M + 2, 8192 if q else 0))
        g.vmem("buffer_load_dwordx4 v%d, %s, s%d offen lds" % (V_W2D, SRDW(S_W2), S_M + 2), "w2_%d" % pos)


V_W2H = 4


def w2_rd(g, pos, wait=True):
    if wait:
        g.wait_vm("w2_%d" % pos)
    off = SLOT[WLOC[pos]]
    va = V_W2A
    if off >= 65536:
        va, off = V_W2H, off - 65536
    for c in range(4):
        d = W2F + 16 * pos + 4 * c
        g("ds_read_b64_tr_b16 %s, v%d offset:%d" % (vr(d, 2), va + c, off))
        g("ds_read_b64_tr_b16 %s, v%d offset:%d" % (vr(d + 2, 2), va + c, off + 2048))


def reduce8(g, p):
    g("s_nop 1")
    for i in range(4):
        g("v_permlane32_swap_b32 v%d, v%d" % (p + i, p + i + 4))
    g("s_nop 1")
    for i in range(4):
        g("v_add_f32 v%d, v%d, v%d" % (p + i, p + i, p + i + 4))
    g("s_nop 1")
    for i in range(2):
        g("v_permlane16_swap_b32 v%d, v%d" % (p + i, p + i + 2))
    g("s_nop 1")
    for i in range(2):
        g("v_add_f32 v%d, v%d, v%d" % (p + i, p + i, p + i + 2))
    for rot in (8, 4, 2, 1):
        g("s_nop 1")
        for i in range(2):
            g("v_add_f32_dpp v%d, v%d, v%d row_ror:%d row_mask:0xf bank_mask:0xf" % (p + i, p + i, p + i, rot))


UREG = 72


def u_load(g):
    g("v_bfe_u32 v%d, v0, 4, 4" % VT)
    g("v_mul_u32_u24 v%d, %d, v%d" % (VT, XP, VT))
    g("v_and_b32 v%d, 15, v0" % VT2)
    g("v_lshl_add_u32 v%d, v%d, 4, v%d" % (VT, VT2, VT))
    g("s_lshl_b32 s%d, s2, 8" % S_T1)
    g("s_add_u32 s%d, s%d, %d" % (S_T2, S_T1, 16 * XP))
    g.vmem("buffer_load_dwordx4 %s, v%d, %s, s%d offen sc1" % (vr(UREG, 4), VT, SRDW(S_WS), S_T1), "u")
    g.vmem("buffer_load_dwordx4 %s, v%d, %s, s%d offen sc1" % (vr(UREG + 4, 4), VT, SRDW(S_WS), S_T2), "u")


def u_store(g):
    g("v_bfe_u32 v%d, v0, 4, 4" % VT)
    g("v_lshlrev_b32 v%d, 7, v%d" % (VT, VT))
    g("v_and_b32 v%d, 7, v0" % VT2)
    g("v_lshl_add_u32 v%d, v%d, 4, v%d" % (VT, VT2, VT))
    g("v_bfe_u32 v%d, v0, 3, 1" % VT2)
    g("v_mul_u32_u24 v%d, 4608, v%d" % (VT2, VT2))
    g("v_add_u32 v%d, v%d, v%d" % (VT, VT, VT2))
    g("v_add_u32 v%d, %d, v%d" % (VT, UB + 512, VT))
    g.wait_vm("u")
    g("ds_write_b128 v%d, %s" % (VT, vr(UREG, 4)))
    g("ds_write_b128 v%d, %s offset:2048" % (VT, vr(UREG + 4, 4)))


VAA, VBB, VPW = 232, 233, 234


def conv_addr(g):
    g("v_and_b32 v%d, 15, v1" % VT)
    g("v_lshrrev_b32 v%d, 4, v1" % VT2)
    g("v_lshl_add_u32 v192, v%d, 3, v%d" % (VT2, VT))
    g("s_bfe_u32 s%d, s%d, 0x10001" % (S_T2, S_WAVE))
    g("s_mul_i32 s%d, s%d, 16640" % (S_T3, S_T2))
    g("s_add_u32 s%d, s%d, %d" % (S_T3, S_T3, KC))
    g("s_and_b32 s%d, s%d, 1" % (S_T0, S_WAVE))
    g("s_lshl_b32 s%d, s%d, 5" % (S_T1, S_T0))
    g("s_sub_u32 s%d, %d, s%d" % (S_T1, 2047 + 8 - 32 * 62, S_T1))
    g("v_sub_u32 v192, s%d, v192" % S_T1)
    g("v_and_b32 v193, 3, v192")
    g("v_sub_u32 v192, v192, v193")
    g("v_lshlrev_b32 v192, 1, v192")
    g("v_mul_u32_u24 v193, 4160, v193")
    g("v_add3_u32 v%d, v192, v193, s%d" % (VAA, S_T3))
    g("v_lshlrev_b32 v192, 5, v%d" % VT)
    g("v_lshlrev_b32 v193, 4, v%d" % VT2)
    g("v_sub_u32 v192, v192, v193")
    g("s_mul_i32 s%d, s%d, 4608" % (S_T1, S_T2))
    g("s_lshl_b32 s%d, s%d, 6" % (S_T0, S_T0))
    g("s_sub_u32 s%d, s%d, s%d" % (S_T1, S_T1, S_T0))
    g("s_add_u32 s%d, s%d, %d" % (S_T1, S_T1, UB + 512 - 384 + 16))
    g("v_add_u32 v%d, s%d, v192" % (VBB, S_T1))
    g("v_lshl_add_u32 v%d, v%d, 2, v%d" % (VT, VT2, VT))
    g("v_and_b32 v%d, 15, v%d" % (VT, VT))
    g("v_lshl_add_u32 v%d, v%d, 4, v%d" % (VT, VT2, VT))
    g("s_lshl_b32 s%d, s%d, 3" % (S_T0, S_AK))
    g("s_add_u32 s%d, s%d, %d" % (S_T0, S_T0, PART))
    g("v_lshl_add_u32 v%d, v%d, 4, s%d" % (VPW, VT, S_T0))


def conv(g):
    BF, CACC, AF, NA = 16, 144, 176, 4
    def rdA(ip):
        d = AF + 4 * (ip % NA)
        return ["ds_read_b64 %s, v%d offset:%d" % (vr(d, 2), VAA, 128 * (31 - ip)),
                "ds_read_b64 %s, v%d offset:%d" % (vr(d + 2, 2), VAA, 128 * (31 - ip) + 8)]
    def rdB(tau):
        return "ds_read_b128 %s, v%d offset:%d" % (vr(BF + 4 * (tau + 3), 4), VBB, 128 * (tau + 3))
    lq = []
    def lds(s_, tag):
        g(s_); lq.append(tag)
    def lwait(tags):
        last = max([i for i, t in enumerate(lq) if t in tags], default=-1)
        if last < 0:
            return
        n = len(lq) - 1 - last
        g("s_waitcnt lgkmcnt(%d)" % min(n, 15))
        del lq[:last + 1]
        if n > 15:
            del lq[:len(lq) - 15]
    for s_ in rdA(0): lds(s_, "A0")
    for j in range(8):
        lds(rdB(4 * j), "B%d" % (4 * j))
    for k in (1, 2):
        for s_ in rdA(k): lds(s_, "A%d" % k)
    dmas = [(0, True), (0, False), (1, True), (1, False)]
    for ip in range(32):
        first = True
        for j in range(ip >> 2, 8):
            tau = 4 * j - ip
            lwait(["A%d" % ip, "B%d" % tau])
            a = CACC + 4 * j
            g("v_mfma_f32_16x16x32_bf16 %s, %s, %s, %s" % (vr(a, 4), vr(AF + 4 * (ip % NA), 4), vr(BF + 4 * (tau + 3), 4), "0" if ip == 0 else vr(a, 4)))
            if ip < 3:
                lds(rdB(4 * j - ip - 1), "B%d" % (4 * j - ip - 1))
            if first and ip + 3 < 32:
                for s_ in rdA(ip + 3): lds(s_, "A%d" % (ip + 3))
            first = False
        if ip in (1, 3, 5, 7):
            w2_dma(g, *dmas.pop(0))
    g("s_nop 7")
    for j in range(8):
        g("ds_write_b128 v%d, %s offset:%d" % (VPW, vr(CACC + 4 * j, 4), j * 1024))


def cap(fn):
    t = Gen(False)
    fn(t)
    return [l.strip() for l in t.L]


def gen(ts=False):
    g = Gen(ts)
    g("s_cmp_ge_u32 s2, 256")
    g("s_cbranch_scc1 L_END")
    if OPT["dbgtime"] or OPT.get("rt"):
        g("s_memtime s[98:99]")
        g("s_memrealtime s[100:101]")
    if ts:
        g("%s s[100:101]" % ("s_memrealtime" if OPT.get("rts") else "s_memtime"))
    g("s_load_dwordx16 s[64:79], s[0:1], 0")
    g("s_load_dwordx8 s[80:87], s[0:1], 64")
    g("s_load_dwordx4 s[88:91], s[0:1], 96")
    g("s_getpc_b64 s[%d:%d]" % (S_M, S_M + 1))
    g("s_lshr_b32 s%d, s2, 3" % S_T1)
    g("s_and_b32 s%d, s%d, 3" % (S_T2, S_T1))
    g("s_and_b32 s%d, s%d, 7" % (S_T0, S_T1))
    g("s_min_u32 s%d, s%d, 4" % (S_T0, S_T0))
    g("s_lshl_b32 s%d, s%d, 13" % (S_T0, S_T0))
    g("v_lshlrev_b32 v3, 4, v0")
    g("v_add_u32 v3, s%d, v3" % S_T0)
    g.vmem("global_load_dwordx4 v[252:255], v3, s[%d:%d]" % (S_M, S_M + 1), "code")
    g("v_and_b32 v1, 63, v0")
    g("v_lshrrev_b32 v3, 6, v0")
    g("v_lshlrev_b32 v2, 2, v1")
    g("v_readfirstlane_b32 s%d, v3" % S_WAVE)
    if ts:
        g("v_mov_b32 v15, 0")
    g("s_and_b32 s%d, s2, 7" % S_T0)
    g("s_and_b32 s%d, s2, 3" % S_RT)
    g("s_lshl_b32 s%d, s%d, 3" % (S_RT, S_RT))
    g("s_and_b32 s%d, s2, 4" % S_T3)
    g("s_add_u32 s%d, s%d, s%d" % (S_RT, S_RT, S_T3))
    g("s_add_u32 s%d, s%d, s%d" % (S_RT, S_RT, S_T2))
    g("s_lshr_b32 s%d, s2, 5" % S_NT)
    g("s_xor_b32 s%d, s%d, %d" % (S_NT, S_NT, OPT["ntx"]))
    g("s_and_b32 s%d, s%d, 3" % (S_AK, S_WAVE))
    g("s_lshl_b32 s%d, s%d, 10" % (S_AK, S_AK))
    g("s_bfe_u32 s%d, s%d, 0x10001" % (S_T3, S_WAVE))
    g("s_lshl_b32 s%d, s%d, 8" % (S_T3, S_T3))
    g("s_lshl_b32 s%d, s2, 9" % S_CNT)
    g("s_add_u32 s%d, s%d, s%d" % (S_T3, S_T3, S_CNT))
    g("v_add_u32 v%d, s%d, v2" % (VT, S_T3))
    g("s_lshl_b32 s%d, s2, 2" % S_CNT)
    g("s_sub_u32 s%d, s%d, 4" % (S_FT, S_T1))
    g("s_lshr_b32 s%d, s%d, 2" % (S_T3, S_FT))
    g("s_and_b32 s%d, s%d, 3" % (S_MT, S_T0))
    g("s_lshl_b32 s%d, s%d, 1" % (S_ROT, S_MT))
    g("s_lshl_b32 s%d, s%d, 2" % (S_MT, S_MT))
    g("s_add_u32 s%d, s%d, s%d" % (S_MT, S_MT, S_T2))
    g("s_lshr_b32 s%d, s%d, 2" % (S_FT, S_T0))
    g("s_mul_i32 s%d, s%d, 7" % (S_FT, S_FT))
    g("s_add_u32 s%d, s%d, s%d" % (S_FT, S_FT, S_T3))
    rm = OPT.get("rotmode", 0)
    if rm == 1:
        g("s_add_u32 s%d, s%d, s%d" % (S_ROT, S_ROT, S_T3))
        g("s_lshl_b32 s%d, s%d, 1" % (S_T3, S_T2))
        g("s_add_u32 s%d, s%d, s%d" % (S_ROT, S_ROT, S_T3))
    elif rm == 2:
        g("s_add_u32 s%d, s%d, s%d" % (S_T3, S_T3, S_T2))
        g("s_and_b32 s%d, s%d, 1" % (S_T3, S_T3))
        g("s_lshl_b32 s%d, s%d, 2" % (S_T3, S_T3))
        g("s_add_u32 s%d, s%d, s%d" % (S_ROT, S_ROT, S_T3))
    elif rm == 3:
        g("s_add_u32 s%d, s%d, s%d" % (S_T3, S_T3, S_T2))
        g("s_and_b32 s%d, s%d, 3" % (S_T3, S_T3))
        g("s_lshl_b32 s%d, s%d, 1" % (S_T3, S_T3))
        g("s_add_u32 s%d, s%d, s%d" % (S_ROT, S_ROT, S_T3))
    g("s_and_b32 s%d, s2, 4" % S_T3)
    g("s_add_u32 s%d, s%d, s%d" % (S_ROT, S_ROT, S_T3))
    g.stamp(60)
    g("s_waitcnt lgkmcnt(0)")
    for k, p in enumerate((P_LAR, P_AIM, P_CR, P_CI)):
        g.vmem("global_load_dword v%d, v%d, s[%d:%d]" % (PRM + k, VT, p, p + 1), "prm")
    g("s_load_dword s%d, s[%d:%d], s%d" % (S_LDT, P_LDT, P_LDT + 1, S_CNT))
    g("s_load_dword s%d, s[%d:%d], s%d" % (S_DSK, P_DSK, P_DSK + 1, S_CNT))
    srd(g, S_X, 64, 2097152)
    srd(g, S_W1, 80, 1835008)
    srd(g, S_W3, 82, 1835008)
    srd(g, S_W2, 84, 1835008)
    srd(g, S_OUT, 86, 2097152)
    srd(g, S_DBG, 88, 256)
    srd(g, S_WS, 90, WS_SIZE)
    nonce_write(g)
    if ts:
        g("v_writelane_b32 v15, s100, 63")
    g.stamp(0)
    g("s_cmp_lt_u32 s2, 32")
    g("s_cbranch_scc1 L_AUX")
    vm_entry = list(g.vm)
    g("s_cmp_lt_u32 s%d, 4" % S_WAVE)
    g("s_cbranch_scc1 L_G")
    V_WD, V_XD = 3, 7
    V_FL, V_F2, V_PA = 8, 9, 10
    g("s_lshl_b32 s%d, s%d, 8" % (S_OB, S_FT))
    g("s_lshl_b32 s%d, s%d, 17" % (S_OB + 1, S_MT))
    def offs_l(i):
        return ["s_add_u32 s%d, s%d, %d" % (S_XOFF + i, S_ROT, i),
                "s_and_b32 s%d, s%d, 7" % (S_XOFF + i, S_XOFF + i),
                "s_mul_i32 s%d, s%d, %d" % (S_WOFF + i, S_XOFF + i, 64 * 3584),
                "s_add_u32 s%d, s%d, s%d" % (S_WOFF + i, S_WOFF + i, S_OB),
                "s_lshl_b32 s%d, s%d, 7" % (S_XOFF + i, S_XOFF + i),
                "s_add_u32 s%d, s%d, s%d" % (S_XOFF + i, S_XOFF + i, S_OB + 1)]
    g.emit(offs_l(0))
    g("v_lshrrev_b32 v%d, 4, v1" % VT)
    g("s_bfe_u32 s%d, s%d, 0x10001" % (S_T2, S_WAVE))
    g("s_lshl_b32 s%d, s%d, 2" % (S_T2, S_T2))
    g("v_or_b32 v%d, s%d, v%d" % (VT2, S_T2, VT))
    g("v_lshlrev_b32 v%d, 1, v%d" % (VT2, VT2))
    g("v_and_b32 v%d, 15, v1" % V_WD)
    g("v_xor_b32 v%d, v%d, v%d" % (V_WD, V_WD, VT2))
    g("v_lshlrev_b32 v%d, 4, v%d" % (V_WD, V_WD))
    g("v_bfe_u32 v%d, v0, 4, 4" % VT)
    g("v_mul_u32_u24 v%d, 3584, v%d" % (VT2, VT))
    g("v_add_u32 v%d, v%d, v%d" % (V_WD, V_WD, VT2))
    for k in range(1, 4):
        g("v_add_u32 v%d, %d, v%d" % (V_WD + k, 16 * k * 3584, V_WD))
    g("v_xor_b32 v%d, v%d, v1" % (VT, VT))
    g("v_and_b32 v%d, 7, v%d" % (VT, VT))
    g("v_bfe_u32 v%d, v0, 3, 5" % VT2)
    g("v_lshlrev_b32 v%d, 10, v%d" % (VT2, VT2))
    g("v_lshl_add_u32 v%d, v%d, 4, v%d" % (V_XD, VT, VT2))

    def xdma(st, bs, tag):
        for b in bs:
            g("s_add_u32 m0, s%d, %d" % (S_AK, XBASE + (st % 3) * 16384 + b * 4096))
            g("s_add_u32 s%d, s%d, %d" % (S_T3, S_XOFF + st, b * 32768))
            g.vmem("buffer_load_dwordx4 v%d, %s, s%d offen lds" % (V_XD, SRDW(S_X), S_T3), tag)

    def unit(k):
        st, h = k >> 1, k & 1
        if h == 0 and k != 4:
            xdma(st, range(4) if k <= 4 else (2, 3), "U%d" % k)
        for mat in range(2):
            for half in range(2):
                g("s_add_u32 m0, s%d, %d" % (S_AK, WBASE + (k % 4) * 16384 + mat * 8192 + half * 4096))
                g("s_nop 0")
                g.vmem("buffer_load_dwordx4 v%d, %s, s%d offen lds" % (V_WD + 2 * h + half, SRDW((S_W1, S_W3)[mat]), S_WOFF + st), "U%d" % k)
        if h == 1 and 5 <= k < 15:
            xdma(st + 1, (0, 1), "U%d" % (k + 1))

    g.stamp(61)
    unit(0); unit(1)
    g.stamp(62)
    g.emit(offs_l(1))
    k_wr(g)
    k_raddr(g)
    g("v_bfe_u32 v%d, v1, 2, 2" % VT)
    g("v_lshrrev_b32 v%d, 4, v1" % VT2)
    g("v_and_b32 v%d, 1, v%d" % (V_PA, VT2))
    g("v_lshl_or_b32 v%d, v%d, 2, v%d" % (V_PA, V_PA, VT))
    g("s_and_b32 s%d, s%d, 3" % (S_T3, S_MT))
    g("s_lshl_b32 s%d, s%d, 1" % (S_T3, S_T3))
    g("v_xor_b32 v%d, s%d, v%d" % (V_PA, S_T3, V_PA))
    g("v_lshlrev_b32 v%d, 5, v%d" % (V_PA, V_PA))
    g("v_lshl_add_u32 v%d, v%d, 3, v%d" % (VT, VT2, VT))
    g("v_lshl_add_u32 v%d, v%d, 8, v%d" % (V_PA, VT, V_PA))
    g("v_and_b32 v%d, 3, v1" % VT)
    g("v_lshl_add_u32 v%d, v%d, 3, v%d" % (V_PA, VT, V_PA))
    g("s_bfe_u32 s%d, s%d, 0x10001" % (S_T2, S_WAVE))
    g("s_lshl_b32 s%d, s%d, 13" % (S_T2, S_T2))
    g("s_add_u32 s%d, s%d, %d" % (S_T2, S_T2, WBASE))
    g("v_add_u32 v%d, s%d, v%d" % (V_PA, S_T2, V_PA))
    g("s_and_b32 s%d, s%d, 1" % (S_T2, S_WAVE))
    g("s_lshl_b32 s%d, s%d, 5" % (S_T2, S_T2))
    g("v_xor_b32 v%d, s%d, v%d" % (V_PA, S_T2, V_PA))
    ONES, PF, PD = 112, 116, 124
    for r in range(4):
        g("v_mov_b32 v%d, 0x3f803f80" % (ONES + r))
    g.stamp(59)
    g.wait_vm("prm", "lgkmcnt(0)")
    g.stamp(20)
    if OPT.get("st", 1):
        k_chains(g, 1, lambda: unit(2))
        g.stamp(58)
        g.emit(offs_l(2))
        g.wait_vm("U1", "lgkmcnt(0)")
    else:
        k_chains(g, 1)
        g.stamp(58)
        unit(2)
        g.wait_vm("U0", "lgkmcnt(0)")
    g.stamp(1)
    g("s_barrier")
    g.stamp(2)
    def pcs_rd(k):
        d = PF + 4 * (k & 1)
        return ["ds_read_b64_tr_b16 %s, v%d offset:%d" % (vr(d, 2), V_PA, (k % 4) * 16384),
                "ds_read_b64_tr_b16 %s, v%d offset:%d" % (vr(d + 2, 2), V_PA, (k % 4) * 16384 + 1024)]
    def pcs_mf(k):
        return ["v_mfma_f32_16x16x32_bf16 %s, %s, %s, %s" % (vr(PD, 4), vr(PF + 4 * (k & 1), 4), vr(ONES, 4), "0" if k == 0 else vr(PD, 4))]
    def pcs_store():
        g("s_lshl_b32 s%d, s%d, 2" % (S_T2, S_FT))
        g("s_lshr_b32 s%d, s%d, 2" % (S_T3, S_MT))
        g("s_add_u32 s%d, s%d, s%d" % (S_T2, S_T2, S_T3))
        g("s_lshl_b32 s%d, s%d, 10" % (S_T2, S_T2))
        g("s_bfe_u32 s%d, s%d, 0x10001" % (S_T3, S_WAVE))
        g("s_lshl_b32 s%d, s%d, 9" % (S_T3, S_T3))
        g("s_add_u32 s%d, s%d, s%d" % (S_T2, S_T2, S_T3))
        g("s_and_b32 s%d, s%d, 3" % (S_T3, S_MT))
        g("s_lshl_b32 s%d, s%d, 7" % (S_T3, S_T3))
        g("s_add_u32 s%d, s%d, s%d" % (S_T2, S_T2, S_T3))
        g("s_and_b32 s%d, s%d, 1" % (S_T3, S_WAVE))
        g("s_lshl_b32 s%d, s%d, 6" % (S_T3, S_T3))
        g("s_add_u32 s%d, s%d, s%d" % (S_T2, S_T2, S_T3))
        g("s_add_u32 s%d, s%d, %d" % (S_T2, S_T2, WS_PCS))
        g("s_mov_b32 s%d, 0x00010001" % S_EX)
        g("s_mov_b32 s%d, 0x00010001" % (S_EX + 1))
        g("s_mov_b64 exec, s[%d:%d]" % (S_EX, S_EX + 1))
        g.vmem("buffer_store_dwordx4 %s, v1, %s, s%d offen sc1" % (vr(PD, 4), SRDW(S_WS), S_T2), "pst")
        g("s_mov_b64 exec, -1")
    SCR = 80
    def sc_load():
        g("v_lshlrev_b32 v%d, 4, v1" % V_PA)
        sk, s2 = g.newlabel("SC"), g.newlabel("SC")
        g("s_cmp_ge_u32 s%d, 6" % S_WAVE)
        g("s_cbranch_scc1 %s" % sk)
        g("s_lshl_b32 s%d, s%d, 11" % (S_T2, S_MT))
        g("s_add_u32 s%d, s%d, s%d" % (S_T2, S_T2, S_AK))
        g("s_add_u32 s%d, s%d, %d" % (S_T2, S_T2, WS_STATS))
        g("buffer_load_dwordx4 %s, v%d, %s, s%d offen sc1" % (vr(SCR, 4), V_PA, SRDW(S_WS), S_T2))
        g("s_branch %s" % s2)
        g.label(sk)
        g("s_lshl_b32 s%d, s%d, 12" % (S_T2, S_FT))
        g("s_add_u32 s%d, s%d, %d" % (S_T2, S_T2, WS_PCS))
        for k in range(4):
            g("buffer_load_dwordx4 %s, v%d, %s, s%d offen offset:%d sc1" % (vr(SCR + 4 * k, 4), V_PA, SRDW(S_WS), S_T2, 1024 * k))
        g.label(s2)
    def sc_store():
        sk = g.newlabel("SC")
        g("s_cmp_lt_u32 s%d, 6" % S_WAVE)
        g("s_cbranch_scc1 %s" % sk)
        for r in range(4):
            g("v_add_f32 v%d, v%d, v%d" % (SCR + r, SCR + r, SCR + 4 + r))
            g("v_add_f32 v%d, v%d, v%d" % (SCR + 8 + r, SCR + 8 + r, SCR + 12 + r))
        for r in range(4):
            g("v_add_f32 v%d, v%d, v%d" % (SCR + r, SCR + r, SCR + 8 + r))
        g.label(sk)
        g("s_min_u32 s%d, s%d, 2048" % (S_T2, S_AK))
        g("s_add_u32 s%d, s%d, %d" % (S_T2, S_T2, SCL))
        g("v_add_u32 v%d, s%d, v%d" % (V_PA, S_T2, V_PA))
        g("ds_write_b128 v%d, %s" % (V_PA, vr(SCR, 4)))
    if OPT["aprio"]:
        g("s_setprio %d" % OPT["aprio"])
    if OPT.get("st", 1):
        g.emit(pcs_rd(0))
    else:
        g.emit(pcs_rd(0) + offs_l(2) + [lambda: unit(3), lambda: k_tload(g), lambda: nonce_issue(g, V_F2)])
    tc = tail_consts()
    ca = cap(conv_addr)
    kr, km = k_reads(), k_mfmas()
    pub_pcs = lambda: publish(g, (S_FT, 25), lambda: g("s_lshl_b32 s%d, s%d, 7" % (S_EX, S_MT)), VT)
    LW = "s_waitcnt lgkmcnt(0)"
    work = {
        0: (pcs_rd(1) + kr[:12] + [lambda: unit(4)] + pcs_mf(0) + offs_l(3), True),
        1: (pcs_rd(2) + kr[12:] + [lambda: xdma(2, range(4), "U4"), lambda: unit(5)] + km[:8] + pcs_mf(1), True),
        2: (pcs_rd(3) + [lambda: unit(6)] + km[8:] + pcs_mf(2) + offs_l(4), True),
        3: (pcs_mf(3) + tc[:16] + [pcs_store, lambda: unit(7)], False),
        4: ([lambda: unit(8), lambda: nonce_check(g, V_F2)] + offs_l(5) + tc[16:46], False),
        5: ([lambda: unit(9)] + tc[46:67], False),
        6: ([lambda: unit(10), pub_pcs] + offs_l(6), False),
        7: ([lambda: unit(11)] + tc[67:], False),
        8: ([lambda: unit(12)] + offs_l(7), False),
        9: ([lambda: unit(13)] + ca, False),
        10: ([lambda: unit(14), lambda: flag_issue(g, V_F2, (S_FT, 25), 16, "0:flag2", S_FA2), lambda: flag_issue(g, V_FL, (None, 0), 32)], False),
        11: ([lambda: unit(15), lambda: flag_check(g, V_F2, 16, "0:flag2", S_FA2), lambda: flag_check(g, V_FL, 32)], False),
        12: ([sc_load, lambda: u_load(g)] + k_table(), True),
        13: (k_gather(0) + k_gather(1) + [lambda: k_zero(g), lambda: nonce_lds(g), LW] + [x for x in k_build(0) + k_build(1) if x.startswith("v_lshl_or")], True),
        14: ([x for x in k_build(0) + k_build(1) if x.startswith("ds_write")] + [lambda: u_store(g), sc_store], True),
    }
    if OPT.get("st", 1):
        work[0] = ([lambda: unit(3)] + work[0][0], True)
        work[2] = (work[2][0] + [lambda: nonce_issue(g, V_F2)], True)
        work[6] = (work[6][0] + [lambda: k_tload(g)], False)
    lw = True
    for it in range(16):
        ex = "lgkmcnt(0)" if lw else ""
        if it < 15:
            g.wait_vm("U%d" % (it + 1), ex)
        elif ex:
            g("s_waitcnt lgkmcnt(0)")
        g("s_barrier")
        if it in (0, 15):
            g.stamp(41 + it)
        if it < 15:
            g.emit(work[it][0])
            lw = work[it][1]
    g("s_setprio %d" % OPT["cprio"])
    g.label("L_ACONV")
    g.vm = []
    g.stamp(3)
    conv(g)
    g.stamp(4)
    g("s_branch L_J")

    g.label("L_G")
    g.vm = list(vm_entry)
    V_XA0, V_XA1, V_WA = 3, 4, 5
    SETS, ACC = [16, 64], 112
    g("v_and_b32 v%d, 15, v1" % VT)
    g("v_lshrrev_b32 v%d, 4, v1" % VT2)
    g("v_lshrrev_b32 v%d, 1, v%d" % (V_XA0, VT))
    g("v_xor_b32 v%d, v%d, v%d" % (V_XA0, V_XA0, VT2))
    g("v_lshlrev_b32 v%d, 4, v%d" % (V_XA0, V_XA0))
    g("v_lshl_add_u32 v%d, v%d, 7, v%d" % (V_XA0, VT, V_XA0))
    g("s_lshr_b32 s%d, s%d, 1" % (S_T2, S_WAVE))
    g("s_lshl_b32 s%d, s%d, 13" % (S_T3, S_T2))
    g("v_add_u32 v%d, s%d, v%d" % (V_XA0, S_T3, V_XA0))
    g("v_xor_b32 v%d, 64, v%d" % (V_XA1, V_XA0))
    g("s_lshl_b32 s%d, s%d, 10" % (S_T3, S_T2))
    g("s_add_u32 s%d, s%d, %d" % (S_T3, S_T3, SCL))
    g("v_lshl_add_u32 v9, v%d, 4, s%d" % (VT, S_T3))
    g("s_and_b32 s%d, s%d, 1" % (S_T0, S_WAVE))
    g("s_lshl_b32 s%d, s%d, 8" % (S_T3, S_T0))
    g("s_add_u32 s%d, s%d, %d" % (S_T3, S_T3, SCL + 2048))
    g("v_lshl_add_u32 v10, v%d, 4, s%d" % (VT2, S_T3))
    g("v_lshrrev_b32 v%d, 2, v%d" % (VT, VT))
    g("v_and_b32 v%d, 1, v%d" % (V_WA, VT2))
    g("v_lshl_or_b32 v%d, v%d, 2, v%d" % (V_WA, V_WA, VT))
    g("s_lshl_b32 s%d, s%d, 2" % (S_T3, S_T0))
    g("v_xor_b32 v%d, s%d, v%d" % (V_WA, S_T3, V_WA))
    g("v_lshlrev_b32 v%d, 5, v%d" % (V_WA, V_WA))
    g("v_lshl_add_u32 v%d, v%d, 3, v%d" % (VT, VT2, VT))
    g("v_lshl_add_u32 v%d, v%d, 8, v%d" % (V_WA, VT, V_WA))
    g("v_and_b32 v%d, 3, v1" % VT)
    g("v_lshl_add_u32 v%d, v%d, 3, v%d" % (V_WA, VT, V_WA))
    g("v_add_u32 v%d, %d, v%d" % (V_WA, WBASE, V_WA))
    for tt in range(1, 4):
        g("v_xor_b32 v%d, %d, v%d" % (V_WA + tt, 32 * tt, V_WA))
    g("s_lshl_b32 s%d, s%d, 2" % (S_HST, S_T2))
    g("s_lshl_b32 s%d, s%d, 3" % (S_T3, S_MT))
    g("s_add_u32 s%d, s%d, s%d" % (S_HST, S_HST, S_T3))
    g("s_mul_i32 s%d, s%d, 56" % (S_HST, S_HST))
    g("s_lshl_b32 s%d, s%d, 2" % (S_T3, S_FT))
    g("s_add_u32 s%d, s%d, s%d" % (S_HST, S_HST, S_T3))
    g("s_lshl_b32 s%d, s%d, 1" % (S_T3, S_T0))
    g("s_add_u32 s%d, s%d, s%d" % (S_HST, S_HST, S_T3))
    g("s_lshl_b32 s%d, s%d, 10" % (S_HST, S_HST))
    g("s_add_u32 s%d, s%d, %d" % (S_HST, S_HST, WS_H))
    g("v_lshlrev_b32 v11, 4, v1")
    k_wr(g)
    g.emit(tail_consts())
    g.wait_vm("prm", "lgkmcnt(0)")
    g.stamp(20)
    k_chains(g, 0)
    if OPT.get("touch"):
        sk = g.newlabel("TCH")
        g("s_cmp_lg_u32 s%d, 0" % S_WAVE)
        g("s_cbranch_scc1 %s" % sk)
        g("s_mov_b64 exec, 1")
        g("buffer_load_dword v252, off, %s, s%d sc1" % (SRDW(S_WS), S_HST))
        g("s_mul_i32 s%d, s2, %d" % (S_T0, AOP))
        g("s_add_u32 s%d, s%d, %d" % (S_T0, S_T0, WS_AO))
        g("buffer_load_dword v253, off, %s, s%d sc1" % (SRDW(S_WS), S_T0))
        g("buffer_load_dword v254, off, %s, s%d sc1" % (SRDW(S_OUT), S_OUTO))
        g("buffer_load_dword v255, off, %s, s%d" % (SRDW(S_W2), S_W2G))
        g("s_mov_b64 exec, -1")
        g.label(sk)
    g("s_waitcnt lgkmcnt(0)")
    g.stamp(1)
    g("s_barrier")
    g.stamp(2)

    def frag_reads(it):
        S = SETS[it & 1]
        xs = (it >> 1) % 3
        va = V_XA1 if (it & 1) else V_XA0
        so = (it % 4) * 16384
        xr = ["ds_read_b128 %s, v%d offset:%d" % (vr(S + 4 * mi, 4), va, XBASE + xs * 16384 + mi * 2048) for mi in range(4)]
        wr = []
        for mat in range(2):
            for tt in range(4):
                d = S + 16 + 4 * (4 * mat + tt)
                wr.append("ds_read_b64_tr_b16 %s, v%d offset:%d" % (vr(d, 2), V_WA + tt, so + mat * 8192))
                wr.append("ds_read_b64_tr_b16 %s, v%d offset:%d" % (vr(d + 2, 2), V_WA + tt, so + mat * 8192 + 1024))
        return xr + wr

    STR, CSR = 16, 32
    def sc_reads():
        r = ["ds_read_b128 %s, v9 offset:%d" % (vr(STR + 4 * mi, 4), mi * 256) for mi in range(4)]
        r += ["ds_read_b128 %s, v10 offset:%d" % (vr(CSR + 4 * c, 4), (c >> 2) * 512 + (c & 3) * 64) for c in range(8)]
        return r

    g.emit(frag_reads(0))
    for it in range(16):
        g("s_waitcnt lgkmcnt(0)")
        g("s_barrier")
        if it in (0, 8, 12, 15) or OPT.get("gst"):
            g.stamp(41 + it)
        S = SETS[it & 1]
        rd = frag_reads(it + 1) if it < 15 else sc_reads()
        n = 0
        for mi in range(4):
            for c in range(8):
                a = ACC + 32 * mi + 4 * c
                g("v_mfma_f32_16x16x32_bf16 %s, %s, %s, %s" % (vr(a, 4), vr(S + 16 + 4 * c, 4), vr(S + 4 * mi, 4), "0" if it == 0 else vr(a, 4)))
                if n < len(rd):
                    g(rd[n])
                n += 1
    g.stamp(3)
    g("s_waitcnt lgkmcnt(0)")
    E, HO = 64, 80
    for mi in range(4):
        st = STR + 4 * mi
        for kp in range(2):
            ho = HO + 4 * kp
            for t2 in range(2):
                tt = 2 * kp + t2
                ag, au = ACC + 32 * mi + 4 * tt, ACC + 32 * mi + 4 * (4 + tt)
                c1, c3 = CSR + 4 * tt, CSR + 4 * (4 + tt)
                e = E + 4 * t2
                for r in range(4):
                    g("v_fma_f32 v%d, -v%d, v%d, v%d" % (ag + r, st, c1 + r, ag + r))
                for r in range(4):
                    g("v_mul_f32 v%d, v%d, v%d" % (e + r, st + 1, ag + r))
                for r in range(4):
                    g("v_exp_f32 v%d, v%d" % (e + r, e + r))
                for r in range(4):
                    g("v_fma_f32 v%d, -v%d, v%d, v%d" % (au + r, st, c3 + r, au + r))
                for r in range(4):
                    g("v_fma_f32 v%d, v%d, v%d, v%d" % (e + r, e + r, st + 2, st + 2))
                for r in range(4):
                    g("v_rcp_f32 v%d, v%d" % (e + r, e + r))
                for r in range(4):
                    g("v_mul_f32 v%d, v%d, v%d" % (ag + r, ag + r, au + r))
                for r in range(4):
                    g("v_mul_f32 v%d, v%d, v%d" % (ag + r, ag + r, e + r))
                g("v_cvt_pk_bf16_f32 v%d, v%d, v%d" % (ho + 2 * t2, ag, ag + 1))
                g("v_cvt_pk_bf16_f32 v%d, v%d, v%d" % (ho + 2 * t2 + 1, ag + 2, ag + 3))
            g.vmem("buffer_store_dwordx4 %s, v11, %s, s%d offen offset:%d sc1" % (vr(ho, 4), SRDW(S_WS), S_HST, 1024 * kp), "hst")
        if mi < 3:
            g("s_add_u32 s%d, s%d, %d" % (S_HST, S_HST, 56 * 1024))
    g.stamp(4)
    g("s_branch L_J")

    g.label("L_AUX")
    g.vm = list(vm_entry)
    aux(g)

    g.label("L_J")
    common(g)
    g.label("L_END")
    g("s_endpgm")
    return g


def aux(g):
    S_RB = S_MT
    g("s_and_b32 s%d, s2, 3" % S_T3)
    g("s_lshl_b32 s%d, s%d, 3" % (S_RB, S_T3))
    g("s_and_b32 s%d, s2, 4" % S_T3)
    g("s_add_u32 s%d, s%d, s%d" % (S_RB, S_RB, S_T3))
    g("s_add_u32 s%d, s%d, s%d" % (S_RB, S_RB, S_T1))
    XR, XF, TT, RED, ONES = 112, 16, 80, 144, 152
    g("v_lshlrev_b32 v%d, 4, v1" % VT)
    g("s_lshl_b32 s%d, s%d, 16" % (S_FT, S_RB))
    g("s_lshl_b32 s%d, s%d, 13" % (S_ROT, S_WAVE))
    g("s_add_u32 s%d, s%d, s%d" % (S_FT, S_FT, S_ROT))
    g("s_add_u32 s%d, s%d, 4096" % (S_T2, S_FT))
    for i in range(8):
        g.vmem("buffer_load_dwordx4 %s, v%d, %s, s%d offen offset:%d" % (vr(XR + 4 * i, 4), VT, SRDW(S_X), S_T2 if i >= 4 else S_FT, (i & 3) * 1024), "x")
    k_wr(g)
    g.wait_vm("prm", "lgkmcnt(0)")
    g("s_cmp_ge_u32 s%d, 4" % S_WAVE)
    g("s_cbranch_scc1 L_AXB")
    k_chains(g, 0)
    g("s_branch L_AXC")
    g.label("L_AXB")
    k_chains(g, 1)
    k_raddr(g)
    g.label("L_AXC")
    g.emit(tail_consts())
    g("v_mov_b32 v%d, 0x3f803f80" % ONES)
    g("v_and_b32 v3, 7, v1")
    g("v_xor_b32 v3, s%d, v3" % S_WAVE)
    g("v_lshlrev_b32 v3, 4, v3")
    g("v_lshl_add_u32 v3, v1, 10, v3")
    g("v_add_u32 v3, %d, v3" % WBASE)
    g("v_lshrrev_b32 v4, 4, v1")
    g("v_lshlrev_b32 v4, 5, v4")
    g("s_lshr_b32 s%d, s%d, 6" % (S_T0, S_FT))
    g("s_add_u32 s%d, s%d, %d" % (S_T0, S_T0, WS_STATS))
    g("s_mov_b32 s%d, 0x00010001" % S_EX)
    g("s_mov_b32 s%d, 0x00010001" % (S_EX + 1))
    SM = 36
    MEAN, SO, RI = 154, 156, 164
    g.wait_vm("x")
    g.stamp(30)
    nonce_issue(g, 9)
    for i in range(8):
        g("v_dot2_f32_bf16 v%d, v%d, v%d, 0" % (RED + i, XR + 4 * i, ONES))
    for k in range(1, 4):
        for i in range(8):
            g("v_dot2_f32_bf16 v%d, v%d, v%d, v%d" % (RED + i, XR + 4 * i + k, ONES, RED + i))
    for i in range(8):
        for k in range(4):
            g("v_lshlrev_b32 v%d, 16, v%d" % (XF + 8 * i + 2 * k, XR + 4 * i + k))
            g("v_and_b32 v%d, 0xffff0000, v%d" % (XF + 8 * i + 2 * k + 1, XR + 4 * i + k))
    reduce8(g, RED)
    for i in range(2):
        g("v_mul_f32 v%d, 0x3b000000, v%d" % (MEAN + i, RED + i))
    g("s_nop 0")
    for row in range(8):
        g("v_readlane_b32 s%d, v%d, %d" % (SM + 2 * row, MEAN + (row & 1), 16 * (row >> 1)))
    g("s_nop 1")
    for k in range(4):
        for i in range(8):
            g("v_pk_add_f32 %s, %s, s[%d:%d] op_sel_hi:[1,0] neg_lo:[0,1] neg_hi:[0,1]" % (vr(TT + 2 * i, 2), vr(XF + 8 * i + 2 * k, 2), SM + 2 * i, SM + 2 * i + 1))
        for i in range(8):
            d, a = TT + 2 * i, XR + 2 * i
            if k == 0:
                g("v_pk_mul_f32 %s, %s, %s" % (vr(a, 2), vr(d, 2), vr(d, 2)))
            else:
                g("v_pk_fma_f32 %s, %s, %s, %s" % (vr(a, 2), vr(d, 2), vr(d, 2), vr(a, 2)))
    for i in range(8):
        g("v_add_f32 v%d, v%d, v%d" % (RED + i, XR + 2 * i, XR + 2 * i + 1))
    reduce8(g, RED)
    for i in range(2):
        o = SO + 4 * i
        g("v_mul_f32 v%d, 0x3b000000, v%d" % (RED + i, RED + i))
        rnd_bf16(g, RED + i, RED + i)
        g("v_add_f32 v%d, 0x3727c5ac, v%d" % (RED + i, RED + i))
        rnd_bf16(g, RED + i, RED + i)
        g("v_sqrt_f32 v%d, v%d" % (RED + i, RED + i))
        g("s_nop 0")
        rnd_bf16(g, RED + i, RED + i)
        g("v_rcp_f32 v%d, v%d" % (RI + i, RED + i))
        rnd_bf16(g, o, MEAN + i)
        g("v_mul_f32 v%d, 0x%x, v%d" % (o + 1, NLOG2E, RI + i))
        g("v_mul_f32 v%d, v%d, v%d" % (o + 2, RED + i, RED + i))
        g("v_mov_b32 v%d, v%d" % (o + 3, RED + i))
    g("s_nop 0")
    for row in range(8):
        g("v_readlane_b32 s%d, v%d, %d" % (SM + 2 * row, SO + 4 * (row & 1), 16 * (row >> 1)))
        g("v_readlane_b32 s%d, v%d, %d" % (SM + 2 * row + 1, RI + (row & 1), 16 * (row >> 1)))
    g("s_mov_b64 exec, s[%d:%d]" % (S_EX, S_EX + 1))
    for i in range(2):
        g.vmem("buffer_store_dwordx4 %s, v4, %s, s%d offen offset:%d sc1" % (vr(SO + 4 * i, 4), SRDW(S_WS), S_T0, 16 * i), "s1")
    g("s_mov_b64 exec, -1")
    for i in range(8):
        for k in range(4):
            d = XF + 8 * i + 2 * k
            g("v_pk_add_f32 %s, %s, s[%d:%d] op_sel_hi:[1,0] neg_lo:[0,1] neg_hi:[0,1]" % (vr(d, 2), vr(d, 2), SM + 2 * i, SM + 2 * i + 1))
        for k in range(4):
            d = XF + 8 * i + 2 * k
            g("v_pk_mul_f32 %s, %s, s[%d:%d] op_sel:[0,1] op_sel_hi:[1,1]" % (vr(d, 2), vr(d, 2), SM + 2 * i, SM + 2 * i + 1))
    for c in range(8):
        for ip in range(4):
            g("v_cvt_pk_bf16_f32 v%d, v%d, v%d" % (TT + 4 * c + ip, XF + 16 * ip + c, XF + 16 * ip + 8 + c))
        g("ds_write_b128 v3, %s offset:%d" % (vr(TT + 4 * c, 4), c * 128))
    g("v_lshlrev_b32 v3, 4, v1")
    g("v_add_u32 v4, s%d, v3" % S_ROT)
    for k in range(8):
        g("v_xor_b32 v%d, %d, v3" % (RED + k, 16 * k))
    g("s_mul_i32 s%d, s%d, %d" % (S_T2, S_RB, XP))
    g("s_add_u32 s%d, s%d, s%d" % (S_T2, S_T2, S_ROT))
    g("s_add_u32 s%d, s%d, 4096" % (S_T3, S_T2))
    g("s_waitcnt lgkmcnt(0)")
    g.stamp(33)
    g("s_barrier")
    XS = 160
    for k in range(8):
        g("ds_read_b128 %s, v4 offset:%d" % (vr(XS + 4 * k, 4), WBASE + k * 1024))
    for k in range(8):
        g("s_waitcnt lgkmcnt(%d)" % (7 - k))
        g.vmem("buffer_store_dwordx4 %s, v%d, %s, s%d offen offset:%d sc1" % (vr(XS + 4 * k, 4), RED + k, SRDW(S_WS), S_T3 if k >= 4 else S_T2, (k & 3) * 1024), "s1")
    g.stamp(34)
    nonce_check(g, 9)
    nonce_lds(g)
    sk = g.newlabel("AXK")
    g("s_cmp_lt_u32 s%d, 4" % S_WAVE)
    g("s_cbranch_scc1 %s" % sk)
    vs = list(g.vm)
    k_tload(g)
    g.vm = vs
    g.emit(k_reads())
    conv_addr(g)
    g("s_waitcnt lgkmcnt(0)")
    g.emit(k_mfmas())
    g.label(sk)
    g.wait_vm("s1")
    g("s_barrier")
    publish(g, (None, 0), lambda: g("s_lshl_b32 s%d, s2, 7" % S_EX), VT)
    g.stamp(31)
    g.stamp(35)
    g("s_cmp_ge_u32 s%d, 4" % S_WAVE)
    g("s_cbranch_scc1 L_AXH")
    g("s_lshr_b32 s%d, s2, 3" % S_T0)
    g("s_lshl_b32 s%d, s%d, 1" % (S_T0, S_T0))
    g("s_and_b32 s%d, s%d, 1" % (S_T1, S_WAVE))
    g("s_add_u32 s%d, s%d, s%d" % (S_T0, S_T0, S_T1))
    g("s_mul_i32 s%d, s%d, 224" % (S_T0, S_T0))
    g("s_lshr_b32 s%d, s%d, 1" % (S_T1, S_WAVE))
    g("s_add_u32 s%d, s%d, s%d" % (S_T0, S_T0, S_T1))
    g("s_lshl_b32 s%d, s%d, 10" % (S_ROT, S_T0))
    g("s_and_b32 s%d, s2, 7" % S_FT)
    g("v_lshlrev_b32 v5, 4, v1")
    nb = OPT["auxpf"]
    def pf():
        g("s_sub_u32 s%d, s%d, 7" % (S_T1, S_FT))
        g("s_cmp_ge_u32 s%d, 7" % S_FT)
        g("s_cselect_b32 s%d, s%d, s%d" % (S_FT, S_T1, S_FT))
        g("s_lshl_b32 s%d, s%d, 15" % (S_T0, S_FT))
        g("s_add_u32 s%d, s%d, s%d" % (S_T0, S_T0, S_ROT))
        for i in range(16):
            g("buffer_load_dwordx4 %s, v5, %s, s%d offen offset:%d" % (vr(16 + 4 * i, 4), SRDW(S_W2), S_T0, 2048 * (i & 1)))
            if i & 1:
                g("s_add_u32 s%d, s%d, 4096" % (S_T0, S_T0))
        g("s_add_u32 s%d, s%d, 1" % (S_FT, S_FT))
    per = {0: [0, 0, 0, nb], 1: [1, 0, 0, nb - 1], 2: [1, 1, 0, nb - 2]}[OPT.get("pfmode", 1)]
    for i in range(4):
        for _ in range(max(per[i], 0)):
            pf()
        if i < 3:
            g("s_barrier")
    g("s_waitcnt vmcnt(0)")
    g("s_branch L_J")
    g.label("L_AXH")
    g.vm = []
    g("s_waitcnt vmcnt(0)")
    g("s_nop 7")
    g.emit(k_table())
    g("s_waitcnt lgkmcnt(0)")
    g("s_barrier")
    flag_issue(g, 8, (None, 0), 32)
    g.emit(k_gather(0) + k_gather(1))
    k_zero(g)
    g("s_waitcnt lgkmcnt(0)")
    g.emit(k_build(0) + k_build(1))
    flag_check(g, 8, 32)
    g("s_barrier")
    u_load(g)
    u_store(g)
    g("s_waitcnt lgkmcnt(0)")
    g("s_barrier")
    g.stamp(1)
    g("s_branch L_ACONV")


def common(g):
    g("s_setprio 0")
    g.wait_vm_all("lgkmcnt(0)")
    g.stamp(5)
    g("s_barrier")
    g.stamp(6)
    P, U = 80, 96
    for a in range(4):
        g("ds_read_b128 %s, v%d offset:%d" % (vr(P + 4 * a, 4), V_CR, a * 8192))
    g("ds_read_b64 %s, v%d" % (vr(U, 2), V_CU))
    g("ds_read_b64 %s, v%d offset:4608" % (vr(U + 2, 2), V_CU))
    g("v_mov_b32 v3, %d" % NWL)
    g("ds_read_b32 v3, v3")
    w2_rd(g, 0, False)
    w2_rd(g, 1, False)
    sk = g.newlabel("PH")
    g("s_cmp_lt_u32 s2, 32")
    g("s_cbranch_scc1 %s" % sk)
    publish(g, (S_MT, 1), lambda: g("s_lshl_b32 s%d, s%d, 7" % (S_EX, S_FT)), VT2)
    g.label(sk)
    w2_dma(g, 2)
    for c in range(4):
        g("v_add_u32 v%d, 0x10000, v%d" % (V_W2H + c, V_W2A + c))
    g("s_lshl_b32 s%d, s%d, 16" % (S_T0, S_DSK))
    g("s_and_b32 s%d, s%d, 0xffff0000" % (S_T1, S_DSK))
    g("s_waitcnt lgkmcnt(15)")
    g("v_readfirstlane_b32 s%d, v3" % S_NONCE)
    g.lead = 0
    UF = 100
    for ch in range(2):
        b = P + 8 * ch
        for r in range(4):
            g("v_add_f32 v%d, v%d, v%d" % (b + r, b + r, b + 4 + r))
        for k in range(2):
            g("v_lshlrev_b32 v%d, 16, v%d" % (UF + 2 * k, U + 2 * ch + k))
            g("v_and_b32 v%d, 0xffff0000, v%d" % (UF + 2 * k + 1, U + 2 * ch + k))
        for r in range(4):
            g("v_mul_f32 v%d, s%d, v%d" % (UF + r, (S_T0, S_T1)[ch], UF + r))
        for r in range(4):
            g("v_cvt_pk_bf16_f32 v%d, v%d, v%d" % (b + 4 + r, b + r, UF + r))
        for r in range(4):
            g("v_lshlrev_b32 v%d, 16, v%d" % (b + r, b + 4 + r))
            g("v_and_b32 v%d, 0xffff0000, v%d" % (b + 4 + r, b + 4 + r))
        for r in range(4):
            g("v_add_f32 v%d, v%d, v%d" % (b + r, b + r, b + 4 + r))
    AOR = 104
    for r in range(4):
        g("v_cvt_pk_bf16_f32 v%d, v%d, v%d" % (AOR + r, P + r, P + 8 + r))
    g("v_lshlrev_b32 v%d, 4, v0" % VT)
    g("s_mul_i32 s%d, s2, %d" % (S_T0, AOP))
    g("s_add_u32 s%d, s%d, %d" % (S_T0, S_T0, WS_AO))
    g.vmem("buffer_store_dwordx4 %s, v%d, %s, s%d offen sc1" % (vr(AOR, 4), VT, SRDW(S_WS), S_T0), "ao")
    g("s_waitcnt lgkmcnt(0)")
    w2_dma(g, 3)
    w2_dma(g, 4)
    g.stamp(7)
    w2_rd(g, 2)
    VFL = 8
    g("s_lshr_b32 s%d, s%d, 1" % (S_T0, S_RT))
    flag_issue(g, VFL, (S_T0, 1), 14)
    RA0, RA1, VO, VH = 9, 10, 12, 11
    g("v_lshlrev_b32 v%d, 4, v1" % VH)
    g("v_lshrrev_b32 v%d, 3, v1" % VT2)
    g("v_lshlrev_b32 v%d, 10, v%d" % (VT2, VT2))
    g("v_and_b32 v%d, 7, v1" % VO)
    g("v_lshl_add_u32 v%d, v%d, 4, v%d" % (VO, VO, VT2))
    g("v_and_b32 v%d, 15, v1" % VT)
    g("v_lshrrev_b32 v%d, 4, v1" % VT2)
    g("v_lshrrev_b32 v%d, 5, v1" % RA0)
    g("v_lshl_add_u32 v%d, v%d, 2, v%d" % (RA0, RA0, VT))
    g("v_add_u32 v%d, 8, v%d" % (RA1, RA0))
    g("v_and_b32 v%d, 15, v%d" % (RA0, RA0))
    g("v_and_b32 v%d, 15, v%d" % (RA1, RA1))
    g("v_lshl_add_u32 v%d, v%d, 4, v%d" % (RA0, VT2, RA0))
    g("v_lshl_add_u32 v%d, v%d, 4, v%d" % (RA1, VT2, RA1))
    g("v_lshl_add_u32 v%d, v%d, 4, s%d" % (RA0, RA0, S_STG))
    g("v_lshl_add_u32 v%d, v%d, 4, s%d" % (RA1, RA1, S_STG))
    g("s_waitcnt lgkmcnt(0)")
    w2_dma(g, 5)
    if OPT["early"]:
        g.wait_vm("ao")
    else:
        w2_rd(g, 3)
        w2_rd(g, 4)
    flag_check(g, VFL, 14)
    g.stamp(8)
    g("s_barrier")
    g.stamp(9)
    w2_dma(g, 6)
    hn = [0]
    def hl(n=1):
        for _ in range(n):
            if hn[0] >= 28:
                return
            mi, j = divmod(hn[0], 7)
            hn[0] += 1
            g("s_add_u32 s%d, s%d, s%d" % (S_M + 5, S_HB + mi, S_J + j))
            g.vmem("buffer_load_dwordx4 %s, v%d, %s, s%d offen sc1" % (vr(HF + 28 * mi + 4 * j, 4), VH, SRDW(S_WS), S_M + 5), "h%d_%d" % (mi, j))
    hl(4)
    def slot_ao():
        g("s_and_b32 s%d, s2, 31" % S_EX)
        g("s_lshl_b32 s%d, s%d, 7" % (S_EX, S_EX))
    g("s_lshr_b32 s%d, s2, 5" % S_T0)
    publish(g, (S_T0, 17), slot_ao, VT)
    if OPT["early"]:
        w2_rd(g, 3)
        w2_rd(g, 4)
    hl(OPT["h0"] - 4)
    w2_rd(g, 5)
    w2_rd(g, 6)
    g("s_waitcnt lgkmcnt(0)")
    accs = [ACC0, 16, 44, 72]
    ROFF = [0, 32768, 65536, KC]
    def redw(mi):
        if mi == 2:
            g("v_add_u32 v%d, 0x10000, v%d" % (RA0, RA0))
            g("v_add_u32 v%d, 0x10000, v%d" % (RA1, RA1))
        off = ROFF[mi] - (65536 if mi >= 2 else 0)
        for c in range(4):
            g("ds_write_b128 v%d, %s offset:%d" % ((RA0, RA1)[c & 1], vr(accs[mi] + 4 * c, 4), off + c * 1024))
    XT, AOT = 32, 36
    AOLB = UB
    AOG = [240, 244, 248, 252, 16, 20, 24, 28]
    def ao_load():
        sk = lead(g)
        g("v_lshrrev_b32 v4, 4, v1")
        g("v_and_b32 v5, 15, v1")
        g("v_mul_u32_u24 v6, %d, v4" % AOP)
        g("v_lshl_add_u32 v6, v5, 4, v6")
        g("s_mul_i32 s%d, s%d, %d" % (S_T0, S_NT, 32 * AOP))
        g("s_lshl_b32 s%d, s%d, 8" % (S_T1, S_RT))
        g("s_add_u32 s%d, s%d, s%d" % (S_T0, S_T0, S_T1))
        g("s_add_u32 s%d, s%d, %d" % (S_T0, S_T0, WS_AO))
        g("s_waitcnt lgkmcnt(0)")
        for k in range(8):
            g.vmem("buffer_load_dwordx4 %s, v6, %s, s%d offen sc1" % (vr(AOG[k], 4), SRDW(S_WS), S_T0), "0:aot")
            if k < 7:
                g("s_add_u32 s%d, s%d, %d" % (S_T0, S_T0, 4 * AOP))
        g("v_mul_u32_u24 v6, 272, v4")
        g("v_lshl_add_u32 v6, v5, 4, v6")
        g("v_add_u32 v6, %d, v6" % AOLB)
        g.label(sk)
        g("s_lshr_b32 s%d, s%d, 1" % (S_T0, S_WAVE))
        g("s_sub_u32 s%d, s%d, s%d" % (S_T0, S_T0, S_NT))
        g("s_and_b32 s%d, s%d, 3" % (S_T0, S_T0))
        g("s_lshl_b32 s%d, s%d, 15" % (S_T1, S_T0))
        g("s_cmp_eq_u32 s%d, 3" % S_T0)
        g("s_cmov_b32 s%d, %d" % (S_T1, KC))
        g("v_lshrrev_b32 v7, 3, v1")
        g("s_and_b32 s%d, s%d, 1" % (S_T0, S_WAVE))
        g("s_lshl_b32 s%d, s%d, 3" % (S_T0, S_T0))
        g("v_add_u32 v3, s%d, v7" % S_T0)
        g("v_and_b32 v4, 3, v1")
        g("v_lshl_add_u32 v3, v4, 2, v3")
        g("v_and_b32 v3, 15, v3")
        g("v_and_b32 v4, 1, v1")
        g("v_lshl_add_u32 v3, v4, 5, v3")
        g("v_lshlrev_b32 v3, 4, v3")
        g("v_bfe_u32 v4, v1, 1, 2")
        g("v_lshl_add_u32 v3, v4, 10, v3")
        g("v_add_u32 v3, s%d, v3" % S_T1)
        g("v_and_b32 v4, 7, v1")
        g("v_mul_u32_u24 v5, 1088, v4")
        g("v_lshl_add_u32 v5, v7, 2, v5")
        g("s_lshl_b32 s%d, s%d, 5" % (S_T0, S_WAVE))
        g("s_add_u32 s%d, s%d, %d" % (S_T0, S_T0, AOLB))
        g("v_add_u32 v5, s%d, v5" % S_T0)
    fdone = False
    for mi in range(4):
        a0 = accs[mi]
        for j in range(7):
            g.wait_vm("h%d_%d" % (mi, j))
            for c in range(4):
                a = a0 + 4 * c
                g("v_mfma_f32_16x16x32_bf16 %s, %s, %s, %s" % (vr(a, 4), vr(W2F + 16 * j + 4 * c, 4), vr(HF + 28 * mi + 4 * j, 4), "0" if j == 0 else vr(a, 4)))
            if hn[0] == OPT["fa"] and not fdone:
                assert mi >= 1
                flag_issue(g, VFL, (S_NT, 17), 32)
                g.vmem("buffer_load_dwordx4 %s, v%d, %s, s%d offen" % (vr(XT, 4), VO, SRDW(S_X), S_OUTO), "xt")
                fdone = True
            hl(1)
            if 7 * mi + j == OPT["fa"] - 1:
                assert 7 * mi + j > 16
                flag_check(g, VFL, 32)
                ao_load()
            if j == 2 and mi > 0:
                redw(mi - 1)
    g.stamp(10)
    g.wait_vm("xt")
    g("s_nop 6")
    redw(3)
    sk = lead(g)
    g("s_waitcnt vmcnt(0)")
    for k in range(8):
        g("ds_write_b128 v6, %s offset:%d" % (vr(AOG[k], 4), 4 * 272 * k))
    g.label(sk)
    T = 88
    for k in range(4):
        g("v_lshlrev_b32 v%d, 16, v%d" % (T + 2 * k, XT + k))
        g("v_and_b32 v%d, 0xffff0000, v%d" % (T + 2 * k + 1, XT + k))
    g("s_waitcnt lgkmcnt(0)")
    g("s_barrier")
    g.stamp(11)
    R = 128
    for j in range(4):
        g("ds_read_b32 v%d, v5 offset:%d" % (AOT + j, 272 * j))
    for w in range(8):
        for hh in range(2):
            g("ds_read_b128 %s, v3 offset:%d" % (vr(R + 8 * w + 4 * hh, 4), w * 4096 + hh * 256))
    g("s_waitcnt lgkmcnt(15)")
    for k in range(4):
        g("v_lshlrev_b32 v%d, 16, v%d" % (T + 8 + 2 * k, AOT + k))
        g("v_and_b32 v%d, 0xffff0000, v%d" % (T + 8 + 2 * k + 1, AOT + k))
    for r in range(8):
        g("v_add_f32 v%d, v%d, v%d" % (T + r, T + r, T + 8 + r))
    for w in range(1, 8):
        g("s_waitcnt lgkmcnt(%d)" % (14 - 2 * w))
        for r in range(0, 8, 2):
            g("v_pk_add_f32 %s, %s, %s" % (vr(R + r, 2), vr(R + r, 2), vr(R + 8 * w + r, 2)))
    for r in range(8):
        g("v_cvt_pk_bf16_f32 v%d, v%d, v%d" % (T + 8 + r, T + r, R + r))
    for r in range(8):
        g("v_lshlrev_b32 v%d, 16, v%d" % (T + r, T + 8 + r))
        g("v_and_b32 v%d, 0xffff0000, v%d" % (T + 8 + r, T + 8 + r))
    for r in range(8):
        g("v_add_f32 v%d, v%d, v%d" % (T + r, T + r, T + 8 + r))
    for k in range(4):
        g("v_cvt_pk_bf16_f32 v%d, v%d, v%d" % (R + k, T + 2 * k, T + 2 * k + 1))
    g("buffer_store_dwordx4 %s, v%d, %s, s%d offen" % (vr(R, 4), VO, SRDW(S_OUT), S_OUTO))
    if OPT["dbgtime"]:
        sk = lead(g)
        g("s_and_b32 s%d, s2, 63" % S_T0)
        g("s_cmp_lg_u32 s%d, 40" % S_T0)
        g("s_cbranch_scc1 %s" % sk)
        g("s_memtime s[94:95]")
        g("s_memrealtime s[96:97]")
        g("s_waitcnt lgkmcnt(0)")
        g("s_sub_u32 s94, s94, s98")
        g("v_mov_b32 v20, s94")
        g("v_mov_b32 v21, s100")
        g("v_mov_b32 v22, s96")
        g("s_lshr_b32 s%d, s2, 6" % S_T0)
        g("s_mul_i32 s%d, s%d, 12" % (S_T0, S_T0))
        g("s_add_u32 s%d, s%d, 4" % (S_T0, S_T0))
        g("s_mov_b64 exec, 1")
        g("buffer_store_dwordx3 v[20:22], off, %s, s%d" % (SRDW(S_DBG), S_T0))
        g.label(sk)
    if OPT.get("rt"):
        g("s_memtime s[94:95]")
        g("s_memrealtime s[96:97]")
        g("s_waitcnt lgkmcnt(0)")
        g("s_sub_u32 s94, s94, s98")
        g("v_mov_b32 v20, s94")
        g("v_mov_b32 v21, s100")
        g("v_mov_b32 v22, s96")
        g("s_lshl_b32 s%d, s2, 3" % S_T0)
        g("s_add_u32 s%d, s%d, s%d" % (S_T0, S_T0, S_WAVE))
        g("s_lshl_b32 s%d, s%d, 4" % (S_T0, S_T0))
        g("s_add_u32 s%d, s%d, %d" % (S_T0, S_T0, WS_TS))
        g("s_mov_b64 exec, 1")
        g("buffer_store_dwordx3 v[20:22], off, %s, s%d" % (SRDW(S_WS), S_T0))
    if g.ts:
        g.stamp(12)
        g.stamp(13)
        g("s_memrealtime s[98:99]")
        g("s_waitcnt lgkmcnt(0)")
        g("v_writelane_b32 v15, s98, 14")
        g("s_lshl_b32 s%d, s2, 11" % S_T0)
        g("s_lshl_b32 s%d, s%d, 8" % (S_T1, S_WAVE))
        g("s_add_u32 s%d, s%d, s%d" % (S_T0, S_T0, S_T1))
        g("s_add_u32 s%d, s%d, %d" % (S_T0, S_T0, WS_TS))
        g("buffer_store_dword v15, v2, %s, s%d offen" % (SRDW(S_WS), S_T0))


HEADER = open("parallel_sum__ssm_conv_s4d__glu_gated_swiglu__prompt.s.ref").read().split("; Override launch")[0]


def emit(ts=False):
    g = gen(ts)
    body = "\n".join(g.L)
    tv = tables()
    tab = "\n".join(".long " + ",".join(str(x) for x in tv[i:i + 16]) for i in range(0, len(tv), 16))
    return HEADER + """; @launch grid=(256,1,1) block=(512,1,1) lds=163840
.amdgcn_target "amdgcn-amd-amdhsa--gfx950"
.text
.globl %s
.p2align 8
.type %s,@function
%s:
%s
.p2align 8
L_TAB:
%s
.section .rodata,"a"
.p2align 6
.amdhsa_kernel %s
  .amdhsa_next_free_vgpr 256
  .amdhsa_next_free_sgpr 102
  .amdhsa_accum_offset 256
  .amdhsa_group_segment_fixed_size 0
  .amdhsa_kernarg_size 112
  .amdhsa_user_sgpr_count 2
  .amdhsa_user_sgpr_kernarg_segment_ptr 1
  .amdhsa_system_sgpr_workgroup_id_x 1
.end_amdhsa_kernel
""" % (KNAME, KNAME, KNAME, body, tab, KNAME)


if __name__ == "__main__":
    ts = "--ts" in sys.argv
    for a in sys.argv[1:]:
        if a.startswith("--") and "=" in a:
            k, v = a[2:].split("=")
            OPT[k] = int(v)
    out = [a for a in sys.argv[1:] if not a.startswith("--")]
    path = out[0] if out else "k5.s"
    open(path, "w").write(emit(ts))
    print("wrote", path)
```

```python
import sys, struct

KNAME = "parallel_sum__ssm_conv_s4d__glu_gated_swiglu__prompt_kernel"

WS_XNT = 0
XP = 65536 + 256
WS_STATS = 3 << 20
WS_FLG = WS_STATS + 262144
FP = 4096 + 128
WS_PCS = WS_STATS + 131072
WS_H = 4 << 20
WS_AO = 12 << 20
AOP = 8192 + 128
WS_TS = 15 << 20
WS_SIZE = 16 << 20

KV_PITCH = 3072
KV_BIAS = 0x3F7F
KV_ZERO = 0x4500 - KV_BIAS + 1
KV_DUMP = KV_ZERO + 1
LOG2E, NLOG2E, INV2PI = 0x3FB8AA3B, 0xBFB8AA3B, 0x3E22F983

XBASE, WBASE = 0, 49152
KC = 114688
UB = KC + 33280
KVT = UB + 9216
SCL = KVT
NWL = KVT + 6144
TP = 272
TUNIT = 57 * TP
PART = 65536
SLOT = {"s0": 0, "s1": 32768, "s2": 65536, "k": KC}

OPT = dict(late=1, auxpf=2, dbgtime=0, ntx=3, h0=8, fa=20, aprio=1, cprio=0, early=1)


class Gen:
    def __init__(self, ts=False):
        self.L, self.vm, self.ts, self.lbl, self.lead = [], [], ts, 0, 4

    def __call__(self, s):
        self.L.append("    " + s)

    def label(self, l):
        self.L.append(l + ":")

    def newlabel(self, p="L"):
        self.lbl += 1
        return "%s_%d" % (p, self.lbl)

    def vmem(self, s, tag):
        self(s)
        self.vm.append(tag)

    def wait_vm(self, tags, extra=""):
        if isinstance(tags, str):
            tags = [tags]
        last = -1
        for i, t in enumerate(self.vm):
            if t in tags:
                last = i
        if last < 0:
            if extra:
                self("s_waitcnt " + extra)
            return
        w0 = any(t.startswith("0:") for t in tags)
        n = len([t for t in self.vm[last + 1:] if w0 or not t.startswith("0:")])
        assert n <= 63, n
        self("s_waitcnt vmcnt(%d) %s" % (n, extra))
        if w0:
            self.vm = [t for i, t in enumerate(self.vm) if i > last or not t.startswith("0:")]
        else:
            self.vm = self.vm[last + 1:]

    def wait_vm_all(self, extra=""):
        self("s_waitcnt vmcnt(0) %s" % extra)
        self.vm = []

    def stamp(self, idx):
        if not self.ts or (OPT.get("lite") and idx not in (41, 49, 53, 56, 3, 6, 9, 12, 31, 33)):
            return
        self("%s s[98:99]" % ("s_memrealtime" if OPT.get("rts") else "s_memtime"))
        self("s_waitcnt lgkmcnt(0)")
        self("v_writelane_b32 v15, s98, %d" % idx)

    def emit(self, lst):
        for x in lst:
            if callable(x):
                x()
            elif isinstance(x, tuple):
                self.vmem(*x)
            else:
                self(x)


def vr(a, n=1):
    return "v%d" % a if n == 1 else "v[%d:%d]" % (a, a + n - 1)


def fimm(k):
    if k == 0:
        return "0"
    if k in (1, 2, 4):
        return "%d.0" % k
    return "0x%08x" % struct.unpack("<I", struct.pack("<f", float(k)))[0]


S_X, S_W1, S_W3, S_W2, S_OUT, S_DBG, S_WS = 4, 8, 12, 16, 20, 24, 28
S_WAVE, S_MT, S_FT, S_ROT = 32, 33, 34, 35
S_WOFF, S_XOFF = 36, 44
S_AK = 52
S_T0, S_T1, S_T2, S_T3 = 53, 54, 55, 56
S_RT, S_NT, S_LDT = 57, 58, 59
S_EX, S_CNT, S_DSK = 60, 62, 63
P_LAR, P_AIM, P_CR, P_CI, P_LDT, P_DSK = 66, 68, 70, 72, 74, 76
S_J, S_W2G, S_STG, S_HB, S_OUTO, S_HST = 64, 71, 72, 73, 77, 78
S_OB = 82
S_KH, S_KL, S_FA2, S_NONCE, S_FA = 84, 85, 87, 90, 91
S_M = 92
VT, VT2 = 13, 14
LEAD = 4
SRDW = lambda s: "s[%d:%d]" % (s, s + 3)
PRM = 240
W2F, HF, ACC0 = 128, 16, 240
V_W2D, V_W2A, V_CR, V_CU = 244, 245, 249, 250


def srd(g, d, p, nbytes):
    g("s_mov_b32 s%d, s%d" % (d, p))
    g("s_mov_b32 s%d, s%d" % (d + 1, p + 1))
    g("s_mov_b32 s%d, 0x%x" % (d + 2, nbytes))
    g("s_mov_b32 s%d, 0x00020000" % (d + 3))


def lead(g):
    sk = g.newlabel("W0")
    g("s_cmp_lg_u32 s%d, %d" % (S_WAVE, g.lead))
    g("s_cbranch_scc1 %s" % sk)
    return sk


def nonce_write(g):
    sk = g.newlabel("NW")
    g("s_or_b32 s%d, s2, s%d" % (S_CNT, S_WAVE))
    g("s_cmp_lg_u32 s%d, 0" % S_CNT)
    g("s_cbranch_scc1 %s" % sk)
    g("s_memrealtime s[96:97]")
    g("s_waitcnt lgkmcnt(0)")
    g("s_or_b32 s%d, s96, 1" % S_CNT)
    g("v_mov_b32 v%d, s%d" % (VT2, S_CNT))
    g("s_mov_b64 exec, 1")
    g("buffer_store_dword v%d, v2, %s, 0 offen sc1" % (VT2, SRDW(S_DBG)))
    g("s_mov_b64 exec, -1")
    g.label(sk)


def nonce_issue(g, vf):
    sk = lead(g)
    g.vmem("buffer_load_dword v%d, off, %s, 0 sc1" % (vf, SRDW(S_DBG)), "0:nonce")
    g.label(sk)


def nonce_check(g, vf):
    sk = lead(g)
    lp, ok = g.newlabel("NP"), g.newlabel("NK")
    g.wait_vm("0:nonce")
    g("s_mov_b32 s%d, 0" % S_CNT)
    g.label(lp)
    g("v_readfirstlane_b32 s%d, v%d" % (S_NONCE, vf))
    g("s_add_u32 s%d, s%d, 1" % (S_CNT, S_CNT))
    g("s_nop 2")
    g("s_cmp_lg_u32 s%d, 0" % S_NONCE)
    g("s_cbranch_scc1 %s" % ok)
    g("s_cmp_ge_u32 s%d, 0x4000" % S_CNT)
    g("s_cbranch_scc1 %s" % ok)
    g("s_sleep 8")
    g("buffer_load_dword v%d, off, %s, 0 sc1" % (vf, SRDW(S_DBG)))
    g("s_waitcnt vmcnt(0)")
    g("s_branch %s" % lp)
    g.label(ok)
    g.label(sk)


def nonce_lds(g):
    sk = lead(g)
    g("v_mov_b32 v%d, %d" % (VT, NWL))
    g("v_mov_b32 v%d, s%d" % (VT2, S_NONCE))
    g("ds_write_b32 v%d, v%d" % (VT, VT2))
    g.label(sk)


def flag_addr(g, sfa, line):
    sg, c = line
    if sg is None:
        g("s_mov_b32 s%d, %d" % (sfa, WS_FLG + c * FP))
    else:
        g("s_mul_i32 s%d, s%d, %d" % (sfa, sg, FP))
        g("s_add_u32 s%d, s%d, %d" % (sfa, sfa, WS_FLG + c * FP))


def flag_load(g, vf, sfa, count):
    g("v_lshlrev_b32 v%d, 7, v1" % vf)
    g("s_mov_b64 exec, 0x%x" % ((1 << count) - 1))
    r = "buffer_load_dword v%d, v%d, %s, s%d offen sc1" % (vf, vf, SRDW(S_WS), sfa)
    return r


def flag_issue(g, vf, line, count, tag="0:flag", sfa=S_FA):
    sk = lead(g)
    flag_addr(g, sfa, line)
    g.vmem(flag_load(g, vf, sfa, count), tag)
    g("s_mov_b64 exec, -1")
    g.label(sk)


def flag_check(g, vf, count, tag="0:flag", sfa=S_FA):
    lp = g.newlabel("POLL")
    done = lead(g)
    g.wait_vm(tag)
    g("s_mov_b32 s%d, 0" % S_CNT)
    g.label(lp)
    g("v_cmp_ne_u32 vcc, s%d, v%d" % (S_NONCE, vf))
    g("s_add_u32 s%d, s%d, 1" % (S_CNT, S_CNT))
    g("s_and_b32 s%d, vcc_lo, 0x%x" % (S_EX, (1 << count) - 1))
    g("s_cbranch_scc0 %s" % done)
    g("s_cmp_ge_u32 s%d, 0x4000" % S_CNT)
    g("s_cbranch_scc1 %s" % done)
    g("s_sleep 2")
    g(flag_load(g, vf, sfa, count))
    g("s_mov_b64 exec, -1")
    g("s_waitcnt vmcnt(0)")
    g("s_branch %s" % lp)
    g.label(done)


def publish(g, line, slot, vtmp):
    sk = lead(g)
    flag_addr(g, S_CNT, line)
    slot()
    g("s_add_u32 s%d, s%d, s%d" % (S_CNT, S_CNT, S_EX))
    g("v_mov_b32 v%d, s%d" % (vtmp, S_NONCE))
    g("s_mov_b64 exec, 1")
    g("buffer_store_dword v%d, off, %s, s%d sc1" % (vtmp, SRDW(S_WS), S_CNT))
    g("s_mov_b64 exec, -1")
    g.label(sk)


def rnd_bf16(g, d, s):
    g("v_cvt_pk_bf16_f32 v%d, v%d, v%d" % (d, s, s))
    g("v_lshlrev_b32 v%d, 16, v%d" % (d, d))


def cmul1(d, a, b):
    return "v_pk_mul_f32 %s, %s, %s op_sel:[0,0] op_sel_hi:[0,1]" % (vr(d, 2), vr(a, 2), vr(b, 2))


def cmul2(d, a, b):
    return "v_pk_fma_f32 %s, %s, %s, %s op_sel:[1,1,0] op_sel_hi:[1,0,1] neg_lo:[0,1,0]" % (vr(d, 2), vr(a, 2), vr(b, 2), vr(d, 2))


ROWS = {}
for _g in range(4):
    for _r in range(4):
        ROWS[(0, 4 * _g + _r)] = 4 * (_g & 1) + 128 * (_g >> 1) + _r
        ROWS[(1, 4 * _g + _r)] = (256 + 128 * (_g & 1) + 2 * _r) if _g < 2 else (512 + 4 * (_g & 1) + 128 * _r)
        ROWS[(2, 4 * _g + _r)] = 1024 + 512 * _g + 128 * _r
POS2ROW = {p: 16 + 16 * t + m for (t, m), p in ROWS.items() if p <= 2048}
UNITS = [KC, KC + TUNIT, XBASE + 2 * 16384, KC + 2 * TUNIT]
K_WR = 12
K_R0, K_R1, K_OA, K_IX, K_CP, K_ZE, K_DA = 198, 199, 200, 208, 219, 222, 224
K_AA = 235
K_FB, K_FA = 16, 48


def k_wr(g):
    g("s_and_b32 s%d, s%d, 3" % (S_T0, S_WAVE))
    g("s_mov_b32 s%d, %d" % (S_T1, UNITS[0]))
    for u in range(1, 4):
        g("s_cmp_eq_u32 s%d, %d" % (S_T0, u))
        g("s_cmov_b32 s%d, %d" % (S_T1, UNITS[u]))
    g("v_add_u32 v%d, s%d, v2" % (K_WR, S_T1))
    g("s_and_b32 s%d, s%d, 1" % (S_T1, S_T0))
    g("s_lshl_b32 s%d, s%d, 4" % (S_T1, S_T1))
    g("s_sub_u32 s%d, 16, s%d" % (S_KH, S_T1))
    g("s_lshr_b32 s%d, s%d, 1" % (S_T1, S_T0))
    g("s_lshl_b32 s%d, s%d, 4" % (S_T1, S_T1))
    g("s_sub_u32 s%d, 16, s%d" % (S_KL, S_T1))


def k_chains(g, part, mid=None):
    Q = 16
    LAR, AIM, CR, CI = Q, Q + 1, Q + 2, Q + 3
    DT, ER, TU = Q + 4, Q + 5, Q + 6
    TA, TB = Q, Q + 1
    g("s_lshl_b32 s%d, s%d, s%d" % (S_T2, S_LDT, S_KL))
    g("s_and_b32 s%d, s%d, 0xffff0000" % (S_T2, S_T2))
    for k in range(4):
        g("v_lshlrev_b32 v%d, s%d, v%d" % (Q + k, S_KH, PRM + k))
    for k in range(4):
        g("v_and_b32 v%d, 0xffff0000, v%d" % (Q + k, Q + k))
    g("v_mov_b32 v%d, 0x%x" % (DT, LOG2E))
    g("v_mul_f32 v%d, s%d, v%d" % (DT, S_T2, DT))
    g("v_mul_f32 v%d, 0x%x, v%d" % (ER, LOG2E, LAR))
    g("v_exp_f32 v%d, v%d" % (DT, DT))
    g("v_exp_f32 v%d, v%d" % (ER, ER))
    g("s_nop 0")
    rnd_bf16(g, DT, DT)
    rnd_bf16(g, ER, ER)
    g("v_mul_f32 v%d, v%d, v%d" % (ER, ER, DT))
    g("v_mul_f32 v%d, v%d, v%d" % (TU, AIM, DT))
    g("v_mul_f32 v%d, 0x%x, v%d" % (ER, NLOG2E, ER))
    g("v_mul_f32 v%d, 0x%x, v%d" % (TU, INV2PI, TU))
    E = {}
    nxt = [Q + 8]
    def al(n):
        E[n] = nxt[0]; nxt[0] += 2
        return E[n]
    def directs(lst):
        tm = [al("t%d" % i) for i in range(len(lst))]
        ds = [al(p) for p, _ in lst]
        for (p, c), t in zip(lst, tm):
            g("v_mul_f32 v%d, %s, v%d" % (t, fimm(p), ER))
            g("v_mul_f32 v%d, %s, v%d" % (t + 1, fimm(p), TU))
        for t in tm:
            g("v_exp_f32 v%d, v%d" % (t, t))
            g("v_fract_f32 v%d, v%d" % (t + 1, t + 1))
        for t, d in zip(tm, ds):
            g("v_cos_f32 v%d, v%d" % (d, t + 1))
            g("v_sin_f32 v%d, v%d" % (d + 1, t + 1))
        g("s_nop 0")
        for (p, c), t, d in zip(lst, tm, ds):
            g("v_mul_f32 v%d, v%d, v%d" % (d, d, t))
            g("v_mul_f32 v%d, %sv%d, v%d" % (d + 1, "-" if c else "", d + 1, t))
    def run(chains, tmp0):
        streams = []
        ti = [0]
        for ci, c in enumerate(chains):
            s = []
            for op in c:
                if op[0] == "mul":
                    s += [cmul1(*op[1:]), cmul2(*op[1:])]
                else:
                    t = tmp0 + 2 * ci + (ti[0] & 1)
                    ti[0] += 1
                    s.append("v_cvt_pk_bf16_f32 v%d, v%d, v%d" % (t, op[2], op[2] + 1))
                    s.append("ds_write_b32 v%d, v%d offset:%d" % (K_WR, t, op[1] * TP))
            streams.append(s)
        while any(streams):
            for s in streams:
                if s:
                    g(s.pop(0))
    if part == 0:
        GA, GB, GC, GD = al("ga"), al("gb"), al("gc"), al("gd")
        g("v_add_f32 v%d, v%d, v%d" % (DT, DT, DT))
        g("v_mul_f32 v%d, v%d, v%d" % (GA, CR, DT))
        g("v_mul_f32 v%d, -v%d, v%d" % (GA + 1, CI, DT))
        directs([(8, True), (1, False), (128, False), (64, True)])
        for p in range(2, 8):
            al(p)
        PA, PB = al("pa"), al("pb")
        T0 = nxt[0]
        c1, cur, nx = [], GA, GB
        c2 = [("mul", GC, GA, E[64])]
        for b in range(8):
            c1.append(("put", b, cur))
            if b < 7:
                c1.append(("mul", nx, cur, E[8])); cur, nx = nx, cur
        cur, nx = GC, GD
        for b in range(8, 16):
            c2.append(("put", b, cur))
            if b < 15:
                c2.append(("mul", nx, cur, E[8])); cur, nx = nx, cur
        c3 = [("put", POS2ROW[1], E[1]), ("put", POS2ROW[128], E[128])]
        for p in range(2, 8):
            c3 += [("mul", E[p], E[p - 1], E[1]), ("put", POS2ROW[p], E[p])]
        g("v_mov_b32 v%d, 0x00003f80" % TA)
        g("ds_write_b32 v%d, v%d offset:%d" % (K_WR, TA, POS2ROW[0] * TP))
        run([c2, c1, c3], T0)
        ca, cb = [], []
        for p in range(1, 8):
            (ca if p & 1 else cb).extend([("mul", PA if p & 1 else PB, E[p], E[128]), ("put", POS2ROW[128 + p], PA if p & 1 else PB)])
        run([ca, cb], T0)
    else:
        directs([(2, False), (128, False), (1024, False)])
        al(4); al(6)
        for h in list(range(2, 8)) + list(range(9, 17)):
            al(128 * h)
        PA, PB = al("pa"), al("pb")
        T0 = nxt[0]
        c1 = []
        for h in range(2, 8):
            c1 += [("mul", E[128 * h], E[128 * (h - 1)], E[128]), ("put", POS2ROW[128 * h], E[128 * h])]
        c2 = [("put", POS2ROW[1024], E[1024])]
        for h in range(9, 17):
            c2 += [("mul", E[128 * h], E[128 * (h - 1)], E[128]), ("put", POS2ROW[128 * h], E[128 * h])]
        c3 = [("mul", E[4], E[2], E[2]), ("mul", E[6], E[4], E[2])]
        if mid:
            mid()
        run([c1, c2, c3], T0)
        prods = [p for p in sorted(POS2ROW) if p >= 256 and (p & 127)]
        ca, cb = [], []
        for i, p in enumerate(prods):
            d = (PA, PB)[i & 1]
            (ca, cb)[i & 1].extend([("mul", d, E[p & 127], E[p & ~127]), ("put", POS2ROW[p], d)])
        run([ca, cb], T0)
    assert nxt[0] + 8 <= 112


def k_raddr(g):
    g("v_and_b32 v%d, 15, v1" % VT)
    g("v_lshrrev_b32 v%d, 4, v1" % VT2)
    g("v_mul_u32_u24 v%d, %d, v%d" % (K_R0, TP, VT))
    g("v_lshl_add_u32 v%d, v%d, 4, v%d" % (K_R0, VT2, K_R0))
    g("s_bitcmp1_b32 s%d, 1" % S_WAVE)
    g("s_mov_b32 s%d, %d" % (S_T0, UNITS[0]))
    g("s_cmov_b32 s%d, %d" % (S_T0, UNITS[2]))
    g("s_mov_b32 s%d, %d" % (S_T1, UNITS[1]))
    g("s_cmov_b32 s%d, %d" % (S_T1, UNITS[3]))
    g("v_add_u32 v%d, s%d, v%d" % (K_R1, S_T1, K_R0))
    g("v_add_u32 v%d, s%d, v%d" % (K_R0, S_T0, K_R0))
    g("s_and_b32 s%d, s%d, 1" % (S_T0, S_WAVE))
    g("s_mul_i32 s%d, s%d, %d" % (S_T0, S_T0, 32 * TP))
    g("v_add_u32 v%d, s%d, v%d" % (K_AA, S_T0, K_R0))
    g("v_add_u32 v%d, s%d, v%d" % (K_AA + 1, S_T0, K_R1))


def k_reads():
    r = []
    for hf in range(2):
        for ks in range(4):
            r.append("ds_read_b128 %s, v%d offset:%d" % (vr(K_FB + 16 * hf + 4 * ks, 4), (K_R0, K_R1)[hf], 64 * ks))
            for t in range(2):
                r.append("ds_read_b128 %s, v%d offset:%d" % (vr(K_FA + 32 * t + 16 * hf + 4 * ks, 4), K_AA + hf, (16 + 16 * t) * TP + 64 * ks))
    return r


def k_mfmas():
    r = []
    for i in range(8):
        for t in range(2):
            d = K_DA + 4 * t
            r.append("v_mfma_f32_16x16x32_bf16 %s, %s, %s, %s" % (vr(d, 4), vr(K_FA + 32 * t + 4 * i, 4), vr(K_FB + 4 * i, 4), "0" if i == 0 else vr(d, 4)))
    return r


def k_oaddr(g):
    tabs = [(0, 256, 1024, 4096), (128, 512, 2048, 4096), (4, 128, 512, 0), (4, 4, 512, 0), (1, 2, 128, 0), (1, 128, 128, 0)]
    SB = 92
    g("v_and_b32 v%d, 15, v1" % VT)
    g("v_bfe_u32 v%d, v1, 4, 1" % VT2)
    g("s_bfe_u32 s%d, s%d, 0x10001" % (S_T2, S_WAVE))
    g("s_mul_i32 s%d, s%d, %d" % (S_T1, S_T2, KV_PITCH))
    g("s_add_u32 s%d, s%d, %d" % (S_T1, S_T1, KVT - 2 * KV_BIAS))
    g("v_mov_b32 v198, %d" % (KV_BIAS + KV_DUMP))
    g("s_add_u32 s%d, s%d, %d" % (S_T0, S_T1, 2 * (KV_BIAS + KV_ZERO)))
    g("v_mov_b32 v%d, s%d" % (K_ZE, S_T0))
    for t in range(2):
        g("s_bitcmp1_b32 s%d, 0" % S_WAVE)
        for i, tb in enumerate(tabs):
            g("s_mov_b32 s%d, %d" % (SB + i, tb[t]))
            g("s_cmov_b32 s%d, %d" % (SB + i, tb[2 + t]))
        g("v_cmp_le_u32 vcc, 32, v1")
        for i in range(3):
            g("v_mov_b32 v%d, s%d" % (192 + i, SB + 2 * i))
            g("v_mov_b32 v%d, s%d" % (195 + i, SB + 2 * i + 1))
        for i in range(3):
            g("v_cndmask_b32 v%d, v%d, v%d, vcc" % (192 + i, 192 + i, 195 + i))
        g("v_mad_u32_u24 v192, v%d, v193, v192" % VT2)
        g("v_lshl_add_u32 v192, v%d, 3, v192" % VT)
        for r in range(4):
            o = K_OA + 4 * t + r
            g("v_cvt_f32_u32 v%d, v192" % o)
            g("v_cmp_lt_u32 vcc, 2048, v192")
            g("v_lshrrev_b32 v%d, 16, v%d" % (o, o))
            g("v_max_u32 v%d, %d, v%d" % (o, KV_BIAS, o))
            g("v_cndmask_b32 v%d, v%d, v198, vcc" % (o, o))
            g("v_lshl_add_u32 v%d, v%d, 1, s%d" % (o, o, S_T1))
            if r < 3:
                g("v_add_u32 v192, v192, v194")


def bf16bits(x):
    u = struct.unpack("<I", struct.pack("<f", float(x)))[0]
    return ((u + 0x7FFF + ((u >> 16) & 1)) >> 16) & 0xFFFF


def kidx(l):
    return min(max(bf16bits(l), KV_BIAS), KV_BIAS + KV_ZERO) - KV_BIAS


def tables():
    T = [[0] * 4 for _ in range(5 * 256)]
    for th in range(256):
        a, lane = th >> 6, th & 63
        ch, p = a >> 1, a & 1
        b, gg = lane & 15, lane >> 4
        for t in range(2):
            for r in range(4):
                tile = 2 * p + t
                pos = ROWS[(tile, 4 * gg + r)] + 8 * b if tile < 3 else 99999
                idx = kidx(pos) if pos <= 2048 else KV_DUMP
                T[t * 256 + th][r] = KVT + ch * KV_PITCH + 2 * idx
        v = [KVT + 2 * kidx(2047 - 8 * th - k) for k in range(11)] + [KC + 16 * th]
        for k in range(12):
            T[(2 + k // 4) * 256 + th][k % 4] = v[k]
    return [x for row in T for x in row]


def k_tload(g):
    g("s_getpc_b64 s[%d:%d]" % (S_M, S_M + 1))
    lbl = g.newlabel("PC")
    g.label(lbl)
    g("s_add_u32 s%d, s%d, L_TAB-%s" % (S_M, S_M, lbl))
    g("s_addc_u32 s%d, s%d, 0" % (S_M + 1, S_M + 1))
    g("v_and_b32 v%d, 255, v0" % VT)
    g("v_lshlrev_b32 v%d, 4, v%d" % (VT, VT))
    for k in range(5):
        g.vmem("global_load_dwordx4 %s, v%d, s[%d:%d]" % (vr(K_OA + 4 * k, 4), VT, S_M, S_M + 1), "tab")
        if k < 4:
            g("v_add_u32 v%d, 4096, v%d" % (VT, VT))
    g("s_bfe_u32 s%d, s%d, 0x10001" % (S_T2, S_WAVE))
    g("s_mul_i32 s%d, s%d, %d" % (S_T2, S_T2, KV_PITCH))
    g("s_add_u32 s%d, s%d, %d" % (S_T2, S_T2, KVT + 2 * KV_ZERO))
    g("v_mov_b32 v%d, s%d" % (K_ZE, S_T2))


def k_table():
    r = ["v_mov_b32 v%d, 0" % VT, "ds_write_b16 v%d, v%d" % (K_ZE, VT)]
    for k in range(8):
        r.append("v_cvt_pk_bf16_f32 v%d, v%d, v%d" % (K_DA + k, K_DA + k, K_DA + k))
    for k in range(8):
        r.append("ds_write_b16 v%d, v%d" % (K_OA + k, K_DA + k))
    return r


def k_idx():
    r = ["v_and_b32 v%d, 255, v0" % K_CP,
         "v_lshlrev_b32 v192, 3, v%d" % K_CP,
         "v_sub_u32 v192, 2047, v192",
         "v_cvt_f32_i32 v192, v192",
         "v_mov_b32 v193, %d" % (KV_BIAS + KV_ZERO),
         "s_mov_b32 s%d, %d" % (S_KH, KVT - 2 * KV_BIAS),
         "s_mov_b32 s%d, %d" % (S_KL, KV_BIAS),
         "v_lshlrev_b32 v%d, 4, v%d" % (K_CP, K_CP),
         "v_add_u32 v%d, %d, v%d" % (K_CP, KC, K_CP)]
    for k in range(0, 12, 2):
        r.append("v_subrev_f32 v194, %s, v192" % fimm(k))
        r.append("v_subrev_f32 v195, %s, v192" % fimm(k + 1))
        r.append("v_cvt_pk_bf16_f32 v194, v194, v195")
        r.append("v_and_b32 v%d, 0xffff, v194" % (K_IX + k))
        if k < 10:
            r.append("v_lshrrev_b32 v%d, 16, v194" % (K_IX + k + 1))
    for k in range(11):
        r.append("v_med3_u32 v%d, v%d, s%d, v193" % (K_IX + k, K_IX + k, S_KL))
        r.append("v_lshl_add_u32 v%d, v%d, 1, s%d" % (K_IX + k, K_IX + k, S_KH))
    return r


def k_gather(ch):
    return ["ds_read_u16 v%d, v%d offset:%d" % (16 + 12 * ch + k, K_IX + k, KV_PITCH * ch) for k in range(11)]


def k_build(ch):
    D, O = 16 + 12 * ch, 40 + 16 * ch
    r = []
    for sft in range(4):
        for k in range(4):
            r.append("v_lshl_or_b32 v%d, v%d, 16, v%d" % (O + 4 * sft + k, D + sft + 2 * k + 1, D + sft + 2 * k))
        r.append("ds_write_b128 v%d, %s offset:%d" % (K_CP, vr(O + 4 * sft, 4), 4160 * sft + 16640 * ch))
    return r


def k_zero(g):
    z6, z7 = g.newlabel("Z"), g.newlabel("Z")
    g("s_cmp_lt_u32 s%d, 6" % S_WAVE)
    g("s_cbranch_scc1 %s" % z7)
    for r in range(4):
        g("v_mov_b32 v%d, 0" % (192 + r))
    g("v_lshrrev_b32 v%d, 5, v1" % VT)
    g("v_lshlrev_b32 v%d, 12, v%d" % (VT, VT))
    g("v_lshl_add_u32 v%d, v1, 4, v%d" % (VT, VT))
    g("v_add_u32 v%d, %d, v%d" % (VT, UB, VT))
    g("s_cmp_eq_u32 s%d, 6" % S_WAVE)
    g("s_cbranch_scc1 %s" % z6)
    g("v_bfe_u32 v%d, v1, 1, 3" % VT)
    g("v_mul_u32_u24 v%d, 4160, v%d" % (VT, VT))
    g("v_and_b32 v%d, 1, v1" % VT2)
    g("v_lshl_add_u32 v%d, v%d, 4, v%d" % (VT, VT2, VT))
    g("v_add_u32 v%d, %d, v%d" % (VT, KC + 4096, VT))
    g.label(z6)
    g("ds_write_b128 v%d, v[192:195]" % VT)
    g.label(z7)


def tail_consts():
    r = []
    A = r.append
    A("s_mul_i32 s%d, s%d, %d" % (S_W2G, S_WAVE, 224 * 1024))
    A("s_lshl_b32 s%d, s%d, 7" % (S_T0, S_NT))
    A("s_add_u32 s%d, s%d, s%d" % (S_W2G, S_W2G, S_T0))
    A("s_lshl_b32 s%d, s%d, 12" % (S_STG, S_WAVE))
    A("s_lshl_b32 s%d, s%d, 16" % (S_OUTO, S_RT))
    A("s_add_u32 s%d, s%d, s%d" % (S_OUTO, S_OUTO, S_T0))
    A("s_lshl_b32 s%d, s%d, 13" % (S_T1, S_WAVE))
    A("s_add_u32 s%d, s%d, s%d" % (S_OUTO, S_OUTO, S_T1))
    A("s_lshr_b32 s%d, s2, 2" % S_T0)
    A("s_and_b32 s%d, s%d, 6" % (S_T0, S_T0))
    A("s_and_b32 s%d, s2, 7" % S_T1)
    A("s_add_u32 s%d, s%d, s%d" % (S_T0, S_T0, S_T1))
    for j in range(7):
        if j:
            A("s_add_u32 s%d, s%d, 1" % (S_T0, S_T0))
        A("s_sub_u32 s%d, s%d, 7" % (S_T1, S_T0))
        A("s_cmp_ge_u32 s%d, 7" % S_T0)
        A("s_cselect_b32 s%d, s%d, s%d" % (S_T0, S_T1, S_T0))
        A("s_lshl_b32 s%d, s%d, 10" % (S_J + j, S_T0))
    A("s_mul_i32 s%d, s%d, %d" % (S_T0, S_RT, 4 * 56))
    A("s_mul_i32 s%d, s%d, 7" % (S_T1, S_WAVE))
    A("s_add_u32 s%d, s%d, s%d" % (S_T0, S_T0, S_T1))
    A("s_lshl_b32 s%d, s%d, 10" % (S_T0, S_T0))
    A("s_add_u32 s%d, s%d, %d" % (S_T0, S_T0, WS_H))
    for mi in range(4):
        A("s_add_u32 s%d, s%d, %d" % (S_HB + mi, S_NT, mi))
        A("s_and_b32 s%d, s%d, 3" % (S_HB + mi, S_HB + mi))
        A("s_mul_i32 s%d, s%d, %d" % (S_HB + mi, S_HB + mi, 56 * 1024))
        A("s_add_u32 s%d, s%d, s%d" % (S_HB + mi, S_HB + mi, S_T0))
    A("v_lshrrev_b32 v%d, 4, v1" % VT)
    A("v_lshlrev_b32 v%d, 1, v%d" % (VT, VT))
    A("v_xor_b32 v%d, v%d, v1" % (VT, VT))
    A("v_and_b32 v%d, 7, v%d" % (VT, VT))
    A("v_lshrrev_b32 v%d, 3, v1" % VT2)
    A("v_lshlrev_b32 v%d, 10, v%d" % (V_W2D, VT2))
    A("v_lshl_add_u32 v%d, v%d, 4, v%d" % (V_W2D, VT, V_W2D))
    A("v_and_b32 v%d, 3, v%d" % (VT2, VT2))
    A("v_lshlrev_b32 v%d, 5, v%d" % (VT2, VT2))
    A("v_lshrrev_b32 v%d, 2, v1" % VT)
    A("v_lshl_add_u32 v%d, v%d, 7, v%d" % (VT2, VT, VT2))
    A("v_and_b32 v%d, 3, v1" % V_CR)
    A("v_lshl_add_u32 v%d, v%d, 3, v%d" % (VT2, V_CR, VT2))
    A("v_add_u32 v%d, s%d, v%d" % (V_W2A, S_STG, VT2))
    for c in range(1, 4):
        A("v_xor_b32 v%d, %d, v%d" % (V_W2A + c, 32 * c, V_W2A))
    A("v_lshl_add_u32 v%d, v%d, 2, v%d" % (VT, V_CR, VT))
    A("v_and_b32 v%d, 15, v%d" % (VT, VT))
    A("v_lshl_add_u32 v%d, v%d, 4, v%d" % (VT, V_CR, VT))
    A("s_lshl_b32 s%d, s%d, 10" % (S_T0, S_WAVE))
    A("s_add_u32 s%d, s%d, %d" % (S_T0, S_T0, PART))
    A("v_lshl_add_u32 v%d, v%d, 4, s%d" % (V_CR, VT, S_T0))
    A("v_lshlrev_b32 v%d, 3, v0" % V_CU)
    A("v_add_u32 v%d, %d, v%d" % (V_CU, UB + 512, V_CU))
    return r


WLOC = ["s0", "s1", "k", "s0", "s1", "k", "s2"]


def w2_dma(g, pos, other=False):
    d = -4 if other else 0
    g("s_lshl_b32 s%d, s%d, 5" % (S_M + 2, S_J + pos))
    g("s_add_u32 s%d, s%d, s%d" % (S_M + 2, S_M + 2, S_W2G))
    if other:
        g("s_sub_u32 s%d, s%d, %d" % (S_M + 2, S_M + 2, 4 * 224 * 1024))
    for q in range(4):
        off = SLOT[WLOC[pos]] + d * 4096 + q * 1024
        g("s_add_u32 m0, s%d, %d" % (S_STG, off) if off >= 0 else "s_sub_u32 m0, s%d, %d" % (S_STG, -off))
        g("s_add_u32 s%d, s%d, %d" % (S_M + 2, S_M + 2, 8192 if q else 0))
        g.vmem("buffer_load_dwordx4 v%d, %s, s%d offen lds" % (V_W2D, SRDW(S_W2), S_M + 2), "w2_%d" % pos)


V_W2H = 4


def w2_rd(g, pos, wait=True):
    if wait:
        g.wait_vm("w2_%d" % pos)
    off = SLOT[WLOC[pos]]
    va = V_W2A
    if off >= 65536:
        va, off = V_W2H, off - 65536
    for c in range(4):
        d = W2F + 16 * pos + 4 * c
        g("ds_read_b64_tr_b16 %s, v%d offset:%d" % (vr(d, 2), va + c, off))
        g("ds_read_b64_tr_b16 %s, v%d offset:%d" % (vr(d + 2, 2), va + c, off + 2048))


def reduce8(g, p):
    g("s_nop 1")
    for i in range(4):
        g("v_permlane32_swap_b32 v%d, v%d" % (p + i, p + i + 4))
    g("s_nop 1")
    for i in range(4):
        g("v_add_f32 v%d, v%d, v%d" % (p + i, p + i, p + i + 4))
    g("s_nop 1")
    for i in range(2):
        g("v_permlane16_swap_b32 v%d, v%d" % (p + i, p + i + 2))
    g("s_nop 1")
    for i in range(2):
        g("v_add_f32 v%d, v%d, v%d" % (p + i, p + i, p + i + 2))
    for rot in (8, 4, 2, 1):
        g("s_nop 1")
        for i in range(2):
            g("v_add_f32_dpp v%d, v%d, v%d row_ror:%d row_mask:0xf bank_mask:0xf" % (p + i, p + i, p + i, rot))


UREG = 72


def u_load(g):
    g("v_bfe_u32 v%d, v0, 4, 4" % VT)
    g("v_mul_u32_u24 v%d, %d, v%d" % (VT, XP, VT))
    g("v_and_b32 v%d, 15, v0" % VT2)
    g("v_lshl_add_u32 v%d, v%d, 4, v%d" % (VT, VT2, VT))
    g("s_lshl_b32 s%d, s2, 8" % S_T1)
    g("s_add_u32 s%d, s%d, %d" % (S_T2, S_T1, 16 * XP))
    g.vmem("buffer_load_dwordx4 %s, v%d, %s, s%d offen sc1" % (vr(UREG, 4), VT, SRDW(S_WS), S_T1), "u")
    g.vmem("buffer_load_dwordx4 %s, v%d, %s, s%d offen sc1" % (vr(UREG + 4, 4), VT, SRDW(S_WS), S_T2), "u")


def u_store(g):
    g("v_bfe_u32 v%d, v0, 4, 4" % VT)
    g("v_lshlrev_b32 v%d, 7, v%d" % (VT, VT))
    g("v_and_b32 v%d, 7, v0" % VT2)
    g("v_lshl_add_u32 v%d, v%d, 4, v%d" % (VT, VT2, VT))
    g("v_bfe_u32 v%d, v0, 3, 1" % VT2)
    g("v_mul_u32_u24 v%d, 4608, v%d" % (VT2, VT2))
    g("v_add_u32 v%d, v%d, v%d" % (VT, VT, VT2))
    g("v_add_u32 v%d, %d, v%d" % (VT, UB + 512, VT))
    g.wait_vm("u")
    g("ds_write_b128 v%d, %s" % (VT, vr(UREG, 4)))
    g("ds_write_b128 v%d, %s offset:2048" % (VT, vr(UREG + 4, 4)))


VAA, VBB, VPW = 232, 233, 234


def conv_addr(g):
    g("v_and_b32 v%d, 15, v1" % VT)
    g("v_lshrrev_b32 v%d, 4, v1" % VT2)
    g("v_lshl_add_u32 v192, v%d, 3, v%d" % (VT2, VT))
    g("s_bfe_u32 s%d, s%d, 0x10001" % (S_T2, S_WAVE))
    g("s_mul_i32 s%d, s%d, 16640" % (S_T3, S_T2))
    g("s_add_u32 s%d, s%d, %d" % (S_T3, S_T3, KC))
    g("s_and_b32 s%d, s%d, 1" % (S_T0, S_WAVE))
    g("s_lshl_b32 s%d, s%d, 5" % (S_T1, S_T0))
    g("s_sub_u32 s%d, %d, s%d" % (S_T1, 2047 + 8 - 32 * 62, S_T1))
    g("v_sub_u32 v192, s%d, v192" % S_T1)
    g("v_and_b32 v193, 3, v192")
    g("v_sub_u32 v192, v192, v193")
    g("v_lshlrev_b32 v192, 1, v192")
    g("v_mul_u32_u24 v193, 4160, v193")
    g("v_add3_u32 v%d, v192, v193, s%d" % (VAA, S_T3))
    g("v_lshlrev_b32 v192, 5, v%d" % VT)
    g("v_lshlrev_b32 v193, 4, v%d" % VT2)
    g("v_sub_u32 v192, v192, v193")
    g("s_mul_i32 s%d, s%d, 4608" % (S_T1, S_T2))
    g("s_lshl_b32 s%d, s%d, 6" % (S_T0, S_T0))
    g("s_sub_u32 s%d, s%d, s%d" % (S_T1, S_T1, S_T0))
    g("s_add_u32 s%d, s%d, %d" % (S_T1, S_T1, UB + 512 - 384 + 16))
    g("v_add_u32 v%d, s%d, v192" % (VBB, S_T1))
    g("v_lshl_add_u32 v%d, v%d, 2, v%d" % (VT, VT2, VT))
    g("v_and_b32 v%d, 15, v%d" % (VT, VT))
    g("v_lshl_add_u32 v%d, v%d, 4, v%d" % (VT, VT2, VT))
    g("s_lshl_b32 s%d, s%d, 3" % (S_T0, S_AK))
    g("s_add_u32 s%d, s%d, %d" % (S_T0, S_T0, PART))
    g("v_lshl_add_u32 v%d, v%d, 4, s%d" % (VPW, VT, S_T0))


def conv(g):
    BF, CACC, AF, NA = 16, 144, 176, 4
    def rdA(ip):
        d = AF + 4 * (ip % NA)
        return ["ds_read_b64 %s, v%d offset:%d" % (vr(d, 2), VAA, 128 * (31 - ip)),
                "ds_read_b64 %s, v%d offset:%d" % (vr(d + 2, 2), VAA, 128 * (31 - ip) + 8)]
    def rdB(tau):
        return "ds_read_b128 %s, v%d offset:%d" % (vr(BF + 4 * (tau + 3), 4), VBB, 128 * (tau + 3))
    lq = []
    def lds(s_, tag):
        g(s_); lq.append(tag)
    def lwait(tags):
        last = max([i for i, t in enumerate(lq) if t in tags], default=-1)
        if last < 0:
            return
        n = len(lq) - 1 - last
        g("s_waitcnt lgkmcnt(%d)" % min(n, 15))
        del lq[:last + 1]
        if n > 15:
            del lq[:len(lq) - 15]
    for s_ in rdA(0): lds(s_, "A0")
    for j in range(8):
        lds(rdB(4 * j), "B%d" % (4 * j))
    for k in (1, 2):
        for s_ in rdA(k): lds(s_, "A%d" % k)
    dmas = [(0, True), (0, False), (1, True), (1, False)]
    for ip in range(32):
        first = True
        for j in range(ip >> 2, 8):
            tau = 4 * j - ip
            lwait(["A%d" % ip, "B%d" % tau])
            a = CACC + 4 * j
            g("v_mfma_f32_16x16x32_bf16 %s, %s, %s, %s" % (vr(a, 4), vr(AF + 4 * (ip % NA), 4), vr(BF + 4 * (tau + 3), 4), "0" if ip == 0 else vr(a, 4)))
            if ip < 3:
                lds(rdB(4 * j - ip - 1), "B%d" % (4 * j - ip - 1))
            if first and ip + 3 < 32:
                for s_ in rdA(ip + 3): lds(s_, "A%d" % (ip + 3))
            first = False
        if ip in (1, 3, 5, 7):
            w2_dma(g, *dmas.pop(0))
    g("s_nop 7")
    for j in range(8):
        g("ds_write_b128 v%d, %s offset:%d" % (VPW, vr(CACC + 4 * j, 4), j * 1024))


def cap(fn):
    t = Gen(False)
    fn(t)
    return [l.strip() for l in t.L]


def gen(ts=False):
    g = Gen(ts)
    g("s_cmp_ge_u32 s2, 256")
    g("s_cbranch_scc1 L_END")
    if OPT["dbgtime"] or OPT.get("rt"):
        g("s_memtime s[98:99]")
        g("s_memrealtime s[100:101]")
    if ts:
        g("%s s[100:101]" % ("s_memrealtime" if OPT.get("rts") else "s_memtime"))
    g("s_load_dwordx16 s[64:79], s[0:1], 0")
    g("s_load_dwordx8 s[80:87], s[0:1], 64")
    g("s_load_dwordx4 s[88:91], s[0:1], 96")
    g("s_getpc_b64 s[%d:%d]" % (S_M, S_M + 1))
    g("s_lshr_b32 s%d, s2, 3" % S_T1)
    g("s_and_b32 s%d, s%d, 3" % (S_T2, S_T1))
    g("s_and_b32 s%d, s%d, 7" % (S_T0, S_T1))
    g("s_min_u32 s%d, s%d, 4" % (S_T0, S_T0))
    g("s_lshl_b32 s%d, s%d, 13" % (S_T0, S_T0))
    g("v_lshlrev_b32 v3, 4, v0")
    g("v_add_u32 v3, s%d, v3" % S_T0)
    g.vmem("global_load_dwordx4 v[252:255], v3, s[%d:%d]" % (S_M, S_M + 1), "code")
    g("v_and_b32 v1, 63, v0")
    g("v_lshrrev_b32 v3, 6, v0")
    g("v_lshlrev_b32 v2, 2, v1")
    g("v_readfirstlane_b32 s%d, v3" % S_WAVE)
    if ts:
        g("v_mov_b32 v15, 0")
    g("s_and_b32 s%d, s2, 7" % S_T0)
    g("s_and_b32 s%d, s2, 3" % S_RT)
    g("s_lshl_b32 s%d, s%d, 3" % (S_RT, S_RT))
    g("s_and_b32 s%d, s2, 4" % S_T3)
    g("s_add_u32 s%d, s%d, s%d" % (S_RT, S_RT, S_T3))
    g("s_add_u32 s%d, s%d, s%d" % (S_RT, S_RT, S_T2))
    g("s_lshr_b32 s%d, s2, 5" % S_NT)
    g("s_xor_b32 s%d, s%d, %d" % (S_NT, S_NT, OPT["ntx"]))
    g("s_and_b32 s%d, s%d, 3" % (S_AK, S_WAVE))
    g("s_lshl_b32 s%d, s%d, 10" % (S_AK, S_AK))
    g("s_bfe_u32 s%d, s%d, 0x10001" % (S_T3, S_WAVE))
    g("s_lshl_b32 s%d, s%d, 8" % (S_T3, S_T3))
    g("s_lshl_b32 s%d, s2, 9" % S_CNT)
    g("s_add_u32 s%d, s%d, s%d" % (S_T3, S_T3, S_CNT))
    g("v_add_u32 v%d, s%d, v2" % (VT, S_T3))
    g("s_lshl_b32 s%d, s2, 2" % S_CNT)
    g("s_sub_u32 s%d, s%d, 4" % (S_FT, S_T1))
    g("s_lshr_b32 s%d, s%d, 2" % (S_T3, S_FT))
    g("s_and_b32 s%d, s%d, 3" % (S_MT, S_T0))
    g("s_lshl_b32 s%d, s%d, 1" % (S_ROT, S_MT))
    g("s_lshl_b32 s%d, s%d, 2" % (S_MT, S_MT))
    g("s_add_u32 s%d, s%d, s%d" % (S_MT, S_MT, S_T2))
    g("s_lshr_b32 s%d, s%d, 2" % (S_FT, S_T0))
    g("s_mul_i32 s%d, s%d, 7" % (S_FT, S_FT))
    g("s_add_u32 s%d, s%d, s%d" % (S_FT, S_FT, S_T3))
    rm = OPT.get("rotmode", 0)
    if rm == 1:
        g("s_add_u32 s%d, s%d, s%d" % (S_ROT, S_ROT, S_T3))
        g("s_lshl_b32 s%d, s%d, 1" % (S_T3, S_T2))
        g("s_add_u32 s%d, s%d, s%d" % (S_ROT, S_ROT, S_T3))
    elif rm == 2:
        g("s_add_u32 s%d, s%d, s%d" % (S_T3, S_T3, S_T2))
        g("s_and_b32 s%d, s%d, 1" % (S_T3, S_T3))
        g("s_lshl_b32 s%d, s%d, 2" % (S_T3, S_T3))
        g("s_add_u32 s%d, s%d, s%d" % (S_ROT, S_ROT, S_T3))
    elif rm == 3:
        g("s_add_u32 s%d, s%d, s%d" % (S_T3, S_T3, S_T2))
        g("s_and_b32 s%d, s%d, 3" % (S_T3, S_T3))
        g("s_lshl_b32 s%d, s%d, 1" % (S_T3, S_T3))
        g("s_add_u32 s%d, s%d, s%d" % (S_ROT, S_ROT, S_T3))
    g("s_and_b32 s%d, s2, 4" % S_T3)
    g("s_add_u32 s%d, s%d, s%d" % (S_ROT, S_ROT, S_T3))
    g.stamp(60)
    g("s_waitcnt lgkmcnt(0)")
    for k, p in enumerate((P_LAR, P_AIM, P_CR, P_CI)):
        g.vmem("global_load_dword v%d, v%d, s[%d:%d]" % (PRM + k, VT, p, p + 1), "prm")
    g("s_load_dword s%d, s[%d:%d], s%d" % (S_LDT, P_LDT, P_LDT + 1, S_CNT))
    g("s_load_dword s%d, s[%d:%d], s%d" % (S_DSK, P_DSK, P_DSK + 1, S_CNT))
    srd(g, S_X, 64, 2097152)
    g("s_cmp_ge_u32 s2, 32")
    g("s_cbranch_scc1 L_NAX")
    vsave = list(g.vm)
    S_RB = S_MT
    g("s_and_b32 s%d, s2, 3" % S_T3)
    g("s_lshl_b32 s%d, s%d, 3" % (S_RB, S_T3))
    g("s_and_b32 s%d, s2, 4" % S_T3)
    g("s_add_u32 s%d, s%d, s%d" % (S_RB, S_RB, S_T3))
    g("s_add_u32 s%d, s%d, s%d" % (S_RB, S_RB, S_T1))
    XR, XF, TT, RED, ONES = 112, 16, 80, 144, 152
    g("v_lshlrev_b32 v%d, 4, v1" % VT)
    g("s_lshl_b32 s%d, s%d, 16" % (S_FT, S_RB))
    g("s_lshl_b32 s%d, s%d, 13" % (S_ROT, S_WAVE))
    g("s_add_u32 s%d, s%d, s%d" % (S_FT, S_FT, S_ROT))
    g("s_add_u32 s%d, s%d, 4096" % (S_T2, S_FT))
    for i in range(8):
        g.vmem("buffer_load_dwordx4 %s, v%d, %s, s%d offen offset:%d" % (vr(XR + 4 * i, 4), VT, SRDW(S_X), S_T2 if i >= 4 else S_FT, (i & 3) * 1024), "x")
    g.vm = vsave
    g.label("L_NAX")
    srd(g, S_W1, 80, 1835008)
    srd(g, S_W3, 82, 1835008)
    srd(g, S_W2, 84, 1835008)
    srd(g, S_OUT, 86, 2097152)
    srd(g, S_DBG, 88, 256)
    srd(g, S_WS, 90, WS_SIZE)
    nonce_write(g)
    if ts:
        g("v_writelane_b32 v15, s100, 63")
    g.stamp(0)
    g("s_cmp_lt_u32 s2, 32")
    g("s_cbranch_scc1 L_AUX")
    vm_entry = list(g.vm)
    g("s_cmp_lt_u32 s%d, 4" % S_WAVE)
    g("s_cbranch_scc1 L_G")
    V_WD, V_XD = 3, 7
    V_FL, V_F2, V_PA = 8, 9, 10
    g("s_lshl_b32 s%d, s%d, 8" % (S_OB, S_FT))
    g("s_lshl_b32 s%d, s%d, 17" % (S_OB + 1, S_MT))
    def offs_l(i):
        return ["s_add_u32 s%d, s%d, %d" % (S_XOFF + i, S_ROT, i),
                "s_and_b32 s%d, s%d, 7" % (S_XOFF + i, S_XOFF + i),
                "s_mul_i32 s%d, s%d, %d" % (S_WOFF + i, S_XOFF + i, 64 * 3584),
                "s_add_u32 s%d, s%d, s%d" % (S_WOFF + i, S_WOFF + i, S_OB),
                "s_lshl_b32 s%d, s%d, 7" % (S_XOFF + i, S_XOFF + i),
                "s_add_u32 s%d, s%d, s%d" % (S_XOFF + i, S_XOFF + i, S_OB + 1)]
    g.emit(offs_l(0))
    g("v_lshrrev_b32 v%d, 4, v1" % VT)
    g("s_bfe_u32 s%d, s%d, 0x10001" % (S_T2, S_WAVE))
    g("s_lshl_b32 s%d, s%d, 2" % (S_T2, S_T2))
    g("v_or_b32 v%d, s%d, v%d" % (VT2, S_T2, VT))
    g("v_lshlrev_b32 v%d, 1, v%d" % (VT2, VT2))
    g("v_and_b32 v%d, 15, v1" % V_WD)
    g("v_xor_b32 v%d, v%d, v%d" % (V_WD, V_WD, VT2))
    g("v_lshlrev_b32 v%d, 4, v%d" % (V_WD, V_WD))
    g("v_bfe_u32 v%d, v0, 4, 4" % VT)
    g("v_mul_u32_u24 v%d, 3584, v%d" % (VT2, VT))
    g("v_add_u32 v%d, v%d, v%d" % (V_WD, V_WD, VT2))
    for k in range(1, 4):
        g("v_add_u32 v%d, %d, v%d" % (V_WD + k, 16 * k * 3584, V_WD))
    g("v_xor_b32 v%d, v%d, v1" % (VT, VT))
    g("v_and_b32 v%d, 7, v%d" % (VT, VT))
    g("v_bfe_u32 v%d, v0, 3, 5" % VT2)
    g("v_lshlrev_b32 v%d, 10, v%d" % (VT2, VT2))
    g("v_lshl_add_u32 v%d, v%d, 4, v%d" % (V_XD, VT, VT2))

    def xdma(st, bs, tag):
        for b in bs:
            g("s_add_u32 m0, s%d, %d" % (S_AK, XBASE + (st % 3) * 16384 + b * 4096))
            g("s_add_u32 s%d, s%d, %d" % (S_T3, S_XOFF + st, b * 32768))
            g.vmem("buffer_load_dwordx4 v%d, %s, s%d offen lds" % (V_XD, SRDW(S_X), S_T3), tag)

    def unit(k):
        st, h = k >> 1, k & 1
        if h == 0 and k != 4:
            xdma(st, range(4) if k <= 4 else (2, 3), "U%d" % k)
        for mat in range(2):
            for half in range(2):
                g("s_add_u32 m0, s%d, %d" % (S_AK, WBASE + (k % 4) * 16384 + mat * 8192 + half * 4096))
                g("s_nop 0")
                g.vmem("buffer_load_dwordx4 v%d, %s, s%d offen lds" % (V_WD + 2 * h + half, SRDW((S_W1, S_W3)[mat]), S_WOFF + st), "U%d" % k)
        if h == 1 and 5 <= k < 15:
            xdma(st + 1, (0, 1), "U%d" % (k + 1))

    g.stamp(61)
    unit(0); unit(1)
    g.stamp(62)
    g.emit(offs_l(1))
    k_wr(g)
    k_raddr(g)
    g("v_bfe_u32 v%d, v1, 2, 2" % VT)
    g("v_lshrrev_b32 v%d, 4, v1" % VT2)
    g("v_and_b32 v%d, 1, v%d" % (V_PA, VT2))
    g("v_lshl_or_b32 v%d, v%d, 2, v%d" % (V_PA, V_PA, VT))
    g("s_and_b32 s%d, s%d, 3" % (S_T3, S_MT))
    g("s_lshl_b32 s%d, s%d, 1" % (S_T3, S_T3))
    g("v_xor_b32 v%d, s%d, v%d" % (V_PA, S_T3, V_PA))
    g("v_lshlrev_b32 v%d, 5, v%d" % (V_PA, V_PA))
    g("v_lshl_add_u32 v%d, v%d, 3, v%d" % (VT, VT2, VT))
    g("v_lshl_add_u32 v%d, v%d, 8, v%d" % (V_PA, VT, V_PA))
    g("v_and_b32 v%d, 3, v1" % VT)
    g("v_lshl_add_u32 v%d, v%d, 3, v%d" % (V_PA, VT, V_PA))
    g("s_bfe_u32 s%d, s%d, 0x10001" % (S_T2, S_WAVE))
    g("s_lshl_b32 s%d, s%d, 13" % (S_T2, S_T2))
    g("s_add_u32 s%d, s%d, %d" % (S_T2, S_T2, WBASE))
    g("v_add_u32 v%d, s%d, v%d" % (V_PA, S_T2, V_PA))
    g("s_and_b32 s%d, s%d, 1" % (S_T2, S_WAVE))
    g("s_lshl_b32 s%d, s%d, 5" % (S_T2, S_T2))
    g("v_xor_b32 v%d, s%d, v%d" % (V_PA, S_T2, V_PA))
    ONES, PF, PD = 112, 116, 124
    for r in range(4):
        g("v_mov_b32 v%d, 0x3f803f80" % (ONES + r))
    g.stamp(59)
    g.wait_vm("prm", "lgkmcnt(0)")
    g.stamp(20)
    if OPT.get("st", 1):
        k_chains(g, 1, lambda: unit(2))
        g.stamp(58)
        g.emit(offs_l(2))
        g.wait_vm("U1", "lgkmcnt(0)")
    else:
        k_chains(g, 1)
        g.stamp(58)
        unit(2)
        g.wait_vm("U0", "lgkmcnt(0)")
    g.stamp(1)
    g("s_barrier")
    g.stamp(2)
    def pcs_rd(k):
        d = PF + 4 * (k & 1)
        return ["ds_read_b64_tr_b16 %s, v%d offset:%d" % (vr(d, 2), V_PA, (k % 4) * 16384),
                "ds_read_b64_tr_b16 %s, v%d offset:%d" % (vr(d + 2, 2), V_PA, (k % 4) * 16384 + 1024)]
    def pcs_mf(k):
        return ["v_mfma_f32_16x16x32_bf16 %s, %s, %s, %s" % (vr(PD, 4), vr(PF + 4 * (k & 1), 4), vr(ONES, 4), "0" if k == 0 else vr(PD, 4))]
    def pcs_store():
        g("s_lshl_b32 s%d, s%d, 2" % (S_T2, S_FT))
        g("s_lshr_b32 s%d, s%d, 2" % (S_T3, S_MT))
        g("s_add_u32 s%d, s%d, s%d" % (S_T2, S_T2, S_T3))
        g("s_lshl_b32 s%d, s%d, 10" % (S_T2, S_T2))
        g("s_bfe_u32 s%d, s%d, 0x10001" % (S_T3, S_WAVE))
        g("s_lshl_b32 s%d, s%d, 9" % (S_T3, S_T3))
        g("s_add_u32 s%d, s%d, s%d" % (S_T2, S_T2, S_T3))
        g("s_and_b32 s%d, s%d, 3" % (S_T3, S_MT))
        g("s_lshl_b32 s%d, s%d, 7" % (S_T3, S_T3))
        g("s_add_u32 s%d, s%d, s%d" % (S_T2, S_T2, S_T3))
        g("s_and_b32 s%d, s%d, 1" % (S_T3, S_WAVE))
        g("s_lshl_b32 s%d, s%d, 6" % (S_T3, S_T3))
        g("s_add_u32 s%d, s%d, s%d" % (S_T2, S_T2, S_T3))
        g("s_add_u32 s%d, s%d, %d" % (S_T2, S_T2, WS_PCS))
        g("s_mov_b32 s%d, 0x00010001" % S_EX)
        g("s_mov_b32 s%d, 0x00010001" % (S_EX + 1))
        g("s_mov_b64 exec, s[%d:%d]" % (S_EX, S_EX + 1))
        g.vmem("buffer_store_dwordx4 %s, v1, %s, s%d offen sc1" % (vr(PD, 4), SRDW(S_WS), S_T2), "pst")
        g("s_mov_b64 exec, -1")
    SCR = 80
    def sc_load():
        g("v_lshlrev_b32 v%d, 4, v1" % V_PA)
        sk, s2 = g.newlabel("SC"), g.newlabel("SC")
        g("s_cmp_ge_u32 s%d, 6" % S_WAVE)
        g("s_cbranch_scc1 %s" % sk)
        g("s_lshl_b32 s%d, s%d, 11" % (S_T2, S_MT))
        g("s_add_u32 s%d, s%d, s%d" % (S_T2, S_T2, S_AK))
        g("s_add_u32 s%d, s%d, %d" % (S_T2, S_T2, WS_STATS))
        g("buffer_load_dwordx4 %s, v%d, %s, s%d offen sc1" % (vr(SCR, 4), V_PA, SRDW(S_WS), S_T2))
        g("s_branch %s" % s2)
        g.label(sk)
        g("s_lshl_b32 s%d, s%d, 12" % (S_T2, S_FT))
        g("s_add_u32 s%d, s%d, %d" % (S_T2, S_T2, WS_PCS))
        for k in range(4):
            g("buffer_load_dwordx4 %s, v%d, %s, s%d offen offset:%d sc1" % (vr(SCR + 4 * k, 4), V_PA, SRDW(S_WS), S_T2, 1024 * k))
        g.label(s2)
    def sc_store():
        sk = g.newlabel("SC")
        g("s_cmp_lt_u32 s%d, 6" % S_WAVE)
        g("s_cbranch_scc1 %s" % sk)
        for r in range(4):
            g("v_add_f32 v%d, v%d, v%d" % (SCR + r, SCR + r, SCR + 4 + r))
            g("v_add_f32 v%d, v%d, v%d" % (SCR + 8 + r, SCR + 8 + r, SCR + 12 + r))
        for r in range(4):
            g("v_add_f32 v%d, v%d, v%d" % (SCR + r, SCR + r, SCR + 8 + r))
        g.label(sk)
        g("s_min_u32 s%d, s%d, 2048" % (S_T2, S_AK))
        g("s_add_u32 s%d, s%d, %d" % (S_T2, S_T2, SCL))
        g("v_add_u32 v%d, s%d, v%d" % (V_PA, S_T2, V_PA))
        g("ds_write_b128 v%d, %s" % (V_PA, vr(SCR, 4)))
    if OPT["aprio"]:
        g("s_setprio %d" % OPT["aprio"])
    if OPT.get("st", 1):
        g.emit(pcs_rd(0))
    else:
        g.emit(pcs_rd(0) + offs_l(2) + [lambda: unit(3), lambda: k_tload(g), lambda: nonce_issue(g, V_F2)])
    tc = tail_consts()
    ca = cap(conv_addr)
    kr, km = k_reads(), k_mfmas()
    pub_pcs = lambda: publish(g, (S_FT, 25), lambda: g("s_lshl_b32 s%d, s%d, 7" % (S_EX, S_MT)), VT)
    LW = "s_waitcnt lgkmcnt(0)"
    work = {
        0: (pcs_rd(1) + kr[:12] + [lambda: unit(4)] + pcs_mf(0) + offs_l(3), True),
        1: (pcs_rd(2) + kr[12:] + [lambda: xdma(2, range(4), "U4"), lambda: unit(5)] + km[:8] + pcs_mf(1), True),
        2: (pcs_rd(3) + [lambda: unit(6)] + km[8:] + pcs_mf(2) + offs_l(4), True),
        3: (pcs_mf(3) + tc[:16] + [pcs_store, lambda: unit(7)], False),
        4: ([lambda: unit(8), lambda: nonce_check(g, V_F2)] + offs_l(5) + tc[16:46], False),
        5: ([lambda: unit(9)] + tc[46:67], False),
        6: ([lambda: unit(10), pub_pcs] + offs_l(6), False),
        7: ([lambda: unit(11)] + tc[67:], False),
        8: ([lambda: unit(12)] + offs_l(7), False),
        9: ([lambda: unit(13)] + ca, False),
        10: ([lambda: unit(14), lambda: flag_issue(g, V_F2, (S_FT, 25), 16, "0:flag2", S_FA2), lambda: flag_issue(g, V_FL, (None, 0), 32)], False),
        11: ([lambda: unit(15), lambda: flag_check(g, V_F2, 16, "0:flag2", S_FA2), lambda: flag_check(g, V_FL, 32)], False),
        12: ([sc_load, lambda: u_load(g)] + k_table(), True),
        13: (k_gather(0) + k_gather(1) + [lambda: k_zero(g), lambda: nonce_lds(g), LW] + [x for x in k_build(0) + k_build(1) if x.startswith("v_lshl_or")], True),
        14: ([x for x in k_build(0) + k_build(1) if x.startswith("ds_write")] + [lambda: u_store(g), sc_store], True),
    }
    if OPT.get("st", 1):
        work[0] = ([lambda: unit(3)] + work[0][0], True)
        work[2] = (work[2][0] + [lambda: nonce_issue(g, V_F2)], True)
        work[6] = (work[6][0] + [lambda: k_tload(g)], False)
    lw = True
    for it in range(16):
        ex = "lgkmcnt(0)" if lw else ""
        if it < 15:
            g.wait_vm("U%d" % (it + 1), ex)
        elif ex:
            g("s_waitcnt lgkmcnt(0)")
        g("s_barrier")
        if it in (0, 15):
            g.stamp(41 + it)
        if it < 15:
            g.emit(work[it][0])
            lw = work[it][1]
    g("s_setprio %d" % OPT["cprio"])
    g.label("L_ACONV")
    g.vm = []
    g.stamp(3)
    conv(g)
    g.stamp(4)
    g("s_branch L_J")

    g.label("L_G")
    g.vm = list(vm_entry)
    V_XA0, V_XA1, V_WA = 3, 4, 5
    SETS, ACC = [16, 64], 112
    g("v_and_b32 v%d, 15, v1" % VT)
    g("v_lshrrev_b32 v%d, 4, v1" % VT2)
    g("v_lshrrev_b32 v%d, 1, v%d" % (V_XA0, VT))
    g("v_xor_b32 v%d, v%d, v%d" % (V_XA0, V_XA0, VT2))
    g("v_lshlrev_b32 v%d, 4, v%d" % (V_XA0, V_XA0))
    g("v_lshl_add_u32 v%d, v%d, 7, v%d" % (V_XA0, VT, V_XA0))
    g("s_lshr_b32 s%d, s%d, 1" % (S_T2, S_WAVE))
    g("s_lshl_b32 s%d, s%d, 13" % (S_T3, S_T2))
    g("v_add_u32 v%d, s%d, v%d" % (V_XA0, S_T3, V_XA0))
    g("v_xor_b32 v%d, 64, v%d" % (V_XA1, V_XA0))
    g("s_lshl_b32 s%d, s%d, 10" % (S_T3, S_T2))
    g("s_add_u32 s%d, s%d, %d" % (S_T3, S_T3, SCL))
    g("v_lshl_add_u32 v9, v%d, 4, s%d" % (VT, S_T3))
    g("s_and_b32 s%d, s%d, 1" % (S_T0, S_WAVE))
    g("s_lshl_b32 s%d, s%d, 8" % (S_T3, S_T0))
    g("s_add_u32 s%d, s%d, %d" % (S_T3, S_T3, SCL + 2048))
    g("v_lshl_add_u32 v10, v%d, 4, s%d" % (VT2, S_T3))
    g("v_lshrrev_b32 v%d, 2, v%d" % (VT, VT))
    g("v_and_b32 v%d, 1, v%d" % (V_WA, VT2))
    g("v_lshl_or_b32 v%d, v%d, 2, v%d" % (V_WA, V_WA, VT))
    g("s_lshl_b32 s%d, s%d, 2" % (S_T3, S_T0))
    g("v_xor_b32 v%d, s%d, v%d" % (V_WA, S_T3, V_WA))
    g("v_lshlrev_b32 v%d, 5, v%d" % (V_WA, V_WA))
    g("v_lshl_add_u32 v%d, v%d, 3, v%d" % (VT, VT2, VT))
    g("v_lshl_add_u32 v%d, v%d, 8, v%d" % (V_WA, VT, V_WA))
    g("v_and_b32 v%d, 3, v1" % VT)
    g("v_lshl_add_u32 v%d, v%d, 3, v%d" % (V_WA, VT, V_WA))
    g("v_add_u32 v%d, %d, v%d" % (V_WA, WBASE, V_WA))
    for tt in range(1, 4):
        g("v_xor_b32 v%d, %d, v%d" % (V_WA + tt, 32 * tt, V_WA))
    g("s_lshl_b32 s%d, s%d, 2" % (S_HST, S_T2))
    g("s_lshl_b32 s%d, s%d, 3" % (S_T3, S_MT))
    g("s_add_u32 s%d, s%d, s%d" % (S_HST, S_HST, S_T3))
    g("s_mul_i32 s%d, s%d, 56" % (S_HST, S_HST))
    g("s_lshl_b32 s%d, s%d, 2" % (S_T3, S_FT))
    g("s_add_u32 s%d, s%d, s%d" % (S_HST, S_HST, S_T3))
    g("s_lshl_b32 s%d, s%d, 1" % (S_T3, S_T0))
    g("s_add_u32 s%d, s%d, s%d" % (S_HST, S_HST, S_T3))
    g("s_lshl_b32 s%d, s%d, 10" % (S_HST, S_HST))
    g("s_add_u32 s%d, s%d, %d" % (S_HST, S_HST, WS_H))
    g("v_lshlrev_b32 v11, 4, v1")
    k_wr(g)
    g.emit(tail_consts())
    g.wait_vm("prm", "lgkmcnt(0)")
    g.stamp(20)
    k_chains(g, 0)
    if OPT.get("touch"):
        sk = g.newlabel("TCH")
        g("s_cmp_lg_u32 s%d, 0" % S_WAVE)
        g("s_cbranch_scc1 %s" % sk)
        g("s_mov_b64 exec, 1")
        g("buffer_load_dword v252, off, %s, s%d sc1" % (SRDW(S_WS), S_HST))
        g("s_mul_i32 s%d, s2, %d" % (S_T0, AOP))
        g("s_add_u32 s%d, s%d, %d" % (S_T0, S_T0, WS_AO))
        g("buffer_load_dword v253, off, %s, s%d sc1" % (SRDW(S_WS), S_T0))
        g("buffer_load_dword v254, off, %s, s%d sc1" % (SRDW(S_OUT), S_OUTO))
        g("buffer_load_dword v255, off, %s, s%d" % (SRDW(S_W2), S_W2G))
        g("s_mov_b64 exec, -1")
        g.label(sk)
    g("s_waitcnt lgkmcnt(0)")
    g.stamp(1)
    g("s_barrier")
    g.stamp(2)

    def frag_reads(it):
        S = SETS[it & 1]
        xs = (it >> 1) % 3
        va = V_XA1 if (it & 1) else V_XA0
        so = (it % 4) * 16384
        xr = ["ds_read_b128 %s, v%d offset:%d" % (vr(S + 4 * mi, 4), va, XBASE + xs * 16384 + mi * 2048) for mi in range(4)]
        wr = []
        for mat in range(2):
            for tt in range(4):
                d = S + 16 + 4 * (4 * mat + tt)
                wr.append("ds_read_b64_tr_b16 %s, v%d offset:%d" % (vr(d, 2), V_WA + tt, so + mat * 8192))
                wr.append("ds_read_b64_tr_b16 %s, v%d offset:%d" % (vr(d + 2, 2), V_WA + tt, so + mat * 8192 + 1024))
        return xr + wr

    STR, CSR = 16, 32
    def sc_reads():
        r = ["ds_read_b128 %s, v9 offset:%d" % (vr(STR + 4 * mi, 4), mi * 256) for mi in range(4)]
        r += ["ds_read_b128 %s, v10 offset:%d" % (vr(CSR + 4 * c, 4), (c >> 2) * 512 + (c & 3) * 64) for c in range(8)]
        return r

    g.emit(frag_reads(0))
    for it in range(16):
        g("s_waitcnt lgkmcnt(0)")
        g("s_barrier")
        if it in (0, 8, 12, 15) or OPT.get("gst"):
            g.stamp(41 + it)
        S = SETS[it & 1]
        rd = frag_reads(it + 1) if it < 15 else sc_reads()
        n = 0
        for mi in range(4):
            for c in range(8):
                a = ACC + 32 * mi + 4 * c
                g("v_mfma_f32_16x16x32_bf16 %s, %s, %s, %s" % (vr(a, 4), vr(S + 16 + 4 * c, 4), vr(S + 4 * mi, 4), "0" if it == 0 else vr(a, 4)))
                if n < len(rd):
                    g(rd[n])
                n += 1
    g.stamp(3)
    g("s_waitcnt lgkmcnt(0)")
    E, HO = 64, 80
    for mi in range(4):
        st = STR + 4 * mi
        for kp in range(2):
            ho = HO + 4 * kp
            for t2 in range(2):
                tt = 2 * kp + t2
                ag, au = ACC + 32 * mi + 4 * tt, ACC + 32 * mi + 4 * (4 + tt)
                c1, c3 = CSR + 4 * tt, CSR + 4 * (4 + tt)
                e = E + 4 * t2
                for r in range(4):
                    g("v_fma_f32 v%d, -v%d, v%d, v%d" % (ag + r, st, c1 + r, ag + r))
                for r in range(4):
                    g("v_mul_f32 v%d, v%d, v%d" % (e + r, st + 1, ag + r))
                for r in range(4):
                    g("v_exp_f32 v%d, v%d" % (e + r, e + r))
                for r in range(4):
                    g("v_fma_f32 v%d, -v%d, v%d, v%d" % (au + r, st, c3 + r, au + r))
                for r in range(4):
                    g("v_fma_f32 v%d, v%d, v%d, v%d" % (e + r, e + r, st + 2, st + 2))
                for r in range(4):
                    g("v_rcp_f32 v%d, v%d" % (e + r, e + r))
                for r in range(4):
                    g("v_mul_f32 v%d, v%d, v%d" % (ag + r, ag + r, au + r))
                for r in range(4):
                    g("v_mul_f32 v%d, v%d, v%d" % (ag + r, ag + r, e + r))
                g("v_cvt_pk_bf16_f32 v%d, v%d, v%d" % (ho + 2 * t2, ag, ag + 1))
                g("v_cvt_pk_bf16_f32 v%d, v%d, v%d" % (ho + 2 * t2 + 1, ag + 2, ag + 3))
            g.vmem("buffer_store_dwordx4 %s, v11, %s, s%d offen offset:%d sc1" % (vr(ho, 4), SRDW(S_WS), S_HST, 1024 * kp), "hst")
        if mi < 3:
            g("s_add_u32 s%d, s%d, %d" % (S_HST, S_HST, 56 * 1024))
    g.stamp(4)
    g("s_branch L_J")

    g.label("L_AUX")
    g.vm = list(vm_entry)
    aux(g)

    g.label("L_J")
    common(g)
    g.label("L_END")
    g("s_endpgm")
    return g


def aux(g):
    S_RB = S_MT
    XR, XF, TT, RED, ONES = 112, 16, 80, 144, 152
    g.vm += ["x"] * 8
    k_wr(g)
    g.wait_vm("prm", "lgkmcnt(0)")
    g("s_cmp_ge_u32 s%d, 4" % S_WAVE)
    g("s_cbranch_scc1 L_AXB")
    k_chains(g, 0)
    g("s_branch L_AXC")
    g.label("L_AXB")
    k_chains(g, 1)
    k_raddr(g)
    g.label("L_AXC")
    g.emit(tail_consts())
    g("v_mov_b32 v%d, 0x3f803f80" % ONES)
    g("v_and_b32 v3, 7, v1")
    g("v_xor_b32 v3, s%d, v3" % S_WAVE)
    g("v_lshlrev_b32 v3, 4, v3")
    g("v_lshl_add_u32 v3, v1, 10, v3")
    g("v_add_u32 v3, %d, v3" % WBASE)
    g("v_lshrrev_b32 v4, 4, v1")
    g("v_lshlrev_b32 v4, 5, v4")
    g("s_lshr_b32 s%d, s%d, 6" % (S_T0, S_FT))
    g("s_add_u32 s%d, s%d, %d" % (S_T0, S_T0, WS_STATS))
    g("s_mov_b32 s%d, 0x00010001" % S_EX)
    g("s_mov_b32 s%d, 0x00010001" % (S_EX + 1))
    SM = 36
    MEAN, SO, RI = 154, 156, 164
    g.wait_vm("x")
    g.stamp(30)
    nonce_issue(g, 9)
    for i in range(8):
        g("v_dot2_f32_bf16 v%d, v%d, v%d, 0" % (RED + i, XR + 4 * i, ONES))
    for k in range(1, 4):
        for i in range(8):
            g("v_dot2_f32_bf16 v%d, v%d, v%d, v%d" % (RED + i, XR + 4 * i + k, ONES, RED + i))
    for i in range(8):
        for k in range(4):
            g("v_lshlrev_b32 v%d, 16, v%d" % (XF + 8 * i + 2 * k, XR + 4 * i + k))
            g("v_and_b32 v%d, 0xffff0000, v%d" % (XF + 8 * i + 2 * k + 1, XR + 4 * i + k))
    reduce8(g, RED)
    for i in range(2):
        g("v_mul_f32 v%d, 0x3b000000, v%d" % (MEAN + i, RED + i))
    g("s_nop 0")
    for row in range(8):
        g("v_readlane_b32 s%d, v%d, %d" % (SM + 2 * row, MEAN + (row & 1), 16 * (row >> 1)))
    g("s_nop 1")
    for k in range(4):
        for i in range(8):
            g("v_pk_add_f32 %s, %s, s[%d:%d] op_sel_hi:[1,0] neg_lo:[0,1] neg_hi:[0,1]" % (vr(TT + 2 * i, 2), vr(XF + 8 * i + 2 * k, 2), SM + 2 * i, SM + 2 * i + 1))
        for i in range(8):
            d, a = TT + 2 * i, XR + 2 * i
            if k == 0:
                g("v_pk_mul_f32 %s, %s, %s" % (vr(a, 2), vr(d, 2), vr(d, 2)))
            else:
                g("v_pk_fma_f32 %s, %s, %s, %s" % (vr(a, 2), vr(d, 2), vr(d, 2), vr(a, 2)))
    for i in range(8):
        g("v_add_f32 v%d, v%d, v%d" % (RED + i, XR + 2 * i, XR + 2 * i + 1))
    reduce8(g, RED)
    for i in range(2):
        o = SO + 4 * i
        g("v_mul_f32 v%d, 0x3b000000, v%d" % (RED + i, RED + i))
        rnd_bf16(g, RED + i, RED + i)
        g("v_add_f32 v%d, 0x3727c5ac, v%d" % (RED + i, RED + i))
        rnd_bf16(g, RED + i, RED + i)
        g("v_sqrt_f32 v%d, v%d" % (RED + i, RED + i))
        g("s_nop 0")
        rnd_bf16(g, RED + i, RED + i)
        g("v_rcp_f32 v%d, v%d" % (RI + i, RED + i))
        rnd_bf16(g, o, MEAN + i)
        g("v_mul_f32 v%d, 0x%x, v%d" % (o + 1, NLOG2E, RI + i))
        g("v_mul_f32 v%d, v%d, v%d" % (o + 2, RED + i, RED + i))
        g("v_mov_b32 v%d, v%d" % (o + 3, RED + i))
    g("s_nop 0")
    for row in range(8):
        g("v_readlane_b32 s%d, v%d, %d" % (SM + 2 * row, SO + 4 * (row & 1), 16 * (row >> 1)))
        g("v_readlane_b32 s%d, v%d, %d" % (SM + 2 * row + 1, RI + (row & 1), 16 * (row >> 1)))
    g("s_mov_b64 exec, s[%d:%d]" % (S_EX, S_EX + 1))
    for i in range(2):
        g.vmem("buffer_store_dwordx4 %s, v4, %s, s%d offen offset:%d sc1" % (vr(SO + 4 * i, 4), SRDW(S_WS), S_T0, 16 * i), "s1")
    g("s_mov_b64 exec, -1")
    for i in range(8):
        for k in range(4):
            d = XF + 8 * i + 2 * k
            g("v_pk_add_f32 %s, %s, s[%d:%d] op_sel_hi:[1,0] neg_lo:[0,1] neg_hi:[0,1]" % (vr(d, 2), vr(d, 2), SM + 2 * i, SM + 2 * i + 1))
        for k in range(4):
            d = XF + 8 * i + 2 * k
            g("v_pk_mul_f32 %s, %s, s[%d:%d] op_sel:[0,1] op_sel_hi:[1,1]" % (vr(d, 2), vr(d, 2), SM + 2 * i, SM + 2 * i + 1))
    for c in range(8):
        for ip in range(4):
            g("v_cvt_pk_bf16_f32 v%d, v%d, v%d" % (TT + 4 * c + ip, XF + 16 * ip + c, XF + 16 * ip + 8 + c))
        g("ds_write_b128 v3, %s offset:%d" % (vr(TT + 4 * c, 4), c * 128))
    g("v_lshlrev_b32 v3, 4, v1")
    g("v_add_u32 v4, s%d, v3" % S_ROT)
    for k in range(8):
        g("v_xor_b32 v%d, %d, v3" % (RED + k, 16 * k))
    g("s_mul_i32 s%d, s%d, %d" % (S_T2, S_RB, XP))
    g("s_add_u32 s%d, s%d, s%d" % (S_T2, S_T2, S_ROT))
    g("s_add_u32 s%d, s%d, 4096" % (S_T3, S_T2))
    g("s_waitcnt lgkmcnt(0)")
    g.stamp(33)
    g("s_barrier")
    XS = 160
    for k in range(8):
        g("ds_read_b128 %s, v4 offset:%d" % (vr(XS + 4 * k, 4), WBASE + k * 1024))
    for k in range(8):
        g("s_waitcnt lgkmcnt(%d)" % (7 - k))
        g.vmem("buffer_store_dwordx4 %s, v%d, %s, s%d offen offset:%d sc1" % (vr(XS + 4 * k, 4), RED + k, SRDW(S_WS), S_T3 if k >= 4 else S_T2, (k & 3) * 1024), "s1")
    g.stamp(34)
    nonce_check(g, 9)
    nonce_lds(g)
    sk = g.newlabel("AXK")
    g("s_cmp_lt_u32 s%d, 4" % S_WAVE)
    g("s_cbranch_scc1 %s" % sk)
    vs = list(g.vm)
    k_tload(g)
    g.vm = vs
    g.emit(k_reads())
    conv_addr(g)
    g("s_waitcnt lgkmcnt(0)")
    g.emit(k_mfmas())
    g.label(sk)
    g.wait_vm("s1")
    g("s_barrier")
    publish(g, (None, 0), lambda: g("s_lshl_b32 s%d, s2, 7" % S_EX), VT)
    g.stamp(31)
    g.stamp(35)
    g("s_cmp_ge_u32 s%d, 4" % S_WAVE)
    g("s_cbranch_scc1 L_AXH")
    g("s_lshr_b32 s%d, s2, 3" % S_T0)
    g("s_lshl_b32 s%d, s%d, 1" % (S_T0, S_T0))
    g("s_and_b32 s%d, s%d, 1" % (S_T1, S_WAVE))
    g("s_add_u32 s%d, s%d, s%d" % (S_T0, S_T0, S_T1))
    g("s_mul_i32 s%d, s%d, 224" % (S_T0, S_T0))
    g("s_lshr_b32 s%d, s%d, 1" % (S_T1, S_WAVE))
    g("s_add_u32 s%d, s%d, s%d" % (S_T0, S_T0, S_T1))
    g("s_lshl_b32 s%d, s%d, 10" % (S_ROT, S_T0))
    g("s_and_b32 s%d, s2, 7" % S_FT)
    g("v_lshlrev_b32 v5, 4, v1")
    nb = OPT["auxpf"]
    def pf():
        g("s_sub_u32 s%d, s%d, 7" % (S_T1, S_FT))
        g("s_cmp_ge_u32 s%d, 7" % S_FT)
        g("s_cselect_b32 s%d, s%d, s%d" % (S_FT, S_T1, S_FT))
        g("s_lshl_b32 s%d, s%d, 15" % (S_T0, S_FT))
        g("s_add_u32 s%d, s%d, s%d" % (S_T0, S_T0, S_ROT))
        for i in range(16):
            g("buffer_load_dwordx4 %s, v5, %s, s%d offen offset:%d" % (vr(16 + 4 * i, 4), SRDW(S_W2), S_T0, 2048 * (i & 1)))
            if i & 1:
                g("s_add_u32 s%d, s%d, 4096" % (S_T0, S_T0))
        g("s_add_u32 s%d, s%d, 1" % (S_FT, S_FT))
    per = {0: [0, 0, 0, nb], 1: [1, 0, 0, nb - 1], 2: [1, 1, 0, nb - 2]}[OPT.get("pfmode", 1)]
    for i in range(4):
        for _ in range(max(per[i], 0)):
            pf()
        if i < 3:
            g("s_barrier")
    g("s_waitcnt vmcnt(0)")
    g("s_branch L_J")
    g.label("L_AXH")
    g.vm = []
    g("s_waitcnt vmcnt(0)")
    g("s_nop 7")
    g.emit(k_table())
    g("s_waitcnt lgkmcnt(0)")
    g("s_barrier")
    flag_issue(g, 8, (None, 0), 32)
    g.emit(k_gather(0) + k_gather(1))
    k_zero(g)
    g("s_waitcnt lgkmcnt(0)")
    g.emit(k_build(0) + k_build(1))
    flag_check(g, 8, 32)
    g("s_barrier")
    u_load(g)
    u_store(g)
    g("s_waitcnt lgkmcnt(0)")
    g("s_barrier")
    g.stamp(1)
    g("s_branch L_ACONV")


def common(g):
    g("s_setprio 0")
    g.wait_vm_all("lgkmcnt(0)")
    g.stamp(5)
    g("s_barrier")
    g.stamp(6)
    P, U = 80, 96
    for a in range(4):
        g("ds_read_b128 %s, v%d offset:%d" % (vr(P + 4 * a, 4), V_CR, a * 8192))
    g("ds_read_b64 %s, v%d" % (vr(U, 2), V_CU))
    g("ds_read_b64 %s, v%d offset:4608" % (vr(U + 2, 2), V_CU))
    g("v_mov_b32 v3, %d" % NWL)
    g("ds_read_b32 v3, v3")
    w2_rd(g, 0, False)
    w2_rd(g, 1, False)
    sk = g.newlabel("PH")
    g("s_cmp_lt_u32 s2, 32")
    g("s_cbranch_scc1 %s" % sk)
    publish(g, (S_MT, 1), lambda: g("s_lshl_b32 s%d, s%d, 7" % (S_EX, S_FT)), VT2)
    g.label(sk)
    w2_dma(g, 2)
    for c in range(4):
        g("v_add_u32 v%d, 0x10000, v%d" % (V_W2H + c, V_W2A + c))
    g("s_lshl_b32 s%d, s%d, 16" % (S_T0, S_DSK))
    g("s_and_b32 s%d, s%d, 0xffff0000" % (S_T1, S_DSK))
    g("s_waitcnt lgkmcnt(15)")
    g("v_readfirstlane_b32 s%d, v3" % S_NONCE)
    g.lead = 0
    UF = 100
    for ch in range(2):
        b = P + 8 * ch
        for r in range(4):
            g("v_add_f32 v%d, v%d, v%d" % (b + r, b + r, b + 4 + r))
        for k in range(2):
            g("v_lshlrev_b32 v%d, 16, v%d" % (UF + 2 * k, U + 2 * ch + k))
            g("v_and_b32 v%d, 0xffff0000, v%d" % (UF + 2 * k + 1, U + 2 * ch + k))
        for r in range(4):
            g("v_mul_f32 v%d, s%d, v%d" % (UF + r, (S_T0, S_T1)[ch], UF + r))
        for r in range(4):
            g("v_cvt_pk_bf16_f32 v%d, v%d, v%d" % (b + 4 + r, b + r, UF + r))
        for r in range(4):
            g("v_lshlrev_b32 v%d, 16, v%d" % (b + r, b + 4 + r))
            g("v_and_b32 v%d, 0xffff0000, v%d" % (b + 4 + r, b + 4 + r))
        for r in range(4):
            g("v_add_f32 v%d, v%d, v%d" % (b + r, b + r, b + 4 + r))
    AOR = 104
    for r in range(4):
        g("v_cvt_pk_bf16_f32 v%d, v%d, v%d" % (AOR + r, P + r, P + 8 + r))
    g("v_lshlrev_b32 v%d, 4, v0" % VT)
    g("s_mul_i32 s%d, s2, %d" % (S_T0, AOP))
    g("s_add_u32 s%d, s%d, %d" % (S_T0, S_T0, WS_AO))
    g.vmem("buffer_store_dwordx4 %s, v%d, %s, s%d offen sc1" % (vr(AOR, 4), VT, SRDW(S_WS), S_T0), "ao")
    g("s_waitcnt lgkmcnt(0)")
    w2_dma(g, 3)
    w2_dma(g, 4)
    g.stamp(7)
    w2_rd(g, 2)
    VFL = 8
    g("s_lshr_b32 s%d, s%d, 1" % (S_T0, S_RT))
    flag_issue(g, VFL, (S_T0, 1), 14)
    RA0, RA1, VO, VH = 9, 10, 12, 11
    g("v_lshlrev_b32 v%d, 4, v1" % VH)
    g("v_lshrrev_b32 v%d, 3, v1" % VT2)
    g("v_lshlrev_b32 v%d, 10, v%d" % (VT2, VT2))
    g("v_and_b32 v%d, 7, v1" % VO)
    g("v_lshl_add_u32 v%d, v%d, 4, v%d" % (VO, VO, VT2))
    g("v_and_b32 v%d, 15, v1" % VT)
    g("v_lshrrev_b32 v%d, 4, v1" % VT2)
    g("v_lshrrev_b32 v%d, 5, v1" % RA0)
    g("v_lshl_add_u32 v%d, v%d, 2, v%d" % (RA0, RA0, VT))
    g("v_add_u32 v%d, 8, v%d" % (RA1, RA0))
    g("v_and_b32 v%d, 15, v%d" % (RA0, RA0))
    g("v_and_b32 v%d, 15, v%d" % (RA1, RA1))
    g("v_lshl_add_u32 v%d, v%d, 4, v%d" % (RA0, VT2, RA0))
    g("v_lshl_add_u32 v%d, v%d, 4, v%d" % (RA1, VT2, RA1))
    g("v_lshl_add_u32 v%d, v%d, 4, s%d" % (RA0, RA0, S_STG))
    g("v_lshl_add_u32 v%d, v%d, 4, s%d" % (RA1, RA1, S_STG))
    g("s_waitcnt lgkmcnt(0)")
    w2_dma(g, 5)
    if OPT["early"]:
        g.wait_vm("ao")
    else:
        w2_rd(g, 3)
        w2_rd(g, 4)
    flag_check(g, VFL, 14)
    g.stamp(8)
    g("s_barrier")
    g.stamp(9)
    w2_dma(g, 6)
    hn = [0]
    def hl(n=1):
        for _ in range(n):
            if hn[0] >= 28:
                return
            mi, j = divmod(hn[0], 7)
            hn[0] += 1
            g("s_add_u32 s%d, s%d, s%d" % (S_M + 5, S_HB + mi, S_J + j))
            g.vmem("buffer_load_dwordx4 %s, v%d, %s, s%d offen sc1" % (vr(HF + 28 * mi + 4 * j, 4), VH, SRDW(S_WS), S_M + 5), "h%d_%d" % (mi, j))
    hl(4)
    def slot_ao():
        g("s_and_b32 s%d, s2, 31" % S_EX)
        g("s_lshl_b32 s%d, s%d, 7" % (S_EX, S_EX))
    g("s_lshr_b32 s%d, s2, 5" % S_T0)
    publish(g, (S_T0, 17), slot_ao, VT)
    if OPT["early"]:
        w2_rd(g, 3)
        w2_rd(g, 4)
    hl(OPT["h0"] - 4)
    w2_rd(g, 5)
    w2_rd(g, 6)
    g("s_waitcnt lgkmcnt(0)")
    accs = [ACC0, 16, 44, 72]
    ROFF = [0, 32768, 65536, KC]
    def redw(mi):
        if mi == 2:
            g("v_add_u32 v%d, 0x10000, v%d" % (RA0, RA0))
            g("v_add_u32 v%d, 0x10000, v%d" % (RA1, RA1))
        off = ROFF[mi] - (65536 if mi >= 2 else 0)
        for c in range(4):
            g("ds_write_b128 v%d, %s offset:%d" % ((RA0, RA1)[c & 1], vr(accs[mi] + 4 * c, 4), off + c * 1024))
    XT, AOT = 32, 36
    AOLB = UB
    AOG = [240, 244, 248, 252, 16, 20, 24, 28]
    def ao_load():
        sk = lead(g)
        g("v_lshrrev_b32 v4, 4, v1")
        g("v_and_b32 v5, 15, v1")
        g("v_mul_u32_u24 v6, %d, v4" % AOP)
        g("v_lshl_add_u32 v6, v5, 4, v6")
        g("s_mul_i32 s%d, s%d, %d" % (S_T0, S_NT, 32 * AOP))
        g("s_lshl_b32 s%d, s%d, 8" % (S_T1, S_RT))
        g("s_add_u32 s%d, s%d, s%d" % (S_T0, S_T0, S_T1))
        g("s_add_u32 s%d, s%d, %d" % (S_T0, S_T0, WS_AO))
        g("s_waitcnt lgkmcnt(0)")
        for k in range(8):
            g.vmem("buffer_load_dwordx4 %s, v6, %s, s%d offen sc1" % (vr(AOG[k], 4), SRDW(S_WS), S_T0), "0:aot")
            if k < 7:
                g("s_add_u32 s%d, s%d, %d" % (S_T0, S_T0, 4 * AOP))
        g("v_mul_u32_u24 v6, 272, v4")
        g("v_lshl_add_u32 v6, v5, 4, v6")
        g("v_add_u32 v6, %d, v6" % AOLB)
        g.label(sk)
        g("s_lshr_b32 s%d, s%d, 1" % (S_T0, S_WAVE))
        g("s_sub_u32 s%d, s%d, s%d" % (S_T0, S_T0, S_NT))
        g("s_and_b32 s%d, s%d, 3" % (S_T0, S_T0))
        g("s_lshl_b32 s%d, s%d, 15" % (S_T1, S_T0))
        g("s_cmp_eq_u32 s%d, 3" % S_T0)
        g("s_cmov_b32 s%d, %d" % (S_T1, KC))
        g("v_lshrrev_b32 v7, 3, v1")
        g("s_and_b32 s%d, s%d, 1" % (S_T0, S_WAVE))
        g("s_lshl_b32 s%d, s%d, 3" % (S_T0, S_T0))
        g("v_add_u32 v3, s%d, v7" % S_T0)
        g("v_and_b32 v4, 3, v1")
        g("v_lshl_add_u32 v3, v4, 2, v3")
        g("v_and_b32 v3, 15, v3")
        g("v_and_b32 v4, 1, v1")
        g("v_lshl_add_u32 v3, v4, 5, v3")
        g("v_lshlrev_b32 v3, 4, v3")
        g("v_bfe_u32 v4, v1, 1, 2")
        g("v_lshl_add_u32 v3, v4, 10, v3")
        g("v_add_u32 v3, s%d, v3" % S_T1)
        g("v_and_b32 v4, 7, v1")
        g("v_mul_u32_u24 v5, 1088, v4")
        g("v_lshl_add_u32 v5, v7, 2, v5")
        g("s_lshl_b32 s%d, s%d, 5" % (S_T0, S_WAVE))
        g("s_add_u32 s%d, s%d, %d" % (S_T0, S_T0, AOLB))
        g("v_add_u32 v5, s%d, v5" % S_T0)
    fdone = False
    for mi in range(4):
        a0 = accs[mi]
        for j in range(7):
            g.wait_vm("h%d_%d" % (mi, j))
            for c in range(4):
                a = a0 + 4 * c
                g("v_mfma_f32_16x16x32_bf16 %s, %s, %s, %s" % (vr(a, 4), vr(W2F + 16 * j + 4 * c, 4), vr(HF + 28 * mi + 4 * j, 4), "0" if j == 0 else vr(a, 4)))
            if hn[0] == OPT["fa"] and not fdone:
                assert mi >= 1
                flag_issue(g, VFL, (S_NT, 17), 32)
                g.vmem("buffer_load_dwordx4 %s, v%d, %s, s%d offen" % (vr(XT, 4), VO, SRDW(S_X), S_OUTO), "xt")
                fdone = True
            hl(1)
            if 7 * mi + j == OPT["fa"] - 1:
                assert 7 * mi + j > 16
                flag_check(g, VFL, 32)
                ao_load()
            if j == 2 and mi > 0:
                redw(mi - 1)
    g.stamp(10)
    g.wait_vm("xt")
    g("s_nop 6")
    redw(3)
    sk = lead(g)
    g("s_waitcnt vmcnt(0)")
    for k in range(8):
        g("ds_write_b128 v6, %s offset:%d" % (vr(AOG[k], 4), 4 * 272 * k))
    g.label(sk)
    T = 88
    for k in range(4):
        g("v_lshlrev_b32 v%d, 16, v%d" % (T + 2 * k, XT + k))
        g("v_and_b32 v%d, 0xffff0000, v%d" % (T + 2 * k + 1, XT + k))
    g("s_waitcnt lgkmcnt(0)")
    g("s_barrier")
    g.stamp(11)
    R = 128
    for j in range(4):
        g("ds_read_b32 v%d, v5 offset:%d" % (AOT + j, 272 * j))
    for w in range(8):
        for hh in range(2):
            g("ds_read_b128 %s, v3 offset:%d" % (vr(R + 8 * w + 4 * hh, 4), w * 4096 + hh * 256))
    g("s_waitcnt lgkmcnt(15)")
    for k in range(4):
        g("v_lshlrev_b32 v%d, 16, v%d" % (T + 8 + 2 * k, AOT + k))
        g("v_and_b32 v%d, 0xffff0000, v%d" % (T + 8 + 2 * k + 1, AOT + k))
    for r in range(8):
        g("v_add_f32 v%d, v%d, v%d" % (T + r, T + r, T + 8 + r))
    for w in range(1, 8):
        g("s_waitcnt lgkmcnt(%d)" % (14 - 2 * w))
        for r in range(0, 8, 2):
            g("v_pk_add_f32 %s, %s, %s" % (vr(R + r, 2), vr(R + r, 2), vr(R + 8 * w + r, 2)))
    for r in range(8):
        g("v_cvt_pk_bf16_f32 v%d, v%d, v%d" % (T + 8 + r, T + r, R + r))
    for r in range(8):
        g("v_lshlrev_b32 v%d, 16, v%d" % (T + r, T + 8 + r))
        g("v_and_b32 v%d, 0xffff0000, v%d" % (T + 8 + r, T + 8 + r))
    for r in range(8):
        g("v_add_f32 v%d, v%d, v%d" % (T + r, T + r, T + 8 + r))
    for k in range(4):
        g("v_cvt_pk_bf16_f32 v%d, v%d, v%d" % (R + k, T + 2 * k, T + 2 * k + 1))
    g("buffer_store_dwordx4 %s, v%d, %s, s%d offen" % (vr(R, 4), VO, SRDW(S_OUT), S_OUTO))
    if OPT["dbgtime"]:
        sk = lead(g)
        g("s_and_b32 s%d, s2, 63" % S_T0)
        g("s_cmp_lg_u32 s%d, 40" % S_T0)
        g("s_cbranch_scc1 %s" % sk)
        g("s_memtime s[94:95]")
        g("s_memrealtime s[96:97]")
        g("s_waitcnt lgkmcnt(0)")
        g("s_sub_u32 s94, s94, s98")
        g("v_mov_b32 v20, s94")
        g("v_mov_b32 v21, s100")
        g("v_mov_b32 v22, s96")
        g("s_lshr_b32 s%d, s2, 6" % S_T0)
        g("s_mul_i32 s%d, s%d, 12" % (S_T0, S_T0))
        g("s_add_u32 s%d, s%d, 4" % (S_T0, S_T0))
        g("s_mov_b64 exec, 1")
        g("buffer_store_dwordx3 v[20:22], off, %s, s%d" % (SRDW(S_DBG), S_T0))
        g.label(sk)
    if OPT.get("rt"):
        g("s_memtime s[94:95]")
        g("s_memrealtime s[96:97]")
        g("s_waitcnt lgkmcnt(0)")
        g("s_sub_u32 s94, s94, s98")
        g("v_mov_b32 v20, s94")
        g("v_mov_b32 v21, s100")
        g("v_mov_b32 v22, s96")
        g("s_lshl_b32 s%d, s2, 3" % S_T0)
        g("s_add_u32 s%d, s%d, s%d" % (S_T0, S_T0, S_WAVE))
        g("s_lshl_b32 s%d, s%d, 4" % (S_T0, S_T0))
        g("s_add_u32 s%d, s%d, %d" % (S_T0, S_T0, WS_TS))
        g("s_mov_b64 exec, 1")
        g("buffer_store_dwordx3 v[20:22], off, %s, s%d" % (SRDW(S_WS), S_T0))
    if g.ts:
        g.stamp(12)
        g.stamp(13)
        g("s_memrealtime s[98:99]")
        g("s_waitcnt lgkmcnt(0)")
        g("v_writelane_b32 v15, s98, 14")
        g("s_lshl_b32 s%d, s2, 11" % S_T0)
        g("s_lshl_b32 s%d, s%d, 8" % (S_T1, S_WAVE))
        g("s_add_u32 s%d, s%d, s%d" % (S_T0, S_T0, S_T1))
        g("s_add_u32 s%d, s%d, %d" % (S_T0, S_T0, WS_TS))
        g("buffer_store_dword v15, v2, %s, s%d offen" % (SRDW(S_WS), S_T0))


HEADER = open("parallel_sum__ssm_conv_s4d__glu_gated_swiglu__prompt.s.ref").read().split("; Override launch")[0]


def emit(ts=False):
    g = gen(ts)
    body = "\n".join(g.L)
    tv = tables()
    tab = "\n".join(".long " + ",".join(str(x) for x in tv[i:i + 16]) for i in range(0, len(tv), 16))
    return HEADER + """; @launch grid=(256,1,1) block=(512,1,1) lds=163840
.amdgcn_target "amdgcn-amd-amdhsa--gfx950"
.text
.globl %s
.p2align 8
.type %s,@function
%s:
%s
.p2align 8
L_TAB:
%s
.section .rodata,"a"
.p2align 6
.amdhsa_kernel %s
  .amdhsa_next_free_vgpr 256
  .amdhsa_next_free_sgpr 102
  .amdhsa_accum_offset 256
  .amdhsa_group_segment_fixed_size 0
  .amdhsa_kernarg_size 112
  .amdhsa_user_sgpr_count 2
  .amdhsa_user_sgpr_kernarg_segment_ptr 1
  .amdhsa_system_sgpr_workgroup_id_x 1
.end_amdhsa_kernel
""" % (KNAME, KNAME, KNAME, body, tab, KNAME)


if __name__ == "__main__":
    ts = "--ts" in sys.argv
    for a in sys.argv[1:]:
        if a.startswith("--") and "=" in a:
            k, v = a[2:].split("=")
            OPT[k] = int(v)
    out = [a for a in sys.argv[1:] if not a.startswith("--")]
    path = out[0] if out else "k5.s"
    open(path, "w").write(emit(ts))
    print("wrote", path)
```
